```python
import torch

def _softmax(x, axis=-1):
    return torch.softmax(x, dim=axis)
def _gelu(x):
    return torch.nn.functional.gelu(x, approximate="tanh")
def _silu(x):
    return torch.nn.functional.silu(x)
def _sigmoid(x):
    return torch.sigmoid(x)
def _layernorm(x, axis=-1, eps=1e-5):
    m = x.mean(dim=axis, keepdim=True)
    v = x.var(dim=axis, keepdim=True, unbiased=False)
    return (x - m) / torch.sqrt(v + eps)
def _scatter_add(tgt, idx, src, axis=0):
    return tgt.clone().index_add_(axis, idx, src)
def _segment_sum(src, seg, n):
    out = torch.zeros((n,) + src.shape[1:], dtype=src.dtype)
    return out.index_add_(0, seg, src)
def _pad(x, pw):
    flat = tuple(v for pair in reversed(pw) for v in pair)
    return torch.nn.functional.pad(x, flat)

kernel_name = 'concat_heads__gqa_block_cached__mha_block_cached__decode'

def setup_inputs():

    _w = (lambda a: (lambda t: t.to(torch.bfloat16) if t.is_floating_point() else t)(torch.as_tensor(a)))
    def _A_setup():
        B, Sq, D = 8, 1, 448
        Hq, Hkv, Sk, Dh = 16, 8, 4096, 256
        assert Hq % Hkv == 0, (Hq, Hkv)
        return {
            "x": _w((lambda *s: torch.randn(*s, dtype=torch.bfloat16) * 0.8)(B, Sq, D)),
            "k_cache": _w((lambda *s: torch.randn(*s, dtype=torch.bfloat16) * 0.8)(B, Hkv, Sk, Dh)),
            "v_cache": _w((lambda *s: torch.randn(*s, dtype=torch.bfloat16) * 0.05)(B, Hkv, Sk, Dh)),
            "wq": _w((lambda *s: torch.randn(*s, dtype=torch.bfloat16) * 0.8)(D, Hq * Dh) * (D ** -0.5)),
            "wo": _w((lambda *s: torch.randn(*s, dtype=torch.bfloat16) * 0.05)(Hq * Dh, D) * ((Hq * Dh) ** -0.5)),
        }
    _A_in = _A_setup()

    def _B_setup():
        B, Sq, D = 8, 1, 448
        H, Sk, Dh = 16, 4096, 256
        return {
            "x": _w((lambda *s: torch.randn(*s, dtype=torch.bfloat16) * 0.8)(B, Sq, D)),
            "k_cache": _w((lambda *s: torch.randn(*s, dtype=torch.bfloat16) * 0.8)(B, H, Sk, Dh)),
            "v_cache": _w((lambda *s: torch.randn(*s, dtype=torch.bfloat16) * 0.05)(B, H, Sk, Dh)),
            "wq": _w((lambda *s: torch.randn(*s, dtype=torch.bfloat16) * 0.8)(D, H * Dh) * (D ** -0.5)),
            "wo": _w((lambda *s: torch.randn(*s, dtype=torch.bfloat16) * 0.05)(H * Dh, D) * ((H * Dh) ** -0.5)),
        }
    _B_in = _B_setup()

    return {
        "A_x": _A_in["x"],
        "A_k_cache": _A_in["k_cache"],
        "A_v_cache": _A_in["v_cache"],
        "A_wq": _A_in["wq"],
        "A_wo": _A_in["wo"],
        "B_x": _B_in["x"],
        "B_k_cache": _B_in["k_cache"],
        "B_v_cache": _B_in["v_cache"],
        "B_wq": _B_in["wq"],
        "B_wo": _B_in["wo"],
    }

def reference(A_x, A_k_cache, A_v_cache, A_wq, A_wo, B_x, B_k_cache, B_v_cache, B_wq, B_wo):
    def _A_ref(x, k_cache, v_cache, wq, wo):
        B, Sq, D = x.shape
        Hq, Dh = 16, 256
        Hkv = k_cache.shape[1]
        rep = Hq // Hkv
        q = (lambda x, *d: x.permute(*d))((x @ wq).reshape(B, Sq, Hq, Dh), 0, 2, 1, 3)
        k = (lambda x, n, axis: torch.repeat_interleave(x, n, dim=axis))(k_cache, rep, axis=1)
        v = (lambda x, n, axis: torch.repeat_interleave(x, n, dim=axis))(v_cache, rep, axis=1)
        scores = torch.einsum("bhqd,bhkd->bhqk", q, k) * (Dh ** -0.5)
        p = _softmax(scores, axis=-1)
        o = torch.einsum("bhqk,bhkd->bhqd", p, v)
        return (lambda x, *d: x.permute(*d))(o, 0, 2, 1, 3).reshape(B, Sq, Hq * Dh) @ wo

    def _B_ref(x, k_cache, v_cache, wq, wo):
        B, Sq, D = x.shape
        H, Dh = 16, 256
        q = (lambda x, *d: x.permute(*d))((x @ wq).reshape(B, Sq, H, Dh), 0, 2, 1, 3)
        scores = torch.einsum("bhqd,bhkd->bhqk", q, k_cache) * (Dh ** -0.5)
        p = _softmax(scores, axis=-1)
        o = torch.einsum("bhqk,bhkd->bhqd", p, v_cache)
        return (lambda x, *d: x.permute(*d))(o, 0, 2, 1, 3).reshape(B, Sq, H * Dh) @ wo

    a = _A_ref(A_x, A_k_cache, A_v_cache, A_wq, A_wo)
    b = _B_ref(B_x, B_k_cache, B_v_cache, B_wq, B_wo)
    return torch.concatenate([a, b], axis=-1)
```

```python
import sys
NAME="concat_heads__gqa_block_cached__mha_block_cached__decode"
KN=NAME+"_kernel"

class Asm:
    def __init__(s): s.L=[]; s.uid=0
    def __call__(s,x): s.L.append("  "+x)
    def lab(s,x): s.L.append(x+":")
    def c(s,x): s.L.append("  ; "+x)
    def new(s,p): s.uid+=1; return f"L_{p}_{s.uid}"
    def text(s): return "\n".join(s.L)+"\n"

def vr(b,n=1): return f"v{b}" if n==1 else f"v[{b}:{b+n-1}]"
def sr(b,n=1): return f"s{b}" if n==1 else f"s[{b}:{b+n-1}]"

def gen(D=40, NS=15, diag=False, pol="nt", spin_sleep=1):
    a=Asm()
    RING=0; RINGB=NS*8192
    SBUF=RINGB
    MISC=SBUF+32768
    FULL=0; DONE=16; CQ1=32; CQ2=36; CMX=40; CFIN=44
    QL=256; MX=1280; LS=1408
    LDS=MISC+2048
    assert LDS<=163840
    CEXP=0x3db8aa3b
    import struct
    cexp=1.4426950408889634/16.0
    CEXP=struct.unpack("<I",struct.pack("<f",cexp))[0]
    O_OFF=0
    TS_OFF=0x20000000
    sWAVE=3; sX=4; sSLOT=5; sB=6; sGRP=7; sKA=8
    sPAIR=10; sH=11; sISB=12; sT0=13; sT1=14; sT2=15
    sP0=16
    sDBG=20
    sWS=22
    sOUT=24
    sSRD0=28
    sSRD1=32
    sTS0=40
    sTS1=42
    def ts(slot):
        if not diag: return
        a(f"s_memrealtime s[{sTS0}:{sTS0+1}]")
        a(f"s_load_dwordx2 s[{sTS1}:{sTS1+1}], s[0:1], 96")
        a("s_waitcnt lgkmcnt(0)")
        a(f"s_add_u32 s{sTS1}, s{sTS1}, {TS_OFF}")
        a(f"s_addc_u32 s{sTS1+1}, s{sTS1+1}, 0")
        a(f"s_lshl_b32 s44, s2, 7")
        a(f"v_mov_b32 v250, s44")
        a(f"v_mov_b32 v252, s{sTS0}")
        a(f"v_mov_b32 v253, s{sTS0+1}")
        a(f"s_mov_b64 s[46:47], exec")
        a(f"s_mov_b64 exec, 1")
        a(f"global_store_dwordx2 v250, v[252:253], s[{sTS1}:{sTS1+1}] offset:{slot*8}")
        a(f"s_mov_b64 exec, s[46:47]")
    sSP=72
    def bound():
        a(f"s_add_u32 s{sSP}, s{sSP}, 1")
        a(f"s_cmp_gt_u32 s{sSP}, 0x200000")
        a("s_cbranch_scc1 L_end")
    def spin_ge(vaddr, off, target, st=sT0, vt=None, signed=False):
        L=a.new("spin"); E=a.new("spun")
        a.lab(L)
        a(f"ds_read_b32 {vr(vt)}, {vr(vaddr)} offset:{off}")
        a("s_waitcnt lgkmcnt(0)")
        a(f"v_readfirstlane_b32 s{st}, {vr(vt)}")
        a(f"s_cmp_ge_{'i32' if signed else 'u32'} s{st}, {target}")
        a(f"s_cbranch_scc1 {E}")
        bound()
        if spin_sleep: a(f"s_sleep {spin_sleep}")
        a(f"s_branch {L}")
        a.lab(E)
    def signal(vaddr, off, vone):
        a("s_waitcnt lgkmcnt(0)")
        a("s_mov_b64 exec, 1")
        a(f"ds_add_u32 {vr(vaddr)}, {vr(vone)} offset:{off}")
        a("s_mov_b64 exec, -1")

    a.lab(KN)
    a("s_cmp_ge_u32 s2, 256")
    a("s_cbranch_scc1 L_end")
    a("v_lshrrev_b32 v1, 6, v0")
    a("v_and_b32 v0, 63, v0")
    a(f"s_mov_b32 s{sSP}, 0")
    a("s_cmp_ge_u32 s2, 192")
    a(f"v_readfirstlane_b32 s{sWAVE}, v1")
    a("s_cbranch_scc1 L_helper")
    a(f"s_and_b32 s{sX}, s2, 7")
    a(f"s_lshr_b32 s{sSLOT}, s2, 3")
    a(f"s_and_b32 s{sB}, s{sSLOT}, 7")
    a(f"s_lshr_b32 s{sGRP}, s{sSLOT}, 3")
    a(f"s_cmp_lg_u32 s{sGRP}, 0")
    a(f"s_cselect_b32 s{sISB}, 1, 0")
    a(f"s_cselect_b32 s{sT0}, 40, 0")
    a(f"s_add_u32 s{sKA}, s0, s{sT0}")
    a(f"s_addc_u32 s{sKA+1}, s1, 0")
    a(f"s_lshr_b32 s{sT1}, s{sGRP}, 1")
    a(f"s_lshl_b32 s{sT1}, s{sT1}, 3")
    a(f"s_add_u32 s{sH}, s{sX}, s{sT1}")
    a(f"s_add_u32 s{sT1}, s{sISB}, 3")
    a(f"s_lshl_b32 s{sPAIR}, s{sB}, s{sT1}")
    a(f"s_add_u32 s{sPAIR}, s{sPAIR}, s{sH}")
    a(f"s_cmp_lg_u32 s{sWAVE}, 0")
    a("s_cbranch_scc1 L_qwave")
    a.c("---------------- loader wave ----------------")
    a(f"s_load_dwordx4 s[{sP0}:{sP0+3}], s[{sKA}:{sKA+1}], 8")
    a("s_setprio 3")
    vZ=2; vA=3; vFA=4; vFV=5; vKO=8; vVO=16; vD=20
    a(f"v_mov_b32 v{vZ}, 0")
    a(f"v_lshlrev_b32 v{vA}, 2, v0")
    a(f"v_add_u32 v{vA}, {MISC}, v{vA}")
    a(f"ds_write_b32 v{vA}, v{vZ}")
    a(f"v_mov_b32 v{vFA}, {MISC}")
    a("v_lshrrev_b32 v6, 5, v0      ; hi")
    a("v_and_b32 v7, 31, v0        ; lo")
    for i in range(8):
        a(f"v_add_u32 v{vKO+i}, {2*i}, v6")
        a(f"v_xor_b32 v{vKO+i}, v{vKO+i}, v7")
        a(f"v_lshlrev_b32 v{vKO+i}, 4, v{vKO+i}")
        a(f"v_lshl_add_u32 v{vKO+i}, v6, 9, v{vKO+i}")
        if i>=4: a(f"v_add_u32 v{vKO+i}, 4096, v{vKO+i}")
    a(f"v_lshlrev_b32 v{vVO}, 4, v0")
    a(f"v_add_u32 v{vVO+1}, 4096, v{vVO}")
    a("s_waitcnt lgkmcnt(0)")
    a("s_barrier")
    a(f"s_lshl_b32 s{sT0}, s{sPAIR}, 21")
    a(f"s_add_u32 s{sSRD0}, s{sP0}, s{sT0}")
    a(f"s_addc_u32 s{sSRD0+1}, s{sP0+1}, 0")
    a(f"s_mov_b32 s{sSRD0+2}, 0x200000")
    a(f"s_mov_b32 s{sSRD0+3}, 0x20000")
    a(f"s_add_u32 s{sSRD1}, s{sP0+2}, s{sT0}")
    a(f"s_addc_u32 s{sSRD1+1}, s{sP0+3}, 0")
    a(f"s_mov_b32 s{sSRD1+2}, 0x200000")
    a(f"s_mov_b32 s{sSRD1+3}, 0x20000")
    sT=48; sAL=49; sSL=50; sOFF=51; sPUB=52; sEND=53
    a(f"s_mov_b32 s{sT}, 0")
    a(f"s_mov_b32 s{sAL}, {NS}")
    a(f"s_mov_b32 s{sSL}, {RING}")
    a(f"s_mov_b32 s{sPUB}, {1-D//8}")
    ts(0)
    for ph,(srd,vo,tend) in enumerate(((sSRD0,[vKO+i for i in range(8)],256),(sSRD1,[vVO]*4+[vVO+1]*4,512))):
        LT=f"L_ld_tile{ph}"; LG=f"L_ld_go{ph}"; LR=f"L_ld_ref{ph}"
        a(f"s_mov_b32 s{sOFF}, 0")
        a.lab(LT)
        a(f"s_cmp_lt_u32 s{sT}, s{sAL}")
        a(f"s_cbranch_scc1 {LG}")
        a.lab(LR)
        a(f"ds_read_b128 v[{vD}:{vD+3}], v{vFA} offset:{DONE}")
        a("s_waitcnt lgkmcnt(0)")
        a(f"v_min_u32 v{vD}, v{vD}, v{vD+1}")
        a(f"v_min3_u32 v{vD}, v{vD}, v{vD+2}, v{vD+3}")
        a("s_nop 0")
        a(f"v_readfirstlane_b32 s{sAL}, v{vD}")
        a(f"s_lshl_b32 s{sAL}, s{sAL}, 2")
        a(f"s_add_u32 s{sAL}, s{sAL}, {NS}")
        a(f"s_cmp_lt_u32 s{sT}, s{sAL}")
        a(f"s_cbranch_scc1 {LG}")
        bound()
        a("s_sleep 1")
        a(f"s_branch {LR}")
        a.lab(LG)
        a(f"s_mov_b32 m0, s{sSL}")
        a(f"s_waitcnt vmcnt({D-4})")
        for i in range(4):
            a(f"buffer_load_dwordx4 v{vo[i]}, s[{srd}:{srd+3}], s{sOFF} offen offset:{i*1024} {pol} lds")
        a(f"s_add_u32 m0, s{sSL}, 4096")
        a(f"v_mov_b32 v{vFV}, s{sPUB}")
        a(f"s_waitcnt vmcnt({D-4})")
        a(f"ds_write_b32 v{vFA}, v{vFV} offset:{FULL}")
        for i in range(4,8):
            a(f"buffer_load_dwordx4 v{vo[i]}, s[{srd}:{srd+3}], s{sOFF} offen offset:{(i-4)*1024} {pol} lds")
        a(f"s_add_u32 s{sOFF}, s{sOFF}, 8192")
        a(f"s_add_u32 s{sSL}, s{sSL}, 8192")
        a(f"s_cmp_eq_u32 s{sSL}, {RING+RINGB}")
        a(f"s_cselect_b32 s{sSL}, {RING}, s{sSL}")
        a(f"s_add_u32 s{sPUB}, s{sPUB}, 1")
        a(f"s_add_u32 s{sT}, s{sT}, 1")
        a(f"s_cmp_lt_u32 s{sT}, {tend}")
        a(f"s_cbranch_scc1 {LT}")
        if ph==0: ts(1)
    for k in range(D-8,-1,-8):
        a(f"v_mov_b32 v{vFV}, {512-k//8}")
        a(f"s_waitcnt vmcnt({k})")
        a(f"ds_write_b32 v{vFA}, v{vFV} offset:{FULL}")
    ts(2)
    a("s_endpgm")
    a.lab("L_qwave")
    a.c("---------------- q projection ----------------")
    a(f"s_load_dwordx2 s[{sP0}:{sP0+1}], s[{sKA}:{sKA+1}], 0    ; x")
    a(f"s_load_dwordx2 s[{sP0+2}:{sP0+3}], s[{sKA}:{sKA+1}], 24   ; wq")
    a(f"s_load_dwordx4 s[{sDBG}:{sDBG+3}], s[0:1], 88")
    sW1=54
    a(f"s_sub_u32 s{sW1}, s{sWAVE}, 1")
    vN=2; vG=3; vSEL=4
    vXO=12; vWO=13; vXD=16
    vAOP=24
    vACC=32
    vWS=48
    vFL=14
    vONE=15
    a(f"v_and_b32 v{vN}, 15, v0")
    a(f"v_lshrrev_b32 v{vG}, 4, v0")
    a(f"v_and_b32 v12, 7, v{vN}")
    a(f"v_lshrrev_b32 v13, 1, v12      ; te")
    a(f"v_and_b32 v12, 1, v12          ; par")
    a(f"v_cmp_eq_u32 vcc, 1, v12")
    a(f"v_mov_b32 v14, 0x0c0c0100")
    a(f"v_mov_b32 v15, 0x01000c0c")
    a(f"v_cndmask_b32 v14, v14, v15, vcc")
    a(f"v_mov_b32 v15, 0x0c0c0302")
    a(f"v_mov_b32 v16, 0x03020c0c")
    a(f"v_cndmask_b32 v15, v15, v16, vcc")
    a(f"v_mov_b32 v16, 0x0c0c0c0c")
    for t in range(4):
        a(f"v_cmp_eq_u32 vcc, {t}, v13")
        a("s_nop 1")
        a(f"v_cndmask_b32 v{vSEL+t}, v16, v14, vcc")
        a(f"v_cndmask_b32 v{vSEL+4+t}, v16, v15, vcc")
    a(f"s_mul_i32 s{sT0}, s{sB}, 896")
    a(f"s_lshl_b32 s{sT1}, s{sW1}, 7")
    a(f"s_add_u32 s{sT0}, s{sT0}, s{sT1}")
    a(f"v_lshlrev_b32 v{vXO}, 5, v{vG}")
    a(f"v_add_u32 v{vXO}, s{sT0}, v{vXO}")
    a(f"s_lshl_b32 s{sT0}, s{sW1}, 19")
    a(f"v_lshlrev_b32 v{vWO}, 17, v{vG}")
    a(f"v_lshl_add_u32 v{vWO}, v{vN}, 4, v{vWO}")
    a(f"v_add_u32 v{vWO}, s{sT0}, v{vWO}")
    a(f"v_mov_b32 v{vFL}, {MISC}")
    a(f"v_mov_b32 v{vONE}, 1")
    a("s_waitcnt lgkmcnt(0)")
    a("s_barrier")
    a(f"s_mov_b32 s{sSRD0}, s{sP0}")
    a(f"s_mov_b32 s{sSRD0+1}, s{sP0+1}")
    a(f"s_mov_b32 s{sSRD0+2}, 7168")
    a(f"s_mov_b32 s{sSRD0+3}, 0x20000")
    a(f"buffer_load_dwordx4 v[{vXD}:{vXD+3}], v{vXO}, s[{sSRD0}:{sSRD0+3}], 0 offen")
    a(f"buffer_load_dwordx4 v[{vXD+4}:{vXD+7}], v{vXO}, s[{sSRD0}:{sSRD0+3}], 0 offen offset:16")
    a(f"s_sub_u32 s{sT1}, 10, s{sISB}")
    a(f"s_lshl_b32 s{sT0}, s{sH}, s{sT1}")
    a(f"s_add_u32 s{sSRD1}, s{sP0+2}, s{sT0}")
    a(f"s_addc_u32 s{sSRD1+1}, s{sP0+3}, 0")
    a(f"s_sub_u32 s{sSRD1+2}, 3670016, s{sT0}")
    a(f"s_mov_b32 s{sSRD1+3}, 0x20000")
    a(f"s_cmp_eq_u32 s{sISB}, 1")
    a("s_cbranch_scc1 L_qB")
    sJ=56
    def qproj(npass, nslots, tag):
        for j in range(16): a(f"s_mov_b32 s{sJ+j}, {j*8192}")
        loads=[(p,j,cb) for p in range(npass) for j in range(16) for cb in range(2)]
        n=len(loads)
        def issue(k):
            p,j,cb=loads[k]; r=vWS+4*(k%nslots)
            a(f"buffer_load_dwordx4 v[{r}:{r+3}], v{vWO}, s[{sSRD1}:{sSRD1+3}], s{sJ+j} offen offset:{p*512+cb*256}")
        pre=min(n,nslots)
        for k in range(pre): issue(k)
        issued=pre
        first=True
        for k in range(n):
            p,j,cb=loads[k]
            aop=vAOP+4*(j&1)
            if cb==0:
                if first:
                    pass
                a(f"s_waitcnt vmcnt({issued-(k+2)})")
                for t in range(4):
                    a(f"v_perm_b32 v{aop+t}, v{vXD+(j>>1)}, v{vXD+(j>>1)}, v{vSEL+4*(j&1)+t}")
                a("s_nop 1")
            r=vWS+4*(k%nslots); acc=vACC+8*p+4*cb
            cin = "0" if j==0 else f"v[{acc}:{acc+3}]"
            a(f"v_mfma_f32_16x16x32_bf16 v[{acc}:{acc+3}], v[{aop}:{aop+3}], v[{r}:{r+3}], {cin}")
            if cb==1:
                for kk in (k-1,k):
                    if kk+nslots<n:
                        issue(kk+nslots); issued+=1
            first=False
        a("s_nop 7")
        a("s_nop 1")
        a(f"s_lshl_b32 s{sT0}, s{sW1}, 11")
        a(f"s_add_u32 s{sT0}, s{sT0}, {SBUF}")
        a(f"v_lshlrev_b32 v{vXO}, 5, v{vN}")
        a(f"v_lshl_add_u32 v{vXO}, v{vG}, 4, v{vXO}")
        a(f"v_add_u32 v{vXO}, s{sT0}, v{vXO}")
        a("s_mov_b32 exec_hi, 0")
        for p in range(npass):
            for cb in range(2):
                acc=vACC+8*p+4*cb
                a(f"ds_write_b128 v{vXO}, v[{acc}:{acc+3}] offset:{p*1024+cb*512}")
        a("s_mov_b64 exec, -1")
    a.c("A: two q heads")
    qproj(2,40,"A")
    a("s_branch L_qdone")
    a.lab("L_qB")
    a.c("B: one q head")
    qproj(1,32,"B")
    a.lab("L_qdone")
    signal(vFL,CQ1,vONE)
    a(f"s_cmp_gt_u32 s{sWAVE}, 4")
    a("s_cbranch_scc1 L_end")
    a.c("---------------- consumers ----------------")
    vT=24
    spin_ge(vFL,CQ1,7,vt=vT)
    ts(3) if False else None
    a(f"s_lshl_b32 s{sT0}, s{sW1}, 6")
    a(f"v_add_u32 v25, s{sT0}, v0          ; tt")
    a(f"v_lshlrev_b32 v26, 3, v25")
    a(f"v_add_u32 v26, {SBUF}, v26")
    for w in range(7):
        a(f"ds_read_b64 v[{32+2*w}:{33+2*w}], v26 offset:{w*2048}")
    a(f"v_lshlrev_b32 v27, 2, v25")
    a(f"v_add_u32 v27, {MISC+QL}, v27")
    a("s_waitcnt lgkmcnt(0)")
    for w in range(1,7):
        a(f"v_add_f32 v32, v32, v{32+2*w}")
        a(f"v_add_f32 v33, v33, v{33+2*w}")
    a(f"v_cvt_pk_bf16_f32 v32, v32, v33")
    a(f"ds_write_b32 v27, v32")
    if diag:
        a(f"s_lshl_b32 s{sT0}, s{sISB}, 16")
        a(f"s_lshl_b32 s{sT1}, s{sB}, 13")
        a(f"s_add_u32 s{sT0}, s{sT0}, s{sT1}")
        a(f"s_sub_u32 s{sT1}, 10, s{sISB}")
        a(f"s_lshl_b32 s{sT1}, s{sH}, s{sT1}")
        a(f"s_add_u32 s{sT0}, s{sT0}, s{sT1}")
        a(f"s_add_u32 s{sT0}, s{sT0}, 0x100000")
        a(f"v_lshlrev_b32 v28, 2, v25")
        a(f"v_add_u32 v28, s{sT0}, v28")
        a(f"s_cmp_eq_u32 s{sISB}, 1")
        a(f"s_mov_b32 s{sT0}, 256")
        a(f"s_cselect_b32 s{sT0}, 128, s{sT0}")
        a(f"v_cmp_gt_u32 vcc, s{sT0}, v25")
        a("s_and_saveexec_b64 s[46:47], vcc")
        a("s_cbranch_execz L_dq_skip")
        a(f"global_store_dword v28, v32, s[{sWS}:{sWS+1}]")
        a.lab("L_dq_skip")
        a("s_mov_b64 exec, s[46:47]")
    signal(vFL,CQ2,vONE)
    spin_ge(vFL,CQ2,4,vt=vT)
    vQF=32
    a(f"s_cmp_eq_u32 s{sISB}, 1")
    a(f"s_cselect_b32 s{sT0}, 0, 512")
    a(f"v_lshrrev_b32 v25, 3, v{vN}       ; qh")
    a(f"v_mul_lo_u32 v26, v25, s{sT0}")
    a(f"v_lshl_add_u32 v26, v{vG}, 4, v26")
    a(f"v_add_u32 v26, {MISC+QL}, v26")
    for s in range(8):
        a(f"ds_read_b128 v[{vQF+4*s}:{vQF+4*s+3}], v26 offset:{s*64}")
    vKA=64
    vKF=72
    vS=104
    vMAX=108; vSA=109; vDN=110; vDV=111; vQH=112
    a(f"v_mov_b32 v{vQH}, v25")
    for s in range(4):
        a(f"v_and_b32 v26, 12, v{vN}")
        a(f"v_xor_b32 v26, {4*s}, v26")
        a(f"v_and_b32 v27, 3, v{vN}")
        a(f"v_xor_b32 v27, v27, v{vG}")
        a(f"v_add_u32 v26, v26, v27")
        a(f"v_lshlrev_b32 v26, 4, v26")
        a(f"v_lshl_add_u32 v{vKA+s}, v{vN}, 9, v26")
    a(f"s_lshl_b32 s{sT0}, s{sW1}, 13")
    a(f"s_add_u32 s{sT0}, s{sT0}, {SBUF}")
    a(f"v_lshlrev_b32 v{vSA}, 6, v{vQH}")
    a(f"v_lshl_add_u32 v{vSA}, v{vG}, 4, v{vSA}")
    a(f"v_add_u32 v{vSA}, s{sT0}, v{vSA}")
    a(f"v_mov_b32 v{vMAX}, 0xff800000")
    a(f"s_lshl_b32 s{sT0}, s{sW1}, 2")
    a(f"s_add_u32 s{sT0}, s{sT0}, {MISC+DONE}")
    a(f"v_mov_b32 v{vDN}, s{sT0}")
    sTT=48; sFU=49; sSLO=50; sJ1=51; sMASK=52
    a(f"s_mov_b32 s{sTT}, s{sW1}")
    a(f"s_mov_b32 s{sFU}, 0")
    a(f"s_lshl_b32 s{sSLO}, s{sW1}, 13")
    a(f"s_mov_b32 s{sJ1}, 1")
    a(f"s_mov_b32 s{sMASK}, 0x01010101")
    a(f"s_mov_b32 s{sMASK+1}, 0x01010101")
    a("s_waitcnt lgkmcnt(0)")
    ts(3)
    def wait_full(tag):
        Lg=f"L_{tag}_go"; Ls=f"L_{tag}_spin"
        a(f"s_cmp_gt_i32 s{sFU}, s{sTT}")
        a(f"s_cbranch_scc1 {Lg}")
        a.lab(Ls)
        a(f"ds_read_b32 v{vT}, v{vFL} offset:{FULL}")
        a("s_waitcnt lgkmcnt(0)")
        a(f"v_readfirstlane_b32 s{sFU}, v{vT}")
        a(f"s_cmp_gt_i32 s{sFU}, s{sTT}")
        a(f"s_cbranch_scc1 {Lg}")
        bound()
        if spin_sleep: a(f"s_sleep {spin_sleep}")
        a(f"s_branch {Ls}")
        a.lab(Lg)
    def advance():
        a(f"s_add_u32 s{sTT}, s{sTT}, 4")
        a(f"s_add_u32 s{sSLO}, s{sSLO}, {4*8192}")
        a(f"s_cmp_ge_u32 s{sSLO}, {RINGB}")
        a(f"s_cselect_b32 s{sT0}, {RINGB}, 0")
        a(f"s_sub_u32 s{sSLO}, s{sSLO}, s{sT0}")
        a(f"s_add_u32 s{sJ1}, s{sJ1}, 1")
    a.lab("L_K")
    wait_full("K")
    for s in range(4): a(f"v_add_u32 v{vKA+4+s}, s{sSLO}, v{vKA+s}")
    for s in range(8):
        a(f"ds_read_b128 v[{vKF+4*s}:{vKF+4*s+3}], v{vKA+4+(s&3)} offset:{RING+(s>>2)*256}")
    a(f"v_mov_b32 v{vDV}, s{sJ1}")
    for s in range(8):
        a(f"s_waitcnt lgkmcnt({7-s})")
        if s==7: a(f"ds_write_b32 v{vDN}, v{vDV}")
        cin="0" if s==0 else f"v[{vS}:{vS+3}]"
        a(f"v_mfma_f32_16x16x32_bf16 v[{vS}:{vS+3}], v[{vKF+4*s}:{vKF+4*s+3}], v[{vQF+4*s}:{vQF+4*s+3}], {cin}")
    advance()
    a("s_nop 3")
    a(f"v_max3_f32 v{vMAX}, v{vMAX}, v{vS}, v{vS+1}")
    a(f"v_max3_f32 v{vMAX}, v{vMAX}, v{vS+2}, v{vS+3}")
    a(f"s_mov_b64 exec, s[{sMASK}:{sMASK+1}]")
    a(f"ds_write_b128 v{vSA}, v[{vS}:{vS+3}]")
    a("s_mov_b64 exec, -1")
    a(f"v_add_u32 v{vSA}, 128, v{vSA}")
    a(f"s_cmp_lt_u32 s{sTT}, 256")
    a("s_cbranch_scc1 L_K")
    ts(4)
    a(f"s_lshl_b32 s{sT0}, s{sW1}, 4")
    a(f"s_add_u32 s{sT0}, s{sT0}, {MISC+MX}")
    a(f"v_lshlrev_b32 v26, 6, v{vQH}")
    a(f"v_lshl_add_u32 v27, v{vG}, 2, v26")
    a(f"v_add_u32 v27, s{sT0}, v27")
    a(f"s_mov_b64 exec, s[{sMASK}:{sMASK+1}]")
    a(f"ds_write_b32 v27, v{vMAX}")
    a("s_mov_b64 exec, -1")
    signal(vFL,CMX,vONE)
    spin_ge(vFL,CMX,4,vt=vT)
    a(f"v_add_u32 v26, {MISC+MX}, v26")
    for k in range(4): a(f"ds_read_b128 v[{72+4*k}:{75+4*k}], v26 offset:{k*16}")
    a(f"v_subrev_u32 v{vSA}, {64*128}, v{vSA}")
    a("s_waitcnt lgkmcnt(0)")
    a("v_max3_f32 v72, v72, v73, v74")
    for k in range(75,87,2): a(f"v_max3_f32 v72, v72, v{k}, v{k+1}")
    a("v_max_f32 v72, v72, v87")
    vNM=113; vL=114; vVA=115; vVC=116
    sC=55
    a(f"s_mov_b32 s{sC}, {CEXP:#x}")
    a(f"v_mul_f32 v{vNM}, s{sC}, v72")
    a(f"v_sub_f32 v{vNM}, 0, v{vNM}")
    a(f"v_mov_b32 v{vL}, 0")
    a(f"v_lshlrev_b32 v{vVA}, 11, v{vG}")
    a(f"v_lshl_add_u32 v{vVA}, v{vN}, 4, v{vVA}")
    vO=120
    for k in range(8): a(f"v_mov_b32 v{vO+k}, 0")
    vVF=72
    vP=104
    vW=108
    vW=117
    vAP=128
    a.lab("L_V")
    a(f"ds_read_b128 v[{vP}:{vP+3}], v{vSA}")
    wait_full("V")
    a(f"v_add_u32 v{vVC}, s{sSLO}, v{vVA}")
    for r in range(4):
        for h in range(2):
            b=vVF+4*(2*r+h)
            a(f"ds_read_b128 v[{b}:{b+3}], v{vVC} offset:{RING+r*512+h*256}")
    a("s_waitcnt lgkmcnt(8)")
    for r in range(4): a(f"v_fma_f32 v{vP+r}, v{vP+r}, s{sC}, v{vNM}")
    for r in range(4): a(f"v_exp_f32 v{vP+r}, v{vP+r}")
    a(f"v_add_u32 v{vSA}, 128, v{vSA}")
    a(f"v_cvt_pk_bf16_f32 v{vW}, v{vP}, v{vP+1}")
    a(f"v_cvt_pk_bf16_f32 v{vW+1}, v{vP+2}, v{vP+3}")
    a(f"v_add_f32 v{vP}, v{vP}, v{vP+1}")
    a(f"v_add_f32 v{vP+2}, v{vP+2}, v{vP+3}")
    a(f"v_add_f32 v{vL}, v{vL}, v{vP}")
    a(f"v_add_f32 v{vL}, v{vL}, v{vP+2}")
    for r in range(4):
        for t in range(4):
            a(f"v_perm_b32 v{vAP+4*r+t}, v{vW+(r>>1)}, v{vW+(r>>1)}, v{vSEL+4*(r&1)+t}")
    a(f"v_mov_b32 v{vDV}, s{sJ1}")
    a("s_waitcnt lgkmcnt(0)")
    a(f"ds_write_b32 v{vDN}, v{vDV}")
    for r in range(4):
        for h in range(2):
            b=vVF+4*(2*r+h)
            a(f"v_mfma_f32_16x16x32_bf16 v[{vO+4*h}:{vO+4*h+3}], v[{vAP+4*r}:{vAP+4*r+3}], v[{b}:{b+3}], v[{vO+4*h}:{vO+4*h+3}]")
    advance()
    a(f"s_cmp_lt_u32 s{sTT}, 512")
    a("s_cbranch_scc1 L_V")
    ts(5)
    a(f"s_lshl_b32 s{sT0}, s{sW1}, 13")
    a(f"s_add_u32 s{sT0}, s{sT0}, {SBUF}")
    a(f"v_lshrrev_b32 v26, 1, v{vG}")
    a(f"v_lshlrev_b32 v26, 10, v26")
    a(f"v_and_b32 v27, 1, v{vG}")
    a(f"v_lshl_add_u32 v26, v27, 4, v26")
    a(f"v_lshl_add_u32 v26, v{vN}, 5, v26")
    a(f"v_add_u32 v26, s{sT0}, v26")
    a(f"s_lshl_b32 s{sT0}, s{sW1}, 4")
    a(f"s_add_u32 s{sT0}, s{sT0}, {MISC+LS}")
    a(f"v_lshlrev_b32 v27, 6, v{vQH}")
    a(f"v_lshl_add_u32 v27, v{vG}, 2, v27")
    a(f"v_add_u32 v27, s{sT0}, v27")
    a("s_nop 1")
    a(f"ds_write_b128 v26, v[{vO}:{vO+3}]")
    a(f"ds_write_b128 v26, v[{vO+4}:{vO+7}] offset:512")
    a(f"s_mov_b64 exec, s[{sMASK}:{sMASK+1}]")
    a(f"ds_write_b32 v27, v{vL}")
    a("s_mov_b64 exec, -1")
    a("s_waitcnt lgkmcnt(0)")
    a("s_mov_b64 exec, 1")
    a(f"ds_add_rtn_u32 v{vT}, v{vFL}, v{vONE} offset:{CFIN}")
    a("s_mov_b64 exec, -1")
    a("s_waitcnt lgkmcnt(0)")
    a(f"v_readfirstlane_b32 s{sT0}, v{vT}")
    a(f"s_cmp_eq_u32 s{sT0}, 3")
    a("s_cbranch_scc0 L_end")
    a("v_lshrrev_b32 v25, 5, v0")
    a("v_and_b32 v28, 31, v0")
    a("v_lshlrev_b32 v26, 10, v25")
    a("v_lshl_add_u32 v26, v28, 5, v26")
    a(f"v_add_u32 v26, {SBUF}, v26")
    for w in range(4):
        a(f"ds_read_b128 v[{32+8*w}:{35+8*w}], v26 offset:{w*8192}")
        a(f"ds_read_b128 v[{36+8*w}:{39+8*w}], v26 offset:{w*8192+16}")
    a("v_lshlrev_b32 v27, 6, v25")
    a(f"v_add_u32 v27, {MISC+LS}, v27")
    for k in range(4): a(f"ds_read_b128 v[{64+4*k}:{67+4*k}], v27 offset:{k*16}")
    a(f"s_lshl_b32 s{sT0}, s{sISB}, 16")
    a(f"s_lshl_b32 s{sT1}, s{sB}, 13")
    a(f"s_add_u32 s{sT0}, s{sT0}, s{sT1}")
    a(f"s_sub_u32 s{sT1}, 10, s{sISB}")
    a(f"s_lshl_b32 s{sT1}, s{sH}, s{sT1}")
    a(f"s_add_u32 s{sT0}, s{sT0}, s{sT1}")
    a(f"s_add_u32 s{sT0}, s{sT0}, {O_OFF}")
    a(f"v_lshlrev_b32 v29, 4, v0")
    a(f"v_add_u32 v29, s{sT0}, v29")
    a("s_waitcnt lgkmcnt(0)")
    for k in range(8):
        a(f"v_add_f32 v{32+k}, v{32+k}, v{40+k}")
        a(f"v_add_f32 v{48+k}, v{48+k}, v{56+k}")
    for k in range(8): a(f"v_add_f32 v{32+k}, v{32+k}, v{48+k}")
    for k in range(8): a(f"v_add_f32 v{64+k}, v{64+k}, v{72+k}")
    for k in range(4): a(f"v_add_f32 v{64+k}, v{64+k}, v{68+k}")
    a("v_add_f32 v64, v64, v65")
    a("v_add_f32 v66, v66, v67")
    a("v_add_f32 v64, v64, v66")
    a("v_rcp_f32 v64, v64")
    a("s_nop 0")
    for k in range(8): a(f"v_mul_f32 v{32+k}, v{32+k}, v64")
    for k in range(4): a(f"v_cvt_pk_bf16_f32 v{32+k}, v{32+2*k}, v{33+2*k}")
    a(f"s_cmp_eq_u32 s{sISB}, 1")
    a(f"s_cselect_b32 exec_hi, 0, -1")
    a(f"global_store_dwordx4 v29, v[32:35], s[{sWS}:{sWS+1}] sc1")
    a("s_waitcnt vmcnt(0)")
    a(f"s_lshl_b32 s{sT0}, s{sISB}, 7")
    a(f"s_lshl_b32 s{sT1}, s{sH}, 2")
    a(f"s_add_u32 s{sT0}, s{sT0}, s{sT1}")
    a(f"v_mov_b32 v29, s{sT0}")
    a("s_mov_b64 exec, 1")
    a(f"global_atomic_add v29, v{vONE}, s[{sDBG}:{sDBG+1}] sc1")
    ts(6)
    a("s_endpgm")
    a.lab("L_helper")
    a.c("---------------- out-projection helpers ----------------")
    a(f"s_sub_u32 s{sT0}, s2, 192")
    a(f"s_and_b32 s{sX}, s{sT0}, 7")
    a(f"s_lshr_b32 s{sT1}, s{sT0}, 3")
    a(f"s_and_b32 s{sSLOT}, s{sT1}, 3     ; sub")
    a(f"s_lshr_b32 s{sT1}, s{sT0}, 5      ; hi")
    a(f"s_lshl_b32 s{sT1}, s{sT1}, 3")
    a(f"s_add_u32 s{sGRP}, s{sT1}, s{sX}   ; gamma")
    a(f"s_cmp_ge_u32 s{sGRP}, 14")
    a("s_cbranch_scc1 L_end")
    a(f"s_cmp_ge_u32 s{sGRP}, 7")
    a(f"s_cselect_b32 s{sISB}, 1, 0")
    a(f"s_cselect_b32 s{sT0}, 40, 0")
    a(f"s_cselect_b32 s{sT1}, 7, 0")
    a(f"s_add_u32 s{sKA}, s0, s{sT0}")
    a(f"s_addc_u32 s{sKA+1}, s1, 0")
    a(f"s_sub_u32 s{sGRP}, s{sGRP}, s{sT1}")
    a(f"s_lshl_b32 s{sH}, s{sGRP}, 2")
    a(f"s_add_u32 s{sH}, s{sH}, s{sSLOT}")
    a(f"s_load_dwordx2 s[{sP0}:{sP0+1}], s[{sKA}:{sKA+1}], 32   ; wo")
    a(f"s_load_dwordx4 s[{sDBG}:{sDBG+3}], s[0:1], 88")
    a(f"s_load_dwordx2 s[{sOUT}:{sOUT+1}], s[0:1], 80")
    vN=2; vG=3
    a(f"v_and_b32 v{vN}, 15, v0")
    a(f"v_lshrrev_b32 v{vG}, 4, v0")
    a(f"s_mul_i32 s{sT0}, s{sWAVE}, {512*896}")
    a(f"s_lshl_b32 s{sT1}, s{sH}, 5")
    a(f"s_add_u32 s{sT0}, s{sT0}, s{sT1}")
    a(f"v_mul_u32_u24 v4, {8*896}, v{vG}")
    a(f"v_lshl_add_u32 v4, v{vN}, 1, v4")
    a(f"v_add_u32 v4, s{sT0}, v4")
    a(f"v_add_u32 v5, {4*896}, v4")
    a("s_waitcnt lgkmcnt(0)")
    a(f"s_mov_b32 s{sSRD0}, s{sP0}")
    a(f"s_mov_b32 s{sSRD0+1}, s{sP0+1}")
    a(f"s_mov_b32 s{sSRD0+2}, 3670016")
    a(f"s_mov_b32 s{sSRD0+3}, 0x20000")
    vWT=64
    vTMP=128
    for ch in range(4):
        for si in range(4):
            s=ch*4+si
            a(f"s_mov_b32 s{sT0}, {s*32*896}")
            for e in range(8):
                a(f"buffer_load_ushort v{vTMP+si*8+e}, v{4+(e>>2)}, s[{sSRD0}:{sSRD0+3}], s{sT0} offen offset:{(e&3)*896}")
        a("s_waitcnt vmcnt(0)")
        for si in range(4):
            s=ch*4+si
            for q in range(4):
                a(f"v_lshl_or_b32 v{vWT+4*s+q}, v{vTMP+si*8+2*q+1}, 16, v{vTMP+si*8+2*q}")
    a(f"s_lshl_b32 s{sT0}, s{sISB}, 16")
    a(f"s_add_u32 s{sT0}, s{sT0}, {O_OFF}")
    a(f"s_add_u32 s{sSRD1}, s{sWS}, s{sT0}")
    a(f"s_addc_u32 s{sSRD1+1}, s{sWS+1}, 0")
    a(f"s_mov_b32 s{sSRD1+2}, 65536")
    a(f"s_mov_b32 s{sSRD1+3}, 0x20000")
    a(f"v_and_b32 v6, 7, v{vN}")
    a(f"v_lshlrev_b32 v6, 13, v6")
    a(f"v_lshl_add_u32 v6, v{vG}, 4, v6")
    a(f"s_lshl_b32 s{sT0}, s{sWAVE}, 10")
    a(f"v_add_u32 v6, s{sT0}, v6")
    ts(0)
    a(f"s_cmp_lg_u32 s{sWAVE}, 0")
    a("s_cbranch_scc1 L_h_wait")
    a(f"s_lshl_b32 s{sT0}, s{sISB}, 3")
    a(f"s_add_u32 s{sT0}, s{sT0}, 7")
    a(f"v_and_b32 v7, s{sT0}, v0")
    a(f"v_lshlrev_b32 v7, 2, v7")
    a(f"s_lshl_b32 s{sT0}, s{sISB}, 7")
    a(f"v_add_u32 v7, s{sT0}, v7")
    a.lab("L_h_poll")
    a(f"global_load_dword v8, v7, s[{sDBG}:{sDBG+1}] sc1")
    a("s_waitcnt vmcnt(0)")
    a("v_cmp_eq_u32 vcc, 8, v8")
    a("s_nop 1")
    a("s_cmp_eq_u64 vcc, -1")
    a("s_cbranch_scc1 L_h_wait")
    bound()
    a("s_sleep 8")
    a("s_branch L_h_poll")
    a.lab("L_h_wait")
    a("s_barrier")
    ts(1)
    vOF=128
    for s in range(16):
        a(f"buffer_load_dwordx4 v[{vOF+4*s}:{vOF+4*s+3}], v6, s[{sSRD1}:{sSRD1+3}], 0 offen offset:{s*64} sc1")
    vAC=8
    for s in range(16):
        a(f"s_waitcnt vmcnt({15-s})")
        cin="0" if s==0 else f"v[{vAC}:{vAC+3}]"
        a(f"v_mfma_f32_16x16x32_bf16 v[{vAC}:{vAC+3}], v[{vOF+4*s}:{vOF+4*s+3}], v[{vWT+4*s}:{vWT+4*s+3}], {cin}")
    a(f"s_lshl_b32 s{sT0}, s{sWAVE}, 9")
    a(f"v_lshlrev_b32 v12, 8, v{vG}")
    a(f"v_lshl_add_u32 v12, v{vN}, 2, v12")
    a(f"v_add_u32 v12, s{sT0}, v12")
    a("s_nop 4")
    a("s_mov_b32 exec_hi, 0")
    for r in range(4): a(f"ds_write_b32 v12, v{vAC+r} offset:{r*64}")
    a("s_mov_b64 exec, -1")
    a("s_waitcnt lgkmcnt(0)")
    a("s_barrier")
    a(f"s_cmp_lg_u32 s{sWAVE}, 0")
    a("s_cbranch_scc1 L_end")
    a("v_lshrrev_b32 v12, 3, v0")
    a("v_and_b32 v13, 7, v0")
    a("v_lshlrev_b32 v14, 6, v12")
    a("v_lshl_add_u32 v14, v13, 3, v14")
    for w in range(8): a(f"ds_read_b64 v[{16+2*w}:{17+2*w}], v14 offset:{w*512}")
    a(f"s_mul_i32 s{sT0}, s{sISB}, 896")
    a(f"s_lshl_b32 s{sT1}, s{sH}, 5")
    a(f"s_add_u32 s{sT0}, s{sT0}, s{sT1}")
    a(f"v_mul_u32_u24 v15, 1792, v12")
    a(f"v_lshl_add_u32 v15, v13, 2, v15")
    a(f"v_add_u32 v15, s{sT0}, v15")
    a(f"s_mov_b32 s{sSRD0}, s{sOUT}")
    a(f"s_mov_b32 s{sSRD0+1}, s{sOUT+1}")
    a(f"s_mov_b32 s{sSRD0+2}, 14336")
    a(f"s_mov_b32 s{sSRD0+3}, 0x20000")
    a("s_waitcnt lgkmcnt(0)")
    for w in range(1,8):
        a(f"v_add_f32 v16, v16, v{16+2*w}")
        a(f"v_add_f32 v17, v17, v{17+2*w}")
    a("v_cvt_pk_bf16_f32 v16, v16, v17")
    a(f"buffer_store_dword v16, v15, s[{sSRD0}:{sSRD0+3}], 0 offen")
    ts(2)
    a.lab("L_end")
    a("s_endpgm")
    body=a.text()
    hdr=open("cdna_kernels/"+NAME+".s.ref").read().split("\n")
    head=[l for l in hdr if l.startswith(";") and "@launch" not in l and "Override launch" not in l and "grid=ceil" not in l]
    out="\n".join(head)+"\n"
    out+=f"; @launch grid=(256,1,1) block=(512,1,1) lds={LDS}\n"
    out+=f""".amdgcn_target "amdgcn-amd-amdhsa--gfx950"
.text
.globl {KN}
.p2align 8
.type {KN},@function
"""
    out+=body
    out+=f""".section .rodata,"a"
.p2align 6
.amdhsa_kernel {KN}
  .amdhsa_next_free_vgpr 256
  .amdhsa_next_free_sgpr 96
  .amdhsa_accum_offset 256
  .amdhsa_group_segment_fixed_size 0
  .amdhsa_kernarg_size 104
  .amdhsa_user_sgpr_count 2
  .amdhsa_user_sgpr_kernarg_segment_ptr 1
  .amdhsa_system_sgpr_workgroup_id_x 1
.end_amdhsa_kernel
"""
    return out, LDS

META=""".amdgpu_metadata
---
amdhsa.version: [1, 2]
amdhsa.kernels:
  - .name: {KN}
    .symbol: {KN}.kd
    .kernarg_segment_size: 104
    .kernarg_segment_align: 8
    .group_segment_fixed_size: 0
    .private_segment_fixed_size: 0
    .wavefront_size: 64
    .sgpr_count: 102
    .vgpr_count: 256
    .max_flat_workgroup_size: 512
    .args:
      - {{.name: kernargs, .size: 104, .offset: 0, .value_kind: by_value}}
...
.end_amdgpu_metadata
"""
if __name__=="__main__":
    import argparse
    ap=argparse.ArgumentParser()
    ap.add_argument("-o",default="cdna_kernels/"+NAME+".s")
    ap.add_argument("--diag",action="store_true")
    ap.add_argument("--meta",action="store_true")
    ap.add_argument("--D",type=int,default=40)
    ap.add_argument("--NS",type=int,default=15)
    ap.add_argument("--pol",default="nt")
    args=ap.parse_args()
    s,lds=gen(D=args.D,NS=args.NS,diag=args.diag,pol=args.pol)
    if args.meta: s+=META.format(KN=KN)
    open(args.o,"w").write(s)
    print("wrote",args.o,"lds",lds)
```

```python
import sys, struct
NAME="concat_heads__gqa_block_cached__mha_block_cached__decode"
KN=NAME+"_kernel"

class Asm:
    def __init__(s): s.L=[]; s.uid=0
    def __call__(s,x): s.L.append("  "+x)
    def lab(s,x): s.L.append(x+":")
    def c(s,x): s.L.append("  ; "+x)
    def new(s,p): s.uid+=1; return f"L_{p}_{s.uid}"
    def text(s): return "\n".join(s.L)+"\n"

def gen(D=40, NS=15, diag=False, pol="nt", spin_sleep=1, wqpol="nt", wopol="nt", hsleep=8, qsleep=2, qfirst=True):
    a=Asm()
    RING=0; RINGB=NS*8192
    SBUF=RINGB
    MISC=SBUF+32768
    FULL=0; DONE=16; CQ1=32; CQ2=36; CMX=40; CFIN=44
    QL=256; MX=1280; LS=1408
    LDS=MISC+2048
    assert LDS<=163840
    CEXP=struct.unpack("<I",struct.pack("<f",1.4426950408889634/16.0))[0]
    O_OFF=0
    E_OFF=0x30004
    QP_OFF=0x100000
    TS_OFF=0x20000000
    sWAVE=3; sX=4; sSLOT=5; sB=6; sGRP=7; sKA=8
    sPAIR=10; sH=11; sISB=12; sT0=13; sT1=14; sT2=15
    sP0=16
    sDBG=20
    sWS=22
    sOUT=24
    sTAG=26
    sSRD0=28; sSRD1=32
    sTS1=42
    sW1=54
    sSP=72
    sTSB=76
    def ts(slot):
        if not diag: return
        a(f"s_memrealtime s[{sTSB+2*slot}:{sTSB+2*slot+1}]")
        a("s_waitcnt lgkmcnt(0)")
    def ts_dump(slots):
        if not diag: return
        a(f"s_load_dwordx2 s[{sTS1}:{sTS1+1}], s[0:1], 96")
        a("s_waitcnt lgkmcnt(0)")
        a(f"s_add_u32 s{sTS1}, s{sTS1}, {TS_OFF}")
        a(f"s_addc_u32 s{sTS1+1}, s{sTS1+1}, 0")
        a(f"s_lshl_b32 s44, s2, 7")
        a(f"v_mov_b32 v250, s44")
        a(f"s_mov_b64 exec, 1")
        for slot in slots:
            a(f"v_mov_b32 v252, s{sTSB+2*slot}")
            a(f"v_mov_b32 v253, s{sTSB+2*slot+1}")
            a(f"global_store_dwordx2 v250, v[252:253], s[{sTS1}:{sTS1+1}] offset:{slot*8}")
            a("s_nop 1")
    def bound():
        a(f"s_add_u32 s{sSP}, s{sSP}, 1")
        a(f"s_cmp_gt_u32 s{sSP}, 0x200000")
        a("s_cbranch_scc1 L_end")
    def spin_ge(vaddr, off, target, vt, st=sT0):
        L=a.new("spin"); E=a.new("spun")
        a.lab(L)
        a(f"ds_read_b32 v{vt}, v{vaddr} offset:{off}")
        a("s_waitcnt lgkmcnt(0)")
        a(f"v_readfirstlane_b32 s{st}, v{vt}")
        a(f"s_cmp_ge_u32 s{st}, {target}")
        a(f"s_cbranch_scc1 {E}")
        bound()
        if spin_sleep: a(f"s_sleep {spin_sleep}")
        a(f"s_branch {L}")
        a.lab(E)
    def signal(vaddr, off, vone):
        a("s_waitcnt lgkmcnt(0)")
        a("s_mov_b64 exec, 1")
        a(f"ds_add_u32 v{vaddr}, v{vone} offset:{off}")
        a("s_mov_b64 exec, -1")
    def attn_decode():
        a(f"s_and_b32 s{sX}, s2, 7")
        a(f"s_lshr_b32 s{sSLOT}, s2, 3")
        a(f"s_and_b32 s{sB}, s{sSLOT}, 7")
        a(f"s_lshr_b32 s{sGRP}, s{sSLOT}, 3")
        a(f"s_cmp_lg_u32 s{sGRP}, 0")
        a(f"s_cselect_b32 s{sISB}, 1, 0")
        a(f"s_lshr_b32 s{sT1}, s{sGRP}, 1")
        a(f"s_lshl_b32 s{sT1}, s{sT1}, 3")
        a(f"s_add_u32 s{sH}, s{sX}, s{sT1}")
        a(f"s_add_u32 s{sT1}, s{sISB}, 3")
        a(f"s_lshl_b32 s{sPAIR}, s{sB}, s{sT1}")
        a(f"s_add_u32 s{sPAIR}, s{sPAIR}, s{sH}")
    def zero_flags(vz,va):
        a(f"v_mov_b32 v{vz}, 0")
        a(f"v_lshlrev_b32 v{va}, 2, v0")
        a(f"v_add_u32 v{va}, {MISC}, v{va}")
        a(f"ds_write_b32 v{va}, v{vz}")

    a.lab(KN)
    a("s_cmp_ge_u32 s2, 256")
    a("s_cbranch_scc1 L_end")
    a("v_lshrrev_b32 v1, 6, v0")
    a("v_and_b32 v0, 63, v0")
    a(f"s_mov_b32 s{sSP}, 0")
    a(f"v_readfirstlane_b32 s{sWAVE}, v1")
    a(f"s_cmp_lg_u32 s{sWAVE}, 0")
    a("s_cbranch_scc1 L_qw")
    a("s_cmp_ge_u32 s2, 192")
    a("s_cbranch_scc1 L_h0")
    a.c("---------------- loader wave ----------------")
    a(f"s_cmp_ge_u32 s2, 64")
    a(f"s_cselect_b32 s{sT0}, 40, 0")
    a(f"s_add_u32 s{sKA}, s0, s{sT0}")
    a(f"s_addc_u32 s{sKA+1}, s1, 0")
    a(f"s_load_dwordx4 s[{sP0}:{sP0+3}], s[{sKA}:{sKA+1}], 8")
    a("s_setprio 3")
    attn_decode()
    vZ=2; vA=3; vFA=4; vFV=5; vKO=8; vVO=16; vD=20
    zero_flags(vZ,vA)
    a(f"v_mov_b32 v{vFA}, {MISC}")
    a("v_lshrrev_b32 v6, 5, v0      ; hi")
    a("v_and_b32 v7, 31, v0        ; lo")
    for i in range(8):
        a(f"v_add_u32 v{vKO+i}, {2*i}, v6")
        a(f"v_xor_b32 v{vKO+i}, v{vKO+i}, v7")
        a(f"v_lshlrev_b32 v{vKO+i}, 4, v{vKO+i}")
        a(f"v_lshl_add_u32 v{vKO+i}, v6, 9, v{vKO+i}")
        if i>=4: a(f"v_add_u32 v{vKO+i}, 4096, v{vKO+i}")
    a(f"v_lshlrev_b32 v{vVO}, 4, v0")
    a(f"v_add_u32 v{vVO+1}, 4096, v{vVO}")
    a(f"s_lshl_b32 s{sT0}, s{sPAIR}, 21")
    a("s_waitcnt lgkmcnt(0)")
    a("s_barrier")
    a(f"s_add_u32 s{sSRD0}, s{sP0}, s{sT0}")
    a(f"s_addc_u32 s{sSRD0+1}, s{sP0+1}, 0")
    a(f"s_mov_b32 s{sSRD0+2}, 0x200000")
    a(f"s_mov_b32 s{sSRD0+3}, 0x20000")
    a(f"s_add_u32 s{sSRD1}, s{sP0+2}, s{sT0}")
    a(f"s_addc_u32 s{sSRD1+1}, s{sP0+3}, 0")
    a(f"s_mov_b32 s{sSRD1+2}, 0x200000")
    a(f"s_mov_b32 s{sSRD1+3}, 0x20000")
    sT=48; sAL=49; sSL=50; sOFF=51; sPUB=52
    a(f"s_mov_b32 s{sT}, 0")
    a(f"s_mov_b32 s{sAL}, {NS}")
    a(f"s_mov_b32 s{sSL}, {RING}")
    a(f"s_mov_b32 s{sPUB}, {1-D//8}")
    ts(0)
    for ph,(srd,vo,tend) in enumerate(((sSRD0,[vKO+i for i in range(8)],256),(sSRD1,[vVO]*4+[vVO+1]*4,512))):
        LT=f"L_ld_tile{ph}"; LG=f"L_ld_go{ph}"; LR=f"L_ld_ref{ph}"
        a(f"s_mov_b32 s{sOFF}, 0")
        a.lab(LT)
        a(f"s_cmp_lt_u32 s{sT}, s{sAL}")
        a(f"s_cbranch_scc1 {LG}")
        a.lab(LR)
        a(f"ds_read_b128 v[{vD}:{vD+3}], v{vFA} offset:{DONE}")
        a("s_waitcnt lgkmcnt(0)")
        a(f"v_min_u32 v{vD}, v{vD}, v{vD+1}")
        a(f"v_min3_u32 v{vD}, v{vD}, v{vD+2}, v{vD+3}")
        a("s_nop 0")
        a(f"v_readfirstlane_b32 s{sAL}, v{vD}")
        a(f"s_lshl_b32 s{sAL}, s{sAL}, 2")
        a(f"s_add_u32 s{sAL}, s{sAL}, {NS}")
        a(f"s_cmp_lt_u32 s{sT}, s{sAL}")
        a(f"s_cbranch_scc1 {LG}")
        bound()
        a("s_sleep 1")
        a(f"s_branch {LR}")
        a.lab(LG)
        a(f"s_mov_b32 m0, s{sSL}")
        a(f"s_waitcnt vmcnt({D-4})")
        for i in range(4):
            a(f"buffer_load_dwordx4 v{vo[i]}, s[{srd}:{srd+3}], s{sOFF} offen offset:{i*1024} {pol} lds")
        a(f"s_add_u32 m0, s{sSL}, 4096")
        a(f"v_mov_b32 v{vFV}, s{sPUB}")
        a(f"s_waitcnt vmcnt({D-4})")
        a(f"ds_write_b32 v{vFA}, v{vFV} offset:{FULL}")
        for i in range(4,8):
            a(f"buffer_load_dwordx4 v{vo[i]}, s[{srd}:{srd+3}], s{sOFF} offen offset:{(i-4)*1024} {pol} lds")
        a(f"s_add_u32 s{sOFF}, s{sOFF}, 8192")
        a(f"s_add_u32 s{sSL}, s{sSL}, 8192")
        a(f"s_cmp_eq_u32 s{sSL}, {RING+RINGB}")
        a(f"s_cselect_b32 s{sSL}, {RING}, s{sSL}")
        a(f"s_add_u32 s{sPUB}, s{sPUB}, 1")
        a(f"s_add_u32 s{sT}, s{sT}, 1")
        a(f"s_cmp_lt_u32 s{sT}, {tend}")
        a(f"s_cbranch_scc1 {LT}")
        if ph==0: ts(1)
    for k in range(D-8,-1,-8):
        a(f"v_mov_b32 v{vFV}, {512-k//8}")
        a(f"s_waitcnt vmcnt({k})")
        a(f"ds_write_b32 v{vFA}, v{vFV} offset:{FULL}")
    ts(2)
    ts_dump([0,1,2])
    a("s_endpgm")
    a.lab("L_qw")
    a.c("---------------- distributed q projection ----------------")
    a(f"s_lshr_b32 s{sT0}, s2, 7")
    a(f"s_mul_i32 s{sT0}, s{sT0}, 40")
    a(f"s_add_u32 s{sKA}, s0, s{sT0}")
    a(f"s_addc_u32 s{sKA+1}, s1, 0")
    a(f"s_load_dwordx2 s[{sP0}:{sP0+1}], s[{sKA}:{sKA+1}], 0    ; x")
    a(f"s_load_dwordx2 s[{sP0+2}:{sP0+3}], s[{sKA}:{sKA+1}], 24   ; wq")
    a(f"s_load_dwordx4 s[{sDBG}:{sDBG+3}], s[0:1], 88")
    a(f"s_sub_u32 s{sW1}, s{sWAVE}, 1")
    vN=2; vG=3; vS16=4; vXO=8; vWO=9; vX=10; vFL=14; vONE=15; vAO=16; vAC=24; vWq=40
    a(f"v_and_b32 v{vN}, 15, v0")
    a(f"v_lshrrev_b32 v{vG}, 4, v0")
    a(f"s_and_b32 s{sT0}, s2, 3")
    a(f"s_mul_i32 s{sT0}, s{sT0}, 112")
    a(f"s_lshl_b32 s{sT1}, s{sW1}, 4")
    a(f"s_add_u32 s{sT0}, s{sT0}, s{sT1}       ; row0")
    a(f"v_lshl_add_u32 v16, v{vG}, 2, s{sT0}    ; row0+4g")
    a(f"v_lshrrev_b32 v{vXO}, 2, v{vN}")
    a(f"v_mul_u32_u24 v{vXO}, 896, v{vXO}")
    a(f"v_lshl_add_u32 v{vXO}, v16, 1, v{vXO}")
    a(f"s_lshr_b32 s{sT1}, s2, 2")
    a(f"s_and_b32 s{sT1}, s{sT1}, 31")
    a(f"s_lshl_b32 s{sT1}, s{sT1}, 8")
    a(f"v_lshlrev_b32 v{vWO}, 13, v16")
    a(f"v_lshl_add_u32 v{vWO}, v{vN}, 4, v{vWO}")
    a(f"v_add_u32 v{vWO}, s{sT1}, v{vWO}")
    a(f"s_mov_b32 s56, 8192")
    a(f"s_mov_b32 s57, 16384")
    a(f"s_mov_b32 s58, 24576")
    a(f"v_mov_b32 v{vFL}, {MISC}")
    a(f"v_mov_b32 v{vONE}, 1")
    a("s_waitcnt lgkmcnt(0)")
    if not qfirst: a("s_barrier")
    a(f"s_load_dword s{sTAG}, s[{sWS}:{sWS+1}], {E_OFF}")
    a(f"s_mov_b32 s{sSRD1}, s{sP0+2}")
    a(f"s_mov_b32 s{sSRD1+1}, s{sP0+3}")
    a(f"s_mov_b32 s{sSRD1+2}, 3670016")
    a(f"s_mov_b32 s{sSRD1+3}, 0x20000")
    a(f"s_mov_b32 s{sSRD0}, s{sP0}")
    a(f"s_mov_b32 s{sSRD0+1}, s{sP0+1}")
    a(f"s_mov_b32 s{sSRD0+2}, 7168")
    a(f"s_mov_b32 s{sSRD0+3}, 0x20000")
    so=["0","s56","s57","s58"]
    for j in range(4):
        a(f"buffer_load_dwordx4 v[{vWq+4*j}:{vWq+4*j+3}], v{vWO}, s[{sSRD1}:{sSRD1+3}], {so[j]} offen {wqpol}")
    for u in range(2):
        a(f"buffer_load_dwordx2 v[{vX+2*u}:{vX+2*u+1}], v{vXO}, s[{sSRD0}:{sSRD0+3}], 0 offen offset:{u*3584}")
    if qfirst: a("s_barrier")
    a(f"v_and_b32 v16, 1, v{vN}")
    a(f"v_cmp_eq_u32 vcc, 1, v16")
    a(f"v_mov_b32 v17, 0x0c0c0100")
    a(f"v_mov_b32 v18, 0x01000c0c")
    a(f"v_cndmask_b32 v17, v17, v18, vcc")
    a(f"v_mov_b32 v18, 0x0c0c0302")
    a(f"v_mov_b32 v19, 0x03020c0c")
    a(f"v_cndmask_b32 v18, v18, v19, vcc")
    a(f"v_bfe_u32 v16, v{vN}, 1, 1")
    a(f"v_mov_b32 v19, 0x0c0c0c0c")
    for t in range(2):
        a(f"v_cmp_eq_u32 vcc, {t}, v16")
        a("s_nop 1")
        a(f"v_cndmask_b32 v{vS16+t}, v19, v17, vcc")
        a(f"v_cndmask_b32 v{vS16+2+t}, v19, v18, vcc")
    a(f"s_lshl_b32 s{sT0}, s{sW1}, 12")
    a(f"s_add_u32 s{sT0}, s{sT0}, {SBUF}")
    a(f"v_lshlrev_b32 v56, 9, v{vG}")
    a(f"v_lshl_add_u32 v56, v{vN}, 5, v56")
    a(f"v_add_u32 v56, s{sT0}, v56")
    a("s_waitcnt vmcnt(0)")
    for j in range(4):
        for u in range(2):
            ao=vAO+4*(j&1)+2*u
            for t in range(2):
                a(f"v_perm_b32 v{ao+t}, v{vX+2*u+(j>>1)}, v{vX+2*u+(j>>1)}, v{vS16+2*(j&1)+t}")
        a("s_nop 0")
        for u in range(2):
            ao=vAO+4*(j&1)+2*u
            for hf in range(2):
                acc=vAC+8*u+4*hf
                cin="0" if j==0 else f"v[{acc}:{acc+3}]"
                a(f"v_mfma_f32_16x16x16_bf16 v[{acc}:{acc+3}], v[{ao}:{ao+1}], v[{vWq+4*j+2*hf}:{vWq+4*j+2*hf+1}], {cin}")
    ts(8)
    a("s_nop 7")
    a("s_nop 0")
    for u in range(2):
        for hf in range(2):
            acc=vAC+8*u+4*hf
            a(f"ds_write_b128 v56, v[{acc}:{acc+3}] offset:{u*2048+hf*16}")
    signal(vFL,CQ1,vONE)
    a(f"s_cmp_gt_u32 s{sWAVE}, 4")
    a("s_cbranch_scc0 L_qred")
    a("s_cmp_ge_u32 s2, 192")
    a("s_cbranch_scc1 L_hout")
    a("s_endpgm")
    a.lab("L_qred")
    vT=24
    a("v_lshrrev_b32 v16, 5, v0")
    a("v_and_b32 v17, 31, v0")
    a(f"s_lshl_b32 s{sT0}, s{sW1}, 1")
    a(f"v_add_u32 v16, s{sT0}, v16           ; batch")
    a(f"v_lshlrev_b32 v18, 9, v16")
    a(f"v_lshl_add_u32 v18, v17, 4, v18")
    a(f"v_add_u32 v18, {SBUF}, v18")
    a(f"s_lshl_b32 s{sT0}, s2, 13")
    a(f"s_add_u32 s{sT0}, s{sT0}, {QP_OFF}")
    a(f"v_lshlrev_b32 v19, 10, v16")
    a(f"v_lshl_add_u32 v19, v17, 4, v19")
    a(f"v_add_u32 v19, s{sT0}, v19")
    spin_ge(vFL,CQ1,7,vT)
    for w in range(7):
        a(f"ds_read_b128 v[{40+4*w}:{43+4*w}], v18 offset:{w*4096}")
    a(f"s_add_u32 s{sTAG}, s{sTAG}, 0x9e3779b1")
    a("s_waitcnt lgkmcnt(0)")
    for k in range(4):
        a(f"v_add_f32 v{40+k}, v{40+k}, v{44+k}")
        a(f"v_add_f32 v{48+k}, v{48+k}, v{52+k}")
        a(f"v_add_f32 v{56+k}, v{56+k}, v{60+k}")
    for k in range(4):
        a(f"v_add_f32 v{40+k}, v{40+k}, v{48+k}")
        a(f"v_add_f32 v{56+k}, v{56+k}, v{64+k}")
    for k in range(4):
        a(f"v_add_f32 v{68+2*k}, v{40+k}, v{56+k}")
        a(f"v_mov_b32 v{69+2*k}, s{sTAG}")
    a(f"global_store_dwordx4 v19, v[68:71], s[{sWS}:{sWS+1}] sc1")
    a(f"global_store_dwordx4 v19, v[72:75], s[{sWS}:{sWS+1}] offset:512 sc1")
    ts(9)
    a("s_cmp_ge_u32 s2, 192")
    a("s_cbranch_scc1 L_hout")
    a.c("---------------- consumers ----------------")
    attn_decode()
    vSEL=4
    a(f"v_and_b32 v16, 7, v{vN}")
    a(f"v_lshrrev_b32 v17, 1, v16      ; te")
    a(f"v_and_b32 v16, 1, v16          ; par")
    a(f"v_cmp_eq_u32 vcc, 1, v16")
    a(f"v_mov_b32 v18, 0x0c0c0100")
    a(f"v_mov_b32 v19, 0x01000c0c")
    a(f"v_cndmask_b32 v18, v18, v19, vcc")
    a(f"v_mov_b32 v19, 0x0c0c0302")
    a(f"v_mov_b32 v20, 0x03020c0c")
    a(f"v_cndmask_b32 v19, v19, v20, vcc")
    a(f"v_mov_b32 v20, 0x0c0c0c0c")
    for t in range(4):
        a(f"v_cmp_eq_u32 vcc, {t}, v17")
        a("s_nop 1")
        a(f"v_cndmask_b32 v{vSEL+t}, v20, v18, vcc")
        a(f"v_cndmask_b32 v{vSEL+4+t}, v20, v19, vcc")
    a(f"s_cmp_eq_u32 s{sISB}, 1")
    a("s_cbranch_scc0 L_qg")
    a(f"s_cmp_ge_u32 s{sW1}, 2")
    a("s_cbranch_scc1 L_qg_done")
    a.lab("L_qg")
    a(f"s_sub_u32 s{sT1}, 2, s{sISB}")
    a(f"s_lshl_b32 s{sT0}, s{sH}, s{sT1}")
    a(f"s_add_u32 s{sT0}, s{sT0}, s{sW1}      ; c")
    a(f"s_lshl_b32 s{sT1}, s{sISB}, 5")
    a(f"s_add_u32 s{sT0}, s{sT0}, s{sT1}      ; m*32+c")
    a(f"s_lshl_b32 s{sT0}, s{sT0}, 15         ; *4*8192")
    a(f"s_lshl_b32 s{sT1}, s{sB}, 10")
    a(f"s_add_u32 s{sT0}, s{sT0}, s{sT1}")
    a(f"s_add_u32 s{sT0}, s{sT0}, {QP_OFF}")
    a(f"v_lshlrev_b32 v16, 4, v0")
    a(f"v_add_u32 v16, s{sT0}, v16")
    for kq in range(1,4): a(f"v_add_u32 v{16+kq}, {kq*8192}, v16")
    a.lab("L_qg_poll")
    for kq in range(4):
        a(f"global_load_dwordx4 v[{32+4*kq}:{35+4*kq}], v{16+kq}, s[{sWS}:{sWS+1}] sc1")
    a("s_waitcnt vmcnt(0)")
    a(f"v_xor_b32 v20, s{sTAG}, v33")
    for r in (35,37,39,41,43,45,47):
        a(f"v_xor_b32 v21, s{sTAG}, v{r}")
        a(f"v_or_b32 v20, v20, v21")
    a("v_cmp_eq_u32 vcc, 0, v20")
    a("s_nop 1")
    a("s_cmp_eq_u64 vcc, -1")
    a("s_cbranch_scc1 L_qg_got")
    bound()
    a(f"s_sleep {qsleep}")
    a("s_branch L_qg_poll")
    a.lab("L_qg_got")
    a("v_add_f32 v32, v32, v36")
    a("v_add_f32 v34, v34, v38")
    a("v_add_f32 v40, v40, v44")
    a("v_add_f32 v42, v42, v46")
    a("v_add_f32 v32, v32, v40")
    a("v_add_f32 v34, v34, v42")
    a("v_cvt_pk_bf16_f32 v32, v32, v34")
    a("v_and_b32 v20, 31, v0")
    a("v_lshrrev_b32 v21, 5, v0")
    a("v_lshlrev_b32 v20, 3, v20")
    a("v_lshl_add_u32 v20, v21, 2, v20")
    a(f"s_lshl_b32 s{sT0}, s{sW1}, 8")
    a(f"s_add_u32 s{sT0}, s{sT0}, {MISC+QL}")
    a(f"v_add_u32 v20, s{sT0}, v20")
    a("ds_write_b32 v20, v32")
    a.lab("L_qg_done")
    ts(7)
    signal(vFL,CQ2,vONE)
    spin_ge(vFL,CQ2,4,vT)
    vQF=32
    a(f"s_cmp_eq_u32 s{sISB}, 1")
    a(f"s_cselect_b32 s{sT0}, 0, 512")
    a(f"v_lshrrev_b32 v25, 3, v{vN}       ; qh")
    a(f"v_mul_lo_u32 v26, v25, s{sT0}")
    a(f"v_lshl_add_u32 v26, v{vG}, 4, v26")
    a(f"v_add_u32 v26, {MISC+QL}, v26")
    for s in range(8):
        a(f"ds_read_b128 v[{vQF+4*s}:{vQF+4*s+3}], v26 offset:{s*64}")
    vKA=64; vKF=72; vS=104
    vMAX=108; vSA=109; vDN=110; vDV=111; vQH=112
    a(f"v_mov_b32 v{vQH}, v25")
    for s in range(4):
        a(f"v_and_b32 v26, 12, v{vN}")
        a(f"v_xor_b32 v26, {4*s}, v26")
        a(f"v_and_b32 v27, 3, v{vN}")
        a(f"v_xor_b32 v27, v27, v{vG}")
        a(f"v_add_u32 v26, v26, v27")
        a(f"v_lshlrev_b32 v26, 4, v26")
        a(f"v_lshl_add_u32 v{vKA+s}, v{vN}, 9, v26")
    a(f"s_lshl_b32 s{sT0}, s{sW1}, 13")
    a(f"s_add_u32 s{sT0}, s{sT0}, {SBUF}")
    a(f"v_lshlrev_b32 v{vSA}, 6, v{vQH}")
    a(f"v_lshl_add_u32 v{vSA}, v{vG}, 4, v{vSA}")
    a(f"v_add_u32 v{vSA}, s{sT0}, v{vSA}")
    a(f"v_mov_b32 v{vMAX}, 0xff800000")
    a(f"s_lshl_b32 s{sT0}, s{sW1}, 2")
    a(f"s_add_u32 s{sT0}, s{sT0}, {MISC+DONE}")
    a(f"v_mov_b32 v{vDN}, s{sT0}")
    sTT=48; sFU=49; sSLO=50; sJ1=51; sMASK=52; sC=55
    a(f"s_mov_b32 s{sTT}, s{sW1}")
    a(f"s_mov_b32 s{sFU}, 0")
    a(f"s_lshl_b32 s{sSLO}, s{sW1}, 13")
    a(f"s_mov_b32 s{sJ1}, 1")
    a(f"s_mov_b32 s{sMASK}, 0x01010101")
    a(f"s_mov_b32 s{sMASK+1}, 0x01010101")
    a("s_waitcnt lgkmcnt(0)")
    ts(3)
    def wait_full(tag):
        Lg=f"L_{tag}_go"; Ls=f"L_{tag}_spin"
        a(f"s_cmp_gt_i32 s{sFU}, s{sTT}")
        a(f"s_cbranch_scc1 {Lg}")
        a.lab(Ls)
        a(f"ds_read_b32 v{vT}, v{vFL} offset:{FULL}")
        a("s_waitcnt lgkmcnt(0)")
        a(f"v_readfirstlane_b32 s{sFU}, v{vT}")
        a(f"s_cmp_gt_i32 s{sFU}, s{sTT}")
        a(f"s_cbranch_scc1 {Lg}")
        bound()
        if spin_sleep: a(f"s_sleep {spin_sleep}")
        a(f"s_branch {Ls}")
        a.lab(Lg)
    def advance():
        a(f"s_add_u32 s{sTT}, s{sTT}, 4")
        a(f"s_add_u32 s{sSLO}, s{sSLO}, {4*8192}")
        a(f"s_cmp_ge_u32 s{sSLO}, {RINGB}")
        a(f"s_cselect_b32 s{sT0}, {RINGB}, 0")
        a(f"s_sub_u32 s{sSLO}, s{sSLO}, s{sT0}")
        a(f"s_add_u32 s{sJ1}, s{sJ1}, 1")
    a.lab("L_K")
    wait_full("K")
    for s in range(4): a(f"v_add_u32 v{vKA+4+s}, s{sSLO}, v{vKA+s}")
    for s in range(8):
        a(f"ds_read_b128 v[{vKF+4*s}:{vKF+4*s+3}], v{vKA+4+(s&3)} offset:{RING+(s>>2)*256}")
    a(f"v_mov_b32 v{vDV}, s{sJ1}")
    for s in range(8):
        a(f"s_waitcnt lgkmcnt({7-s})")
        if s==7: a(f"ds_write_b32 v{vDN}, v{vDV}")
        cin="0" if s==0 else f"v[{vS}:{vS+3}]"
        a(f"v_mfma_f32_16x16x32_bf16 v[{vS}:{vS+3}], v[{vKF+4*s}:{vKF+4*s+3}], v[{vQF+4*s}:{vQF+4*s+3}], {cin}")
    advance()
    a("s_nop 3")
    a(f"v_max3_f32 v{vMAX}, v{vMAX}, v{vS}, v{vS+1}")
    a(f"v_max3_f32 v{vMAX}, v{vMAX}, v{vS+2}, v{vS+3}")
    a(f"s_mov_b64 exec, s[{sMASK}:{sMASK+1}]")
    a(f"ds_write_b128 v{vSA}, v[{vS}:{vS+3}]")
    a("s_mov_b64 exec, -1")
    a(f"v_add_u32 v{vSA}, 128, v{vSA}")
    a(f"s_cmp_lt_u32 s{sTT}, 256")
    a("s_cbranch_scc1 L_K")
    ts(4)
    a(f"s_lshl_b32 s{sT0}, s{sW1}, 4")
    a(f"s_add_u32 s{sT0}, s{sT0}, {MISC+MX}")
    a(f"v_lshlrev_b32 v26, 6, v{vQH}")
    a(f"v_lshl_add_u32 v27, v{vG}, 2, v26")
    a(f"v_add_u32 v27, s{sT0}, v27")
    a(f"s_mov_b64 exec, s[{sMASK}:{sMASK+1}]")
    a(f"ds_write_b32 v27, v{vMAX}")
    a("s_mov_b64 exec, -1")
    signal(vFL,CMX,vONE)
    spin_ge(vFL,CMX,4,vT)
    a(f"v_add_u32 v26, {MISC+MX}, v26")
    for k in range(4): a(f"ds_read_b128 v[{72+4*k}:{75+4*k}], v26 offset:{k*16}")
    a(f"v_subrev_u32 v{vSA}, {64*128}, v{vSA}")
    a("s_waitcnt lgkmcnt(0)")
    a("v_max3_f32 v72, v72, v73, v74")
    for k in range(75,87,2): a(f"v_max3_f32 v72, v72, v{k}, v{k+1}")
    a("v_max_f32 v72, v72, v87")
    vNM=113; vL=114; vVA=115; vVC=116; vW=117
    a(f"s_mov_b32 s{sC}, {CEXP:#x}")
    a(f"v_mul_f32 v{vNM}, s{sC}, v72")
    a(f"v_sub_f32 v{vNM}, 0, v{vNM}")
    a(f"v_mov_b32 v{vL}, 0")
    a(f"v_lshlrev_b32 v{vVA}, 11, v{vG}")
    a(f"v_lshl_add_u32 v{vVA}, v{vN}, 4, v{vVA}")
    vO=120
    for k in range(8): a(f"v_mov_b32 v{vO+k}, 0")
    vVF=72; vP=104; vAP=128
    a.lab("L_V")
    a(f"ds_read_b128 v[{vP}:{vP+3}], v{vSA}")
    wait_full("V")
    a(f"v_add_u32 v{vVC}, s{sSLO}, v{vVA}")
    for r in range(4):
        for h in range(2):
            b=vVF+4*(2*r+h)
            a(f"ds_read_b128 v[{b}:{b+3}], v{vVC} offset:{RING+r*512+h*256}")
    a("s_waitcnt lgkmcnt(8)")
    for r in range(4): a(f"v_fma_f32 v{vP+r}, v{vP+r}, s{sC}, v{vNM}")
    for r in range(4): a(f"v_exp_f32 v{vP+r}, v{vP+r}")
    a(f"v_add_u32 v{vSA}, 128, v{vSA}")
    a(f"v_cvt_pk_bf16_f32 v{vW}, v{vP}, v{vP+1}")
    a(f"v_cvt_pk_bf16_f32 v{vW+1}, v{vP+2}, v{vP+3}")
    a(f"v_add_f32 v{vP}, v{vP}, v{vP+1}")
    a(f"v_add_f32 v{vP+2}, v{vP+2}, v{vP+3}")
    a(f"v_add_f32 v{vL}, v{vL}, v{vP}")
    a(f"v_add_f32 v{vL}, v{vL}, v{vP+2}")
    for r in range(4):
        for t in range(4):
            a(f"v_perm_b32 v{vAP+4*r+t}, v{vW+(r>>1)}, v{vW+(r>>1)}, v{vSEL+4*(r&1)+t}")
    a(f"v_mov_b32 v{vDV}, s{sJ1}")
    a("s_waitcnt lgkmcnt(0)")
    a(f"ds_write_b32 v{vDN}, v{vDV}")
    for r in range(4):
        for h in range(2):
            b=vVF+4*(2*r+h)
            a(f"v_mfma_f32_16x16x32_bf16 v[{vO+4*h}:{vO+4*h+3}], v[{vAP+4*r}:{vAP+4*r+3}], v[{b}:{b+3}], v[{vO+4*h}:{vO+4*h+3}]")
    advance()
    a(f"s_cmp_lt_u32 s{sTT}, 512")
    a("s_cbranch_scc1 L_V")
    ts(5)
    a(f"s_lshl_b32 s{sT0}, s{sW1}, 13")
    a(f"s_add_u32 s{sT0}, s{sT0}, {SBUF}")
    a(f"v_lshrrev_b32 v26, 1, v{vG}")
    a(f"v_lshlrev_b32 v26, 10, v26")
    a(f"v_and_b32 v27, 1, v{vG}")
    a(f"v_lshl_add_u32 v26, v27, 4, v26")
    a(f"v_lshl_add_u32 v26, v{vN}, 5, v26")
    a(f"v_add_u32 v26, s{sT0}, v26")
    a(f"s_lshl_b32 s{sT0}, s{sW1}, 4")
    a(f"s_add_u32 s{sT0}, s{sT0}, {MISC+LS}")
    a(f"v_lshlrev_b32 v27, 6, v{vQH}")
    a(f"v_lshl_add_u32 v27, v{vG}, 2, v27")
    a(f"v_add_u32 v27, s{sT0}, v27")
    a("s_nop 1")
    a(f"ds_write_b128 v26, v[{vO}:{vO+3}]")
    a(f"ds_write_b128 v26, v[{vO+4}:{vO+7}] offset:512")
    a(f"s_mov_b64 exec, s[{sMASK}:{sMASK+1}]")
    a(f"ds_write_b32 v27, v{vL}")
    a("s_mov_b64 exec, -1")
    a("s_waitcnt lgkmcnt(0)")
    a("s_mov_b64 exec, 1")
    a(f"ds_add_rtn_u32 v{vT}, v{vFL}, v{vONE} offset:{CFIN}")
    a("s_mov_b64 exec, -1")
    a("s_waitcnt lgkmcnt(0)")
    a(f"v_readfirstlane_b32 s{sT0}, v{vT}")
    a(f"s_cmp_eq_u32 s{sT0}, 3")
    a("s_cbranch_scc0 L_end")
    a("v_lshrrev_b32 v25, 5, v0")
    a("v_and_b32 v28, 31, v0")
    a("v_lshlrev_b32 v26, 10, v25")
    a("v_lshl_add_u32 v26, v28, 5, v26")
    a(f"v_add_u32 v26, {SBUF}, v26")
    for w in range(4):
        a(f"ds_read_b128 v[{32+8*w}:{35+8*w}], v26 offset:{w*8192}")
        a(f"ds_read_b128 v[{36+8*w}:{39+8*w}], v26 offset:{w*8192+16}")
    a("v_lshlrev_b32 v27, 6, v25")
    a(f"v_add_u32 v27, {MISC+LS}, v27")
    for k in range(4): a(f"ds_read_b128 v[{64+4*k}:{67+4*k}], v27 offset:{k*16}")
    a(f"s_lshl_b32 s{sT0}, s{sISB}, 16")
    a(f"s_lshl_b32 s{sT1}, s{sB}, 13")
    a(f"s_add_u32 s{sT0}, s{sT0}, s{sT1}")
    a(f"s_sub_u32 s{sT1}, 10, s{sISB}")
    a(f"s_lshl_b32 s{sT1}, s{sH}, s{sT1}")
    a(f"s_add_u32 s{sT0}, s{sT0}, s{sT1}")
    a(f"s_add_u32 s{sT0}, s{sT0}, {O_OFF}")
    a(f"v_lshlrev_b32 v29, 4, v0")
    a(f"v_add_u32 v29, s{sT0}, v29")
    a("s_waitcnt lgkmcnt(0)")
    for k in range(8):
        a(f"v_add_f32 v{32+k}, v{32+k}, v{40+k}")
        a(f"v_add_f32 v{48+k}, v{48+k}, v{56+k}")
    for k in range(8): a(f"v_add_f32 v{32+k}, v{32+k}, v{48+k}")
    for k in range(8): a(f"v_add_f32 v{64+k}, v{64+k}, v{72+k}")
    for k in range(4): a(f"v_add_f32 v{64+k}, v{64+k}, v{68+k}")
    a("v_add_f32 v64, v64, v65")
    a("v_add_f32 v66, v66, v67")
    a("v_add_f32 v64, v64, v66")
    a("v_rcp_f32 v64, v64")
    a("s_nop 0")
    for k in range(8): a(f"v_mul_f32 v{32+k}, v{32+k}, v64")
    for k in range(4): a(f"v_cvt_pk_bf16_f32 v{32+k}, v{32+2*k}, v{33+2*k}")
    a(f"s_cmp_eq_u32 s{sISB}, 1")
    a(f"s_cselect_b32 exec_hi, 0, -1")
    a(f"global_store_dwordx4 v29, v[32:35], s[{sWS}:{sWS+1}] sc1")
    a(f"s_lshl_b32 s{sT0}, s{sISB}, 7")
    a(f"s_lshl_b32 s{sT1}, s{sH}, 2")
    a(f"s_add_u32 s{sT0}, s{sT0}, s{sT1}")
    a(f"v_mov_b32 v29, s{sT0}")
    a("s_waitcnt vmcnt(0)")
    a("s_mov_b64 exec, 1")
    a(f"global_atomic_add v29, v{vONE}, s[{sDBG}:{sDBG+1}] sc1")
    ts(6)
    ts_dump([3,4,5,6,7,8,9])
    a("s_endpgm")
    a.lab("L_h0")
    a.c("helper wave 0: flag init, pointers")
    a(f"s_load_dwordx4 s[{sDBG}:{sDBG+3}], s[0:1], 88")
    zero_flags(2,3)
    a("s_waitcnt lgkmcnt(0)")
    a("s_barrier")
    a.lab("L_hout")
    a.c("---------------- helpers: out projection ----------------")
    sHJ=54
    vN=2; vG=3
    a(f"s_sub_u32 s{sHJ}, s2, 192")
    a(f"s_and_b32 s{sX}, s{sHJ}, 7")
    a(f"s_lshr_b32 s{sT1}, s{sHJ}, 3")
    a(f"s_and_b32 s{sSLOT}, s{sT1}, 3     ; sub")
    a(f"s_lshr_b32 s{sT1}, s{sHJ}, 5      ; hi")
    a(f"s_lshl_b32 s{sT1}, s{sT1}, 3")
    a(f"s_add_u32 s{sGRP}, s{sT1}, s{sX}   ; gamma")
    a(f"s_cmp_ge_u32 s{sGRP}, 14")
    a("s_cbranch_scc1 L_h_idle")
    a(f"s_cmp_ge_u32 s{sGRP}, 7")
    a(f"s_cselect_b32 s{sISB}, 1, 0")
    a(f"s_cselect_b32 s{sT0}, 40, 0")
    a(f"s_cselect_b32 s{sT1}, 7, 0")
    a(f"s_add_u32 s{sKA}, s0, s{sT0}")
    a(f"s_addc_u32 s{sKA+1}, s1, 0")
    a(f"s_sub_u32 s{sGRP}, s{sGRP}, s{sT1}")
    a(f"s_lshl_b32 s{sH}, s{sGRP}, 2")
    a(f"s_add_u32 s{sH}, s{sH}, s{sSLOT}")
    a(f"s_load_dwordx2 s[{sP0}:{sP0+1}], s[{sKA}:{sKA+1}], 32   ; wo")
    a(f"s_load_dwordx2 s[{sOUT}:{sOUT+1}], s[0:1], 80")
    a(f"v_and_b32 v{vN}, 15, v0")
    a(f"v_lshrrev_b32 v{vG}, 4, v0")
    a(f"s_mul_i32 s{sT0}, s{sWAVE}, {512*896}")
    a(f"s_lshl_b32 s{sT1}, s{sH}, 5")
    a(f"s_add_u32 s{sT0}, s{sT0}, s{sT1}")
    a(f"v_mul_u32_u24 v4, {8*896}, v{vG}")
    a(f"v_lshl_add_u32 v4, v{vN}, 1, v4")
    a(f"v_add_u32 v4, s{sT0}, v4")
    a(f"v_add_u32 v5, {4*896}, v4")
    a("s_waitcnt lgkmcnt(0)")
    a(f"s_mov_b32 s{sSRD0}, s{sP0}")
    a(f"s_mov_b32 s{sSRD0+1}, s{sP0+1}")
    a(f"s_mov_b32 s{sSRD0+2}, 3670016")
    a(f"s_mov_b32 s{sSRD0+3}, 0x20000")
    vWT=64; vTMP=128
    for ch in range(4):
        for si in range(4):
            s_=ch*4+si
            a(f"s_mov_b32 s{sT0}, {s_*32*896}")
            for e in range(8):
                a(f"buffer_load_ushort v{vTMP+si*8+e}, v{4+(e>>2)}, s[{sSRD0}:{sSRD0+3}], s{sT0} offen offset:{(e&3)*896} {wopol}")
        a("s_waitcnt vmcnt(0)")
        for si in range(4):
            s_=ch*4+si
            for q in range(4):
                a(f"v_lshl_or_b32 v{vWT+4*s_+q}, v{vTMP+si*8+2*q+1}, 16, v{vTMP+si*8+2*q}")
    a(f"s_lshl_b32 s{sT0}, s{sISB}, 16")
    a(f"s_add_u32 s{sT0}, s{sT0}, {O_OFF}")
    a(f"s_add_u32 s{sSRD1}, s{sWS}, s{sT0}")
    a(f"s_addc_u32 s{sSRD1+1}, s{sWS+1}, 0")
    a(f"s_mov_b32 s{sSRD1+2}, 65536")
    a(f"s_mov_b32 s{sSRD1+3}, 0x20000")
    sJ=58
    a(f"s_lshl_b32 s{sT0}, s{sWAVE}, 10")
    a(f"v_lshlrev_b32 v6, 4, v0")
    a(f"v_add_u32 v6, s{sT0}, v6")
    for b in range(8): a(f"s_mov_b32 s{sJ+b}, {b*8192}")
    OST=32768
    a(f"s_mul_i32 s{sT0}, s{sWAVE}, 8448")
    a(f"s_add_u32 s{sT0}, s{sT0}, {OST}")
    a(f"v_lshlrev_b32 v9, 4, v0")
    a(f"v_add_u32 v9, s{sT0}, v9")
    a(f"v_and_b32 v10, 7, v{vN}")
    a(f"v_mul_u32_u24 v10, 1056, v10")
    a(f"v_lshl_add_u32 v10, v{vG}, 4, v10")
    a(f"v_add_u32 v10, s{sT0}, v10")
    ts(0)
    a(f"s_cmp_lg_u32 s{sWAVE}, 0")
    a("s_cbranch_scc1 L_h_wait")
    a(f"s_lshl_b32 s{sT0}, s{sISB}, 3")
    a(f"s_add_u32 s{sT0}, s{sT0}, 7")
    a(f"v_and_b32 v7, s{sT0}, v0")
    a(f"v_lshlrev_b32 v7, 2, v7")
    a(f"s_lshl_b32 s{sT0}, s{sISB}, 7")
    a(f"v_add_u32 v7, s{sT0}, v7")
    a.lab("L_h_poll")
    a(f"global_load_dword v8, v7, s[{sDBG}:{sDBG+1}] sc1")
    a("s_waitcnt vmcnt(0)")
    a("v_cmp_le_u32 vcc, 8, v8")
    a("s_nop 1")
    a("s_cmp_eq_u64 vcc, -1")
    a("s_cbranch_scc1 L_h_wait")
    bound()
    a(f"s_sleep {hsleep}")
    a("s_branch L_h_poll")
    a.lab("L_h_wait")
    a("s_barrier")
    ts(1)
    vOF=128
    for b in range(8):
        a(f"buffer_load_dwordx4 v[{vOF+4*b}:{vOF+4*b+3}], v6, s[{sSRD1}:{sSRD1+3}], s{sJ+b} offen sc1")
    for b in range(8):
        a(f"s_waitcnt vmcnt({7-b})")
        a(f"ds_write_b128 v9, v[{vOF+4*b}:{vOF+4*b+3}] offset:{b*1056}")
    vFR=160
    a("s_waitcnt lgkmcnt(0)")
    for s_ in range(16):
        a(f"ds_read_b128 v[{vFR+4*s_}:{vFR+4*s_+3}], v10 offset:{s_*64}")
    vAC=12
    for s_ in range(16):
        a(f"s_waitcnt lgkmcnt({15-s_})")
        cin="0" if s_==0 else f"v[{vAC}:{vAC+3}]"
        a(f"v_mfma_f32_16x16x32_bf16 v[{vAC}:{vAC+3}], v[{vFR+4*s_}:{vFR+4*s_+3}], v[{vWT+4*s_}:{vWT+4*s_+3}], {cin}")
    ts(2)
    a(f"s_lshl_b32 s{sT0}, s{sWAVE}, 9")
    a(f"v_lshlrev_b32 v11, 8, v{vG}")
    a(f"v_lshl_add_u32 v11, v{vN}, 2, v11")
    a(f"v_add_u32 v11, s{sT0}, v11")
    a("s_nop 4")
    a("s_mov_b32 exec_hi, 0")
    for r in range(4): a(f"ds_write_b32 v11, v{vAC+r} offset:{r*64}")
    a("s_mov_b64 exec, -1")
    a("s_waitcnt lgkmcnt(0)")
    a("s_barrier")
    a(f"s_cmp_lg_u32 s{sWAVE}, 0")
    a("s_cbranch_scc1 L_end")
    ts(3)
    a("v_lshrrev_b32 v12, 3, v0")
    a("v_and_b32 v13, 7, v0")
    a("v_lshlrev_b32 v14, 6, v12")
    a("v_lshl_add_u32 v14, v13, 3, v14")
    for w in range(8): a(f"ds_read_b64 v[{16+2*w}:{17+2*w}], v14 offset:{w*512}")
    a(f"s_mul_i32 s{sT0}, s{sISB}, 896")
    a(f"s_lshl_b32 s{sT1}, s{sH}, 5")
    a(f"s_add_u32 s{sT0}, s{sT0}, s{sT1}")
    a(f"v_mul_u32_u24 v15, 1792, v12")
    a(f"v_lshl_add_u32 v15, v13, 2, v15")
    a(f"v_add_u32 v15, s{sT0}, v15")
    a(f"s_mov_b32 s{sSRD0}, s{sOUT}")
    a(f"s_mov_b32 s{sSRD0+1}, s{sOUT+1}")
    a(f"s_mov_b32 s{sSRD0+2}, 14336")
    a(f"s_mov_b32 s{sSRD0+3}, 0x20000")
    a("s_waitcnt lgkmcnt(0)")
    for w in range(1,8):
        a(f"v_add_f32 v16, v16, v{16+2*w}")
        a(f"v_add_f32 v17, v17, v{17+2*w}")
    a("v_cvt_pk_bf16_f32 v16, v16, v17")
    a(f"buffer_store_dword v16, v15, s[{sSRD0}:{sSRD0+3}], 0 offen")
    ts(4)
    ts_dump([0,1,2,3,4])
    a("s_endpgm")
    a.lab("L_h_idle")
    a(f"s_cmp_lg_u32 s2, 230")
    a("s_cbranch_scc1 L_end")
    a(f"s_cmp_lg_u32 s{sWAVE}, 0")
    a("s_cbranch_scc1 L_end")
    a(f"s_load_dword s{sTAG}, s[{sWS}:{sWS+1}], {E_OFF}")
    a("v_cmp_gt_u32 vcc, 8, v0")
    a("v_lshlrev_b32 v4, 2, v0")
    a("v_add_u32 v5, 96, v4          ; 128 + (lane-8)*4")
    a("v_cndmask_b32 v4, v5, v4, vcc")
    a("v_cmp_gt_u32 vcc, 24, v0")
    a("v_mov_b32 v5, 0")
    a("s_nop 0")
    a("v_cndmask_b32 v4, v5, v4, vcc")
    a("s_waitcnt lgkmcnt(0)")
    a(f"s_add_u32 s{sTAG}, s{sTAG}, 0x9e3779b1")
    a.lab("L_e_poll")
    a(f"global_load_dword v8, v4, s[{sDBG}:{sDBG+1}] sc1")
    a("s_waitcnt vmcnt(0)")
    a("v_cmp_le_u32 vcc, 8, v8")
    a("s_nop 1")
    a("s_cmp_eq_u64 vcc, -1")
    a("s_cbranch_scc1 L_e_done")
    bound()
    a("s_sleep 32")
    a("s_branch L_e_poll")
    a.lab("L_e_done")
    a(f"v_mov_b32 v4, {E_OFF}")
    a(f"v_mov_b32 v5, s{sTAG}")
    a("s_mov_b64 exec, 1")
    a(f"global_store_dword v4, v5, s[{sWS}:{sWS+1}]")
    a.lab("L_end")
    a("s_endpgm")
    body=a.text()
    hdr=open("cdna_kernels/"+NAME+".s.ref").read().split("\n")
    head=[l for l in hdr if l.startswith(";") and "@launch" not in l and "Override launch" not in l and "grid=ceil" not in l]
    out="\n".join(head)+"\n"
    out+=f"; @launch grid=(256,1,1) block=(512,1,1) lds={LDS}\n"
    out+=f""".amdgcn_target "amdgcn-amd-amdhsa--gfx950"
.text
.globl {KN}
.p2align 8
.type {KN},@function
"""
    out+=body
    out+=f""".section .rodata,"a"
.p2align 6
.amdhsa_kernel {KN}
  .amdhsa_next_free_vgpr 256
  .amdhsa_next_free_sgpr 96
  .amdhsa_accum_offset 256
  .amdhsa_group_segment_fixed_size 0
  .amdhsa_kernarg_size 104
  .amdhsa_user_sgpr_count 2
  .amdhsa_user_sgpr_kernarg_segment_ptr 1
  .amdhsa_system_sgpr_workgroup_id_x 1
.end_amdhsa_kernel
"""
    return out, LDS

META=""".amdgpu_metadata
---
amdhsa.version: [1, 2]
amdhsa.kernels:
  - .name: {KN}
    .symbol: {KN}.kd
    .kernarg_segment_size: 104
    .kernarg_segment_align: 8
    .group_segment_fixed_size: 0
    .private_segment_fixed_size: 0
    .wavefront_size: 64
    .sgpr_count: 102
    .vgpr_count: 256
    .max_flat_workgroup_size: 512
    .args:
      - {{.name: kernargs, .size: 104, .offset: 0, .value_kind: by_value}}
...
.end_amdgpu_metadata
"""
if __name__=="__main__":
    import argparse
    ap=argparse.ArgumentParser()
    ap.add_argument("-o",default="cdna_kernels/"+NAME+".s")
    ap.add_argument("--diag",action="store_true")
    ap.add_argument("--meta",action="store_true")
    ap.add_argument("--D",type=int,default=40)
    ap.add_argument("--NS",type=int,default=15)
    ap.add_argument("--pol",default="nt")
    ap.add_argument("--wqpol",default="nt")
    ap.add_argument("--wopol",default="nt")
    ap.add_argument("--hsleep",type=int,default=8)
    ap.add_argument("--qsleep",type=int,default=2)
    ap.add_argument("--qfirst",type=int,default=1)
    args=ap.parse_args()
    s,lds=gen(D=args.D,NS=args.NS,diag=args.diag,pol=args.pol,wqpol=args.wqpol,wopol=args.wopol,hsleep=args.hsleep,qsleep=args.qsleep,qfirst=bool(args.qfirst))
    if args.meta: s+=META.format(KN=KN)
    open(args.o,"w").write(s)
    print("wrote",args.o,"lds",lds)
```

```python
import sys, struct
NAME="concat_heads__gqa_block_cached__mha_block_cached__decode"
KN=NAME+"_kernel"

class Asm:
    def __init__(s): s.L=[]; s.uid=0
    def __call__(s,x): s.L.append("  "+x)
    def lab(s,x): s.L.append(x+":")
    def c(s,x): s.L.append("  ; "+x)
    def new(s,p): s.uid+=1; return f"L_{p}_{s.uid}"
    def text(s): return "\n".join(s.L)+"\n"

def gen(D=40, NS=17, diag=False, pol="nt", spin_sleep=1, wqpol="nt", wopol="nt", hsleep=8, qsleep=16, qfirst=True, qwait=0, nowo=False, DINIT=24, DNORM=40, fb=True, fbp=4, th1=16, th2=40, dstep=4):
    a=Asm()
    DLIST=[DNORM-2*dstep,DNORM-dstep,DNORM,DNORM+dstep,DNORM+2*dstep] if fb else [DNORM]
    RING=0; RINGB=NS*8192
    SBUF=RINGB
    MISC=SBUF+16384
    QPART=(NS-4)*8192
    FULL=0; DONE=16; CQ1=32; CQ2=36; CMX=40; CFIN=44; DLEV=48
    QL=256; MX=1280; LS=1408
    LDS=MISC+2048
    assert LDS<=163840
    CEXP=struct.unpack("<I",struct.pack("<f",1.4426950408889634/16.0))[0]
    O_OFF=0
    E_OFF=0x30004
    QP_OFF=0x100000
    TS_OFF=0x20000000
    sWAVE=3; sX=4; sSLOT=5; sB=6; sGRP=7; sKA=8
    sPAIR=10; sH=11; sISB=12; sT0=13; sT1=14; sT2=15
    sP0=16
    sDBG=20
    sWS=22
    sOUT=24
    sTAG=26
    sSRD0=28; sSRD1=32
    sTS1=42
    sW1=54
    sSP=72
    sTSB=76
    def ts(slot):
        if not diag: return
        a(f"s_memrealtime s[{sTSB+2*slot}:{sTSB+2*slot+1}]")
        a("s_waitcnt lgkmcnt(0)")
    def ts_dump(slots):
        if not diag: return
        a(f"s_load_dwordx2 s[{sTS1}:{sTS1+1}], s[0:1], 96")
        a("s_waitcnt lgkmcnt(0)")
        a(f"s_add_u32 s{sTS1}, s{sTS1}, {TS_OFF}")
        a(f"s_addc_u32 s{sTS1+1}, s{sTS1+1}, 0")
        a(f"s_lshl_b32 s44, s2, 7")
        a(f"v_mov_b32 v250, s44")
        a(f"s_mov_b64 exec, 1")
        for slot in slots:
            a(f"v_mov_b32 v252, s{sTSB+2*slot}")
            a(f"v_mov_b32 v253, s{sTSB+2*slot+1}")
            a(f"global_store_dwordx2 v250, v[252:253], s[{sTS1}:{sTS1+1}] offset:{slot*8}")
            a("s_nop 1")
    def bound():
        a(f"s_add_u32 s{sSP}, s{sSP}, 1")
        a(f"s_cmp_gt_u32 s{sSP}, 0x200000")
        a("s_cbranch_scc1 L_end")
    def spin_ge(vaddr, off, target, vt, st=sT0, signed=False):
        L=a.new("spin"); E=a.new("spun")
        a.lab(L)
        a(f"ds_read_b32 v{vt}, v{vaddr} offset:{off}")
        a("s_waitcnt lgkmcnt(0)")
        a(f"v_readfirstlane_b32 s{st}, v{vt}")
        a(f"s_cmp_ge_{'i32' if signed else 'u32'} s{st}, {target}")
        a(f"s_cbranch_scc1 {E}")
        bound()
        if spin_sleep: a(f"s_sleep {spin_sleep}")
        a(f"s_branch {L}")
        a.lab(E)
    def signal(vaddr, off, vone):
        a("s_waitcnt lgkmcnt(0)")
        a("s_mov_b64 exec, 1")
        a(f"ds_add_u32 v{vaddr}, v{vone} offset:{off}")
        a("s_mov_b64 exec, -1")
    def attn_decode():
        a(f"s_and_b32 s{sX}, s2, 7")
        a(f"s_lshr_b32 s{sSLOT}, s2, 3")
        a(f"s_and_b32 s{sB}, s{sSLOT}, 7")
        a(f"s_lshr_b32 s{sGRP}, s{sSLOT}, 3")
        a(f"s_cmp_lg_u32 s{sGRP}, 0")
        a(f"s_cselect_b32 s{sISB}, 1, 0")
        a(f"s_lshr_b32 s{sT1}, s{sGRP}, 1")
        a(f"s_lshl_b32 s{sT1}, s{sT1}, 3")
        a(f"s_add_u32 s{sH}, s{sX}, s{sT1}")
        a(f"s_add_u32 s{sT1}, s{sISB}, 3")
        a(f"s_lshl_b32 s{sPAIR}, s{sB}, s{sT1}")
        a(f"s_add_u32 s{sPAIR}, s{sPAIR}, s{sH}")
    def zero_flags(vz,va):
        a(f"v_mov_b32 v{vz}, 0")
        a(f"v_lshlrev_b32 v{va}, 2, v0")
        a(f"v_add_u32 v{va}, {MISC}, v{va}")
        a(f"ds_write_b32 v{va}, v{vz}")

    a.lab(KN)
    a("s_cmp_ge_u32 s2, 256")
    a("s_cbranch_scc1 L_end")
    a("v_lshrrev_b32 v1, 6, v0")
    a("v_and_b32 v0, 63, v0")
    a(f"s_mov_b32 s{sSP}, 0")
    a(f"v_readfirstlane_b32 s{sWAVE}, v1")
    a(f"s_cmp_lg_u32 s{sWAVE}, 0")
    a("s_cbranch_scc1 L_qw")
    a("s_cmp_ge_u32 s2, 192")
    a("s_cbranch_scc1 L_h0")
    a.c("---------------- loader wave ----------------")
    a(f"s_cmp_ge_u32 s2, 64")
    a(f"s_cselect_b32 s{sT0}, 40, 0")
    a(f"s_add_u32 s{sKA}, s0, s{sT0}")
    a(f"s_addc_u32 s{sKA+1}, s1, 0")
    a(f"s_load_dwordx4 s[{sP0}:{sP0+3}], s[{sKA}:{sKA+1}], 8")
    a("s_setprio 3")
    attn_decode()
    vZ=2; vA=3; vFA=4; vFV=5; vKO=8; vVO=16; vD=20
    zero_flags(vZ,vA)
    a(f"v_mov_b32 v{vFA}, {MISC}")
    a("v_lshrrev_b32 v6, 5, v0      ; hi")
    a("v_and_b32 v7, 31, v0        ; lo")
    for i in range(8):
        a(f"v_add_u32 v{vKO+i}, {2*i}, v6")
        a(f"v_xor_b32 v{vKO+i}, v{vKO+i}, v7")
        a(f"v_lshlrev_b32 v{vKO+i}, 4, v{vKO+i}")
        a(f"v_lshl_add_u32 v{vKO+i}, v6, 9, v{vKO+i}")
        if i>=4: a(f"v_add_u32 v{vKO+i}, 4096, v{vKO+i}")
    a(f"v_lshlrev_b32 v{vVO}, 4, v0")
    a(f"v_add_u32 v{vVO+1}, 4096, v{vVO}")
    a(f"s_lshl_b32 s{sT0}, s{sPAIR}, 21")
    a("s_waitcnt lgkmcnt(0)")
    a("s_barrier")
    a(f"s_add_u32 s{sSRD0}, s{sP0}, s{sT0}")
    a(f"s_addc_u32 s{sSRD0+1}, s{sP0+1}, 0")
    a(f"s_mov_b32 s{sSRD0+2}, 0x200000")
    a(f"s_mov_b32 s{sSRD0+3}, 0x20000")
    a(f"s_add_u32 s{sSRD1}, s{sP0+2}, s{sT0}")
    a(f"s_addc_u32 s{sSRD1+1}, s{sP0+3}, 0")
    a(f"s_mov_b32 s{sSRD1+2}, 0x200000")
    a(f"s_mov_b32 s{sSRD1+3}, 0x20000")
    sT=48; sAL=49; sSL=50; sOFF=51; sPUB=52; sLV=53; sPV=54; vLV=24
    a(f"s_mov_b32 s{sT}, 0")
    a(f"s_mov_b32 s{sAL}, {NS-4}")
    a(f"s_mov_b32 s{sSL}, {RING}")
    a(f"s_mov_b32 s{sPUB}, 0")
    a(f"s_mov_b32 s{sLV}, {DINIT}")
    a(f"v_mov_b32 v{vLV}, 0")
    ts(0)
    for ph,(srd,vo,tend) in enumerate(((sSRD0,[vKO+i for i in range(8)],256),(sSRD1,[vVO]*4+[vVO+1]*4,512))):
        LT=f"L_ld_tile{ph}"; LG=f"L_ld_go{ph}"; LR=f"L_ld_ref{ph}"
        a(f"s_mov_b32 s{sOFF}, 0")
        a.lab(LT)
        if diag and ph==0:
            for tt,rg in ((NS-4,56),(NS,60)):
                a(f"s_cmp_lg_u32 s{sT}, {tt}")
                a(f"s_cbranch_scc1 L_tsx{tt}")
                a(f"s_memrealtime s[{rg}:{rg+1}]")
                a("s_waitcnt lgkmcnt(0)")
                a.lab(f"L_tsx{tt}")
        a(f"s_cmp_lt_u32 s{sT}, s{sAL}")
        a(f"s_cbranch_scc1 {LG}")
        a.lab(LR)
        a(f"ds_read_b128 v[{vD}:{vD+3}], v{vFA} offset:{DONE}")
        a("s_waitcnt lgkmcnt(0)")
        a(f"v_min_u32 v{vD}, v{vD}, v{vD+1}")
        a(f"v_min3_u32 v{vD}, v{vD}, v{vD+2}, v{vD+3}")
        a("s_nop 0")
        a(f"v_readfirstlane_b32 s{sAL}, v{vD}")
        a(f"s_lshl_b32 s{sAL}, s{sAL}, 2")
        a(f"s_add_u32 s{sAL}, s{sAL}, {NS-4}")
        a(f"s_cmp_lt_u32 s{sT}, s{sAL}")
        a(f"s_cbranch_scc1 {LG}")
        bound()
        a("s_sleep 1")
        a(f"s_branch {LR}")
        a.lab(LG)
        if diag and ph==0:
            for tt,rg in ((NS-4,58),(NS,62)):
                a(f"s_cmp_lg_u32 s{sT}, {tt}")
                a(f"s_cbranch_scc1 L_tsy{tt}")
                a(f"s_memrealtime s[{rg}:{rg+1}]")
                a("s_waitcnt lgkmcnt(0)")
                a.lab(f"L_tsy{tt}")
        def lwait(tag):
            Lgo=f"L_lw{ph}{tag}"
            dl=sorted(set(DLIST+[DINIT]),reverse=True)
            a(f"s_waitcnt vmcnt({dl[0]-4})")
            for k in range(len(dl)-1):
                a(f"s_cmp_ge_u32 s{sLV}, {dl[k]}")
                a(f"s_cbranch_scc1 {Lgo}")
                a(f"s_waitcnt vmcnt({dl[k+1]-4})")
            a.lab(Lgo)
        a("s_waitcnt lgkmcnt(0)")
        a(f"v_readfirstlane_b32 s{sLV}, v{vLV}")
        a(f"ds_read_b32 v{vLV}, v{vFA} offset:{DLEV}")
        a(f"s_max_u32 s{sLV}, s{sLV}, {DINIT}")
        a(f"s_mov_b32 m0, s{sSL}")
        lwait("a")
        for i in range(4):
            a(f"buffer_load_dwordx4 v{vo[i]}, s[{srd}:{srd+3}], s{sOFF} offen offset:{i*1024} {pol} lds")
        a(f"s_add_u32 m0, s{sSL}, 4096")
        a(f"s_add_u32 s{sPV}, s{sLV}, 7")
        a(f"s_lshr_b32 s{sPV}, s{sPV}, 3")
        a(f"s_sub_u32 s{sPV}, s{sT}, s{sPV}")
        a(f"s_add_u32 s{sPV}, s{sPV}, 1")
        a(f"s_max_i32 s{sPUB}, s{sPUB}, s{sPV}")
        a(f"v_mov_b32 v{vFV}, s{sPUB}")
        lwait("b")
        a(f"ds_write_b32 v{vFA}, v{vFV} offset:{FULL}")
        for i in range(4,8):
            a(f"buffer_load_dwordx4 v{vo[i]}, s[{srd}:{srd+3}], s{sOFF} offen offset:{(i-4)*1024} {pol} lds")
        a(f"s_add_u32 s{sOFF}, s{sOFF}, 8192")
        a(f"s_add_u32 s{sSL}, s{sSL}, 8192")
        a(f"s_cmp_eq_u32 s{sSL}, {RING+RINGB}")
        a(f"s_cselect_b32 s{sSL}, {RING}, s{sSL}")
        a(f"s_add_u32 s{sT}, s{sT}, 1")
        a(f"s_cmp_lt_u32 s{sT}, {tend}")
        a(f"s_cbranch_scc1 {LT}")
        if ph==0: ts(1)
    for k in range((max(DLIST)+7)//8*8-8,-1,-8):
        a(f"v_mov_b32 v{vFV}, {512-k//8}")
        a(f"s_waitcnt vmcnt({k})")
        a(f"ds_write_b32 v{vFA}, v{vFV} offset:{FULL}")
    ts(2)
    ts_dump([0,1,2])
    if diag:
        for k,rg in enumerate((56,58,60,62)):
            a(f"v_mov_b32 v252, s{rg}")
            a(f"v_mov_b32 v253, s{rg+1}")
            a(f"global_store_dwordx2 v250, v[252:253], s[{sTS1}:{sTS1+1}] offset:{(10+k)*8}")
            a("s_nop 1")
    a("s_endpgm")
    a.lab("L_qw")
    a.c("---------------- distributed q projection ----------------")
    a(f"s_lshr_b32 s{sT0}, s2, 7")
    a(f"s_mul_i32 s{sT0}, s{sT0}, 40")
    a(f"s_add_u32 s{sKA}, s0, s{sT0}")
    a(f"s_addc_u32 s{sKA+1}, s1, 0")
    a(f"s_load_dwordx2 s[{sP0}:{sP0+1}], s[{sKA}:{sKA+1}], 0    ; x")
    a(f"s_load_dwordx2 s[{sP0+2}:{sP0+3}], s[{sKA}:{sKA+1}], 24   ; wq")
    a(f"s_load_dwordx4 s[{sDBG}:{sDBG+3}], s[0:1], 88")
    a(f"s_sub_u32 s{sW1}, s{sWAVE}, 1")
    vN=2; vG=3; vS16=4; vXO=8; vWO=9; vX=10; vFL=14; vONE=15; vAO=16; vAC=24; vWq=40
    a(f"v_and_b32 v{vN}, 15, v0")
    a(f"v_lshrrev_b32 v{vG}, 4, v0")
    a(f"s_and_b32 s{sT0}, s2, 3")
    a(f"s_mul_i32 s{sT0}, s{sT0}, 112")
    a(f"s_lshl_b32 s{sT1}, s{sW1}, 4")
    a(f"s_add_u32 s{sT0}, s{sT0}, s{sT1}       ; row0")
    a(f"v_lshl_add_u32 v16, v{vG}, 2, s{sT0}    ; row0+4g")
    a(f"v_lshrrev_b32 v{vXO}, 2, v{vN}")
    a(f"v_mul_u32_u24 v{vXO}, 896, v{vXO}")
    a(f"v_lshl_add_u32 v{vXO}, v16, 1, v{vXO}")
    a(f"s_lshr_b32 s{sT1}, s2, 2")
    a(f"s_and_b32 s{sT1}, s{sT1}, 31")
    a(f"s_lshl_b32 s{sT1}, s{sT1}, 8")
    a(f"v_lshlrev_b32 v{vWO}, 13, v16")
    a(f"v_lshl_add_u32 v{vWO}, v{vN}, 4, v{vWO}")
    a(f"v_add_u32 v{vWO}, s{sT1}, v{vWO}")
    a(f"s_mov_b32 s56, 8192")
    a(f"s_mov_b32 s57, 16384")
    a(f"s_mov_b32 s58, 24576")
    a(f"v_mov_b32 v{vFL}, {MISC}")
    a(f"v_mov_b32 v{vONE}, 1")
    a("s_waitcnt lgkmcnt(0)")
    if not qfirst: a("s_barrier")
    a(f"s_load_dword s{sTAG}, s[{sWS}:{sWS+1}], {E_OFF}")
    a(f"s_mov_b32 s{sSRD1}, s{sP0+2}")
    a(f"s_mov_b32 s{sSRD1+1}, s{sP0+3}")
    a(f"s_mov_b32 s{sSRD1+2}, 3670016")
    a(f"s_mov_b32 s{sSRD1+3}, 0x20000")
    a(f"s_mov_b32 s{sSRD0}, s{sP0}")
    a(f"s_mov_b32 s{sSRD0+1}, s{sP0+1}")
    a(f"s_mov_b32 s{sSRD0+2}, 7168")
    a(f"s_mov_b32 s{sSRD0+3}, 0x20000")
    so=["0","s56","s57","s58"]
    for j in range(4):
        a(f"buffer_load_dwordx4 v[{vWq+4*j}:{vWq+4*j+3}], v{vWO}, s[{sSRD1}:{sSRD1+3}], {so[j]} offen {wqpol}")
    for u in range(2):
        a(f"buffer_load_dwordx2 v[{vX+2*u}:{vX+2*u+1}], v{vXO}, s[{sSRD0}:{sSRD0+3}], 0 offen offset:{u*3584}")
    if qfirst: a("s_barrier")
    a(f"v_and_b32 v16, 1, v{vN}")
    a(f"v_cmp_eq_u32 vcc, 1, v16")
    a(f"v_mov_b32 v17, 0x0c0c0100")
    a(f"v_mov_b32 v18, 0x01000c0c")
    a(f"v_cndmask_b32 v17, v17, v18, vcc")
    a(f"v_mov_b32 v18, 0x0c0c0302")
    a(f"v_mov_b32 v19, 0x03020c0c")
    a(f"v_cndmask_b32 v18, v18, v19, vcc")
    a(f"v_bfe_u32 v16, v{vN}, 1, 1")
    a(f"v_mov_b32 v19, 0x0c0c0c0c")
    for t in range(2):
        a(f"v_cmp_eq_u32 vcc, {t}, v16")
        a("s_nop 1")
        a(f"v_cndmask_b32 v{vS16+t}, v19, v17, vcc")
        a(f"v_cndmask_b32 v{vS16+2+t}, v19, v18, vcc")
    a(f"s_lshl_b32 s{sT0}, s{sW1}, 12")
    a(f"s_add_u32 s{sT0}, s{sT0}, {QPART}")
    a(f"v_lshlrev_b32 v56, 9, v{vG}")
    a(f"v_lshl_add_u32 v56, v{vN}, 5, v56")
    a(f"v_add_u32 v56, s{sT0}, v56")
    a("s_waitcnt vmcnt(0)")
    for j in range(4):
        for u in range(2):
            ao=vAO+4*(j&1)+2*u
            for t in range(2):
                a(f"v_perm_b32 v{ao+t}, v{vX+2*u+(j>>1)}, v{vX+2*u+(j>>1)}, v{vS16+2*(j&1)+t}")
        a("s_nop 0")
        for u in range(2):
            ao=vAO+4*(j&1)+2*u
            for hf in range(2):
                acc=vAC+8*u+4*hf
                cin="0" if j==0 else f"v[{acc}:{acc+3}]"
                a(f"v_mfma_f32_16x16x16_bf16 v[{acc}:{acc+3}], v[{ao}:{ao+1}], v[{vWq+4*j+2*hf}:{vWq+4*j+2*hf+1}], {cin}")
    ts(8)
    a("s_nop 7")
    a("s_nop 0")
    for u in range(2):
        for hf in range(2):
            acc=vAC+8*u+4*hf
            a(f"ds_write_b128 v56, v[{acc}:{acc+3}] offset:{u*2048+hf*16}")
    signal(vFL,CQ1,vONE)
    a(f"s_cmp_gt_u32 s{sWAVE}, 4")
    a("s_cbranch_scc0 L_qred")
    a("s_cmp_ge_u32 s2, 192")
    a("s_cbranch_scc1 L_hout")
    a("s_endpgm")
    a.lab("L_qred")
    vT=24
    a("v_lshrrev_b32 v16, 5, v0")
    a("v_and_b32 v17, 31, v0")
    a(f"s_lshl_b32 s{sT0}, s{sW1}, 1")
    a(f"v_add_u32 v16, s{sT0}, v16           ; batch")
    a(f"v_lshlrev_b32 v18, 9, v16")
    a(f"v_lshl_add_u32 v18, v17, 4, v18")
    a(f"v_add_u32 v18, {QPART}, v18")
    a(f"s_lshl_b32 s{sT0}, s2, 13")
    a(f"s_add_u32 s{sT0}, s{sT0}, {QP_OFF}")
    a(f"v_lshlrev_b32 v19, 10, v16")
    a(f"v_lshl_add_u32 v19, v17, 4, v19")
    a(f"v_add_u32 v19, s{sT0}, v19")
    spin_ge(vFL,CQ1,7,vT)
    for w in range(7):
        a(f"ds_read_b128 v[{40+4*w}:{43+4*w}], v18 offset:{w*4096}")
    a(f"s_add_u32 s{sTAG}, s{sTAG}, 0x9e3779b1")
    a(f"s_lshl_b32 s{sT0}, s{sW1}, 2")
    a(f"s_add_u32 s{sT0}, s{sT0}, {MISC+DONE}")
    a(f"v_mov_b32 v20, s{sT0}")
    a("s_waitcnt lgkmcnt(0)")
    a(f"ds_write_b32 v20, v{vONE}")
    for k in range(4):
        a(f"v_add_f32 v{40+k}, v{40+k}, v{44+k}")
        a(f"v_add_f32 v{48+k}, v{48+k}, v{52+k}")
        a(f"v_add_f32 v{56+k}, v{56+k}, v{60+k}")
    for k in range(4):
        a(f"v_add_f32 v{40+k}, v{40+k}, v{48+k}")
        a(f"v_add_f32 v{56+k}, v{56+k}, v{64+k}")
    for k in range(4):
        a(f"v_add_f32 v{68+2*k}, v{40+k}, v{56+k}")
        a(f"v_mov_b32 v{69+2*k}, s{sTAG}")
    a(f"global_store_dwordx4 v19, v[68:71], s[{sWS}:{sWS+1}] sc1")
    a(f"global_store_dwordx4 v19, v[72:75], s[{sWS}:{sWS+1}] offset:512 sc1")
    ts(9)
    a("s_cmp_ge_u32 s2, 192")
    a("s_cbranch_scc1 L_hout")
    a.c("---------------- consumers ----------------")
    attn_decode()
    vSEL=4
    a(f"v_and_b32 v16, 7, v{vN}")
    a(f"v_lshrrev_b32 v17, 1, v16      ; te")
    a(f"v_and_b32 v16, 1, v16          ; par")
    a(f"v_cmp_eq_u32 vcc, 1, v16")
    a(f"v_mov_b32 v18, 0x0c0c0100")
    a(f"v_mov_b32 v19, 0x01000c0c")
    a(f"v_cndmask_b32 v18, v18, v19, vcc")
    a(f"v_mov_b32 v19, 0x0c0c0302")
    a(f"v_mov_b32 v20, 0x03020c0c")
    a(f"v_cndmask_b32 v19, v19, v20, vcc")
    a(f"v_mov_b32 v20, 0x0c0c0c0c")
    for t in range(4):
        a(f"v_cmp_eq_u32 vcc, {t}, v17")
        a("s_nop 1")
        a(f"v_cndmask_b32 v{vSEL+t}, v20, v18, vcc")
        a(f"v_cndmask_b32 v{vSEL+4+t}, v20, v19, vcc")
    a(f"s_cmp_eq_u32 s{sISB}, 1")
    a("s_cbranch_scc0 L_qg")
    a(f"s_cmp_ge_u32 s{sW1}, 2")
    a("s_cbranch_scc1 L_qg_done")
    a.lab("L_qg")
    a(f"s_sub_u32 s{sT1}, 2, s{sISB}")
    a(f"s_lshl_b32 s{sT0}, s{sH}, s{sT1}")
    a(f"s_add_u32 s{sT0}, s{sT0}, s{sW1}      ; c")
    a(f"s_lshl_b32 s{sT1}, s{sISB}, 5")
    a(f"s_add_u32 s{sT0}, s{sT0}, s{sT1}      ; m*32+c")
    a(f"s_lshl_b32 s{sT0}, s{sT0}, 15         ; *4*8192")
    a(f"s_lshl_b32 s{sT1}, s{sB}, 10")
    a(f"s_add_u32 s{sT0}, s{sT0}, s{sT1}")
    a(f"s_add_u32 s{sT0}, s{sT0}, {QP_OFF}")
    a(f"v_lshlrev_b32 v16, 4, v0")
    a(f"v_add_u32 v16, s{sT0}, v16")
    for kq in range(1,4): a(f"v_add_u32 v{16+kq}, {kq*8192}, v16")
    PA=160; PB=176
    def issue(base):
        for kq in range(4):
            a(f"global_load_dwordx4 v[{base+4*kq}:{base+4*kq+3}], v{16+kq}, s[{sWS}:{sWS+1}] sc1")
    def check(base,lab):
        a(f"v_xor_b32 v20, s{sTAG}, v{base+1}")
        for r in (3,5,7,9,11,13,15):
            a(f"v_xor_b32 v21, s{sTAG}, v{base+r}")
            a(f"v_or_b32 v20, v20, v21")
        a("v_cmp_eq_u32 vcc, 0, v20")
        a("s_nop 1")
        a("s_cmp_eq_u64 vcc, -1")
        a(f"s_cbranch_scc1 {lab}")
    def qsum(base):
        a(f"v_add_f32 v32, v{base}, v{base+4}")
        a(f"v_add_f32 v34, v{base+2}, v{base+6}")
        a(f"v_add_f32 v40, v{base+8}, v{base+12}")
        a(f"v_add_f32 v42, v{base+10}, v{base+14}")
    if qwait: spin_ge(vFL,FULL,qwait,vT,signed=True)
    issue(PA)
    if qsleep: a(f"s_sleep {qsleep}")
    a.lab("L_qg_poll")
    issue(PB)
    a("s_waitcnt vmcnt(4)")
    check(PA,"L_qg_gotA")
    issue(PA)
    a("s_waitcnt vmcnt(4)")
    check(PB,"L_qg_gotB")
    bound()
    a("s_branch L_qg_poll")
    a.lab("L_qg_gotB")
    qsum(PB)
    a("s_branch L_qg_got")
    a.lab("L_qg_gotA")
    qsum(PA)
    a.lab("L_qg_got")
    a("v_add_f32 v32, v32, v40")
    a("v_add_f32 v34, v34, v42")
    a("v_cvt_pk_bf16_f32 v32, v32, v34")
    a("v_and_b32 v20, 31, v0")
    a("v_lshrrev_b32 v21, 5, v0")
    a("v_lshlrev_b32 v20, 3, v20")
    a("v_lshl_add_u32 v20, v21, 2, v20")
    a(f"s_lshl_b32 s{sT0}, s{sW1}, 8")
    a(f"s_add_u32 s{sT0}, s{sT0}, {MISC+QL}")
    a(f"v_add_u32 v20, s{sT0}, v20")
    a("ds_write_b32 v20, v32")
    a.lab("L_qg_done")
    ts(7)
    signal(vFL,CQ2,vONE)
    spin_ge(vFL,CQ2,4,vT)
    vQF=32
    a(f"s_cmp_eq_u32 s{sISB}, 1")
    a(f"s_cselect_b32 s{sT0}, 0, 512")
    a(f"v_lshrrev_b32 v25, 3, v{vN}       ; qh")
    a(f"v_mul_lo_u32 v26, v25, s{sT0}")
    a(f"v_lshl_add_u32 v26, v{vG}, 4, v26")
    a(f"v_add_u32 v26, {MISC+QL}, v26")
    for s in range(8):
        a(f"ds_read_b128 v[{vQF+4*s}:{vQF+4*s+3}], v26 offset:{s*64}")
    vKA=64; vKF=72; vS=104
    vMAX=108; vSA=109; vDN=110; vDV=111; vQH=112
    a(f"v_mov_b32 v{vQH}, v25")
    for s in range(4):
        a(f"v_and_b32 v26, 12, v{vN}")
        a(f"v_xor_b32 v26, {4*s}, v26")
        a(f"v_and_b32 v27, 3, v{vN}")
        a(f"v_xor_b32 v27, v27, v{vG}")
        a(f"v_add_u32 v26, v26, v27")
        a(f"v_lshlrev_b32 v26, 4, v26")
        a(f"v_lshl_add_u32 v{vKA+s}, v{vN}, 9, v26")
    a(f"s_lshl_b32 s{sT0}, s{sW1}, 12")
    a(f"s_add_u32 s{sT0}, s{sT0}, {SBUF}")
    a(f"v_lshlrev_b32 v{vSA}, 5, v{vQH}")
    a(f"v_lshl_add_u32 v{vSA}, v{vG}, 3, v{vSA}")
    a(f"v_add_u32 v{vSA}, s{sT0}, v{vSA}")
    a(f"v_mov_b32 v{vMAX}, 0xff800000")
    a(f"s_lshl_b32 s{sT0}, s{sW1}, 2")
    a(f"s_add_u32 s{sT0}, s{sT0}, {MISC+DONE}")
    a(f"v_mov_b32 v{vDN}, s{sT0}")
    sTT=48; sFU=49; sSLO=50; sJ1=51; sMASK=52; sC=55
    a(f"s_mov_b32 s{sTT}, s{sW1}")
    a(f"s_mov_b32 s{sFU}, 0")
    a(f"s_lshl_b32 s{sSLO}, s{sW1}, 13")
    a(f"s_mov_b32 s{sJ1}, 2")
    a(f"s_mov_b32 s{sMASK}, 0x01010101")
    a(f"s_mov_b32 s{sMASK+1}, 0x01010101")
    a(f"v_mov_b32 v26, {DNORM}")
    a(f"ds_write_b32 v{vFL}, v26 offset:{DLEV}")
    a("s_waitcnt lgkmcnt(0)")
    ts(3)
    PR_OFF=0x38000
    vPA=200; vPS=201; vPD=202; vSM=204
    if fb:
        a(f"s_lshl_b32 s{sT0}, s2, 3")
        a(f"s_add_u32 s{sT0}, s{sT0}, {PR_OFF}")
        a(f"v_mov_b32 v{vPA}, s{sT0}")
        a(f"v_mul_u32_u24 v{vPS}, 3, v0")
        a(f"v_add_u32 v{vPS}, s2, v{vPS}")
        a(f"v_subrev_u32 v26, 192, v{vPS}")
        a(f"v_cmp_gt_u32 vcc, 192, v{vPS}")
        a(f"v_mov_b32 v{vPD+1}, s{sTAG}")
        a(f"v_not_b32 v{vSM+1}, v{vPD+1}")
        a(f"v_cndmask_b32 v{vPS}, v26, v{vPS}, vcc")
        a(f"v_lshlrev_b32 v{vPS}, 3, v{vPS}")
        a(f"v_add_u32 v{vPS}, {PR_OFF}, v{vPS}")
    def feedback(tag):
        if not fb: return
        Ls=f"L_fb_skip{tag}"; Li=f"L_fb_issue{tag}"
        a(f"s_cmp_lg_u32 s{sW1}, 0")
        a(f"s_cbranch_scc1 {Ls}")
        a(f"v_mov_b32 v{vPD}, s{sTT}")
        a("s_mov_b64 exec, 1")
        a(f"global_store_dwordx2 v{vPA}, v[{vPD}:{vPD+1}], s[{sWS}:{sWS+1}] sc1")
        a("s_mov_b64 exec, -1")
        a(f"s_and_b32 s56, s{sJ1}, {fbp-1}")
        a(f"s_cmp_lg_u32 s56, 0")
        a(f"s_cbranch_scc1 {Ls}")
        a("s_waitcnt vmcnt(1)")
        a(f"v_readfirstlane_b32 s62, v{vSM}")
        a(f"v_cmp_eq_u32 s[56:57], s{sTAG}, v{vSM+1}")
        a("s_nop 0")
        a(f"v_cmp_lt_i32 s[58:59], v{vSM}, s62")
        a(f"v_cmp_gt_i32 s[60:61], v{vSM}, s62")
        a(f"s_bitcmp1_b64 s[56:57], 0")
        a(f"s_cbranch_scc0 {Li}")
        a(f"s_and_b64 s[58:59], s[58:59], s[56:57]")
        a(f"s_and_b64 s[60:61], s[60:61], s[56:57]")
        a(f"s_bcnt1_i32_b64 s62, s[58:59]")
        a(f"s_bcnt1_i32_b64 s63, s[60:61]")
        a(f"s_sub_i32 s62, s62, s63")
        a(f"s_mov_b32 s63, {DNORM}")
        a(f"s_cmp_gt_i32 s62, {th1}")
        a(f"s_cselect_b32 s63, {DNORM-dstep}, s63")
        a(f"s_cmp_gt_i32 s62, {th2}")
        a(f"s_cselect_b32 s63, {DNORM-2*dstep}, s63")
        a(f"s_cmp_lt_i32 s62, {-th1}")
        a(f"s_cselect_b32 s63, {DNORM+dstep}, s63")
        a(f"s_cmp_lt_i32 s62, {-th2}")
        a(f"s_cselect_b32 s63, {DNORM+2*dstep}, s63")
        a(f"v_mov_b32 v{vPD}, s63")
        a(f"ds_write_b32 v{vFL}, v{vPD} offset:{DLEV}")
        a.lab(Li)
        a(f"global_load_dwordx2 v[{vSM}:{vSM+1}], v{vPS}, s[{sWS}:{sWS+1}] sc1")
        a.lab(Ls)
    def wait_full(tag):
        Lg=f"L_{tag}_go"; Ls=f"L_{tag}_spin"
        a(f"s_cmp_gt_i32 s{sFU}, s{sTT}")
        a(f"s_cbranch_scc1 {Lg}")
        a.lab(Ls)
        a(f"ds_read_b32 v{vT}, v{vFL} offset:{FULL}")
        a("s_waitcnt lgkmcnt(0)")
        a(f"v_readfirstlane_b32 s{sFU}, v{vT}")
        a(f"s_cmp_gt_i32 s{sFU}, s{sTT}")
        a(f"s_cbranch_scc1 {Lg}")
        bound()
        if spin_sleep: a(f"s_sleep {spin_sleep}")
        a(f"s_branch {Ls}")
        a.lab(Lg)
    def advance():
        a(f"s_add_u32 s{sTT}, s{sTT}, 4")
        a(f"s_add_u32 s{sSLO}, s{sSLO}, {4*8192}")
        a(f"s_cmp_ge_u32 s{sSLO}, {RINGB}")
        a(f"s_cselect_b32 s{sT0}, {RINGB}, 0")
        a(f"s_sub_u32 s{sSLO}, s{sSLO}, s{sT0}")
        a(f"s_add_u32 s{sJ1}, s{sJ1}, 1")
    a.lab("L_K")
    wait_full("K")
    for s in range(4): a(f"v_add_u32 v{vKA+4+s}, s{sSLO}, v{vKA+s}")
    for s in range(8):
        a(f"ds_read_b128 v[{vKF+4*s}:{vKF+4*s+3}], v{vKA+4+(s&3)} offset:{RING+(s>>2)*256}")
    a(f"v_mov_b32 v{vDV}, s{sJ1}")
    for s in range(8):
        a(f"s_waitcnt lgkmcnt({7-s})")
        if s==7: a(f"ds_write_b32 v{vDN}, v{vDV}")
        cin="0" if s==0 else f"v[{vS}:{vS+3}]"
        a(f"v_mfma_f32_16x16x32_bf16 v[{vS}:{vS+3}], v[{vKF+4*s}:{vKF+4*s+3}], v[{vQF+4*s}:{vQF+4*s+3}], {cin}")
    advance()
    a("s_nop 3")
    a(f"v_max3_f32 v{vMAX}, v{vMAX}, v{vS}, v{vS+1}")
    a(f"v_max3_f32 v{vMAX}, v{vMAX}, v{vS+2}, v{vS+3}")
    a(f"v_cvt_pk_bf16_f32 v{vS}, v{vS}, v{vS+1}")
    a(f"v_cvt_pk_bf16_f32 v{vS+1}, v{vS+2}, v{vS+3}")
    a(f"s_mov_b64 exec, s[{sMASK}:{sMASK+1}]")
    a(f"ds_write_b64 v{vSA}, v[{vS}:{vS+1}]")
    a("s_mov_b64 exec, -1")
    a(f"v_add_u32 v{vSA}, 64, v{vSA}")
    feedback("K")
    a(f"s_cmp_lt_u32 s{sTT}, 256")
    a("s_cbranch_scc1 L_K")
    ts(4)
    a(f"s_lshl_b32 s{sT0}, s{sW1}, 4")
    a(f"s_add_u32 s{sT0}, s{sT0}, {MISC+MX}")
    a(f"v_lshlrev_b32 v26, 6, v{vQH}")
    a(f"v_lshl_add_u32 v27, v{vG}, 2, v26")
    a(f"v_add_u32 v27, s{sT0}, v27")
    a(f"s_mov_b64 exec, s[{sMASK}:{sMASK+1}]")
    a(f"ds_write_b32 v27, v{vMAX}")
    a("s_mov_b64 exec, -1")
    signal(vFL,CMX,vONE)
    spin_ge(vFL,CMX,4,vT)
    a(f"v_add_u32 v26, {MISC+MX}, v26")
    for k in range(4): a(f"ds_read_b128 v[{72+4*k}:{75+4*k}], v26 offset:{k*16}")
    a(f"v_subrev_u32 v{vSA}, {64*64}, v{vSA}")
    a("s_waitcnt lgkmcnt(0)")
    a("v_max3_f32 v72, v72, v73, v74")
    for k in range(75,87,2): a(f"v_max3_f32 v72, v72, v{k}, v{k+1}")
    a("v_max_f32 v72, v72, v87")
    vNM=113; vL=114; vVA=115; vVC=116; vW=118
    a(f"s_mov_b32 s{sC}, {CEXP:#x}")
    a(f"v_mul_f32 v{vNM}, s{sC}, v72")
    a(f"v_sub_f32 v{vNM}, 0, v{vNM}")
    a(f"v_mov_b32 v{vL}, 0")
    a(f"v_lshlrev_b32 v{vVA}, 11, v{vG}")
    a(f"v_lshl_add_u32 v{vVA}, v{vN}, 4, v{vVA}")
    vO=120
    for k in range(8): a(f"v_mov_b32 v{vO+k}, 0")
    vVF=72; vP=104; vAP=128
    a.lab("L_V")
    a(f"ds_read_b64 v[{vW}:{vW+1}], v{vSA}")
    wait_full("V")
    a(f"v_add_u32 v{vVC}, s{sSLO}, v{vVA}")
    for r in range(4):
        for h in range(2):
            b=vVF+4*(2*r+h)
            a(f"ds_read_b128 v[{b}:{b+3}], v{vVC} offset:{RING+r*512+h*256}")
    a("s_waitcnt lgkmcnt(8)")
    a(f"v_lshlrev_b32 v{vP}, 16, v{vW}")
    a(f"v_and_b32 v{vP+1}, 0xffff0000, v{vW}")
    a(f"v_lshlrev_b32 v{vP+2}, 16, v{vW+1}")
    a(f"v_and_b32 v{vP+3}, 0xffff0000, v{vW+1}")
    for r in range(4): a(f"v_fma_f32 v{vP+r}, v{vP+r}, s{sC}, v{vNM}")
    for r in range(4): a(f"v_exp_f32 v{vP+r}, v{vP+r}")
    a(f"v_add_u32 v{vSA}, 64, v{vSA}")
    a(f"v_cvt_pk_bf16_f32 v{vW}, v{vP}, v{vP+1}")
    a(f"v_cvt_pk_bf16_f32 v{vW+1}, v{vP+2}, v{vP+3}")
    a(f"v_add_f32 v{vP}, v{vP}, v{vP+1}")
    a(f"v_add_f32 v{vP+2}, v{vP+2}, v{vP+3}")
    a(f"v_add_f32 v{vL}, v{vL}, v{vP}")
    a(f"v_add_f32 v{vL}, v{vL}, v{vP+2}")
    for r in range(4):
        for t in range(4):
            a(f"v_perm_b32 v{vAP+4*r+t}, v{vW+(r>>1)}, v{vW+(r>>1)}, v{vSEL+4*(r&1)+t}")
    a(f"v_mov_b32 v{vDV}, s{sJ1}")
    a("s_waitcnt lgkmcnt(0)")
    a(f"ds_write_b32 v{vDN}, v{vDV}")
    for r in range(4):
        for h in range(2):
            b=vVF+4*(2*r+h)
            a(f"v_mfma_f32_16x16x32_bf16 v[{vO+4*h}:{vO+4*h+3}], v[{vAP+4*r}:{vAP+4*r+3}], v[{b}:{b+3}], v[{vO+4*h}:{vO+4*h+3}]")
    advance()
    feedback("V")
    a(f"s_cmp_lt_u32 s{sTT}, 512")
    a("s_cbranch_scc1 L_V")
    ts(5)
    a(f"s_lshl_b32 s{sT0}, s{sW1}, 12")
    a(f"s_add_u32 s{sT0}, s{sT0}, {SBUF}")
    a(f"v_lshrrev_b32 v26, 1, v{vG}")
    a(f"v_lshlrev_b32 v26, 10, v26")
    a(f"v_and_b32 v27, 1, v{vG}")
    a(f"v_lshl_add_u32 v26, v27, 4, v26")
    a(f"v_lshl_add_u32 v26, v{vN}, 5, v26")
    a(f"v_add_u32 v26, s{sT0}, v26")
    a(f"s_lshl_b32 s{sT0}, s{sW1}, 4")
    a(f"s_add_u32 s{sT0}, s{sT0}, {MISC+LS}")
    a(f"v_lshlrev_b32 v27, 6, v{vQH}")
    a(f"v_lshl_add_u32 v27, v{vG}, 2, v27")
    a(f"v_add_u32 v27, s{sT0}, v27")
    a("s_nop 1")
    a(f"ds_write_b128 v26, v[{vO}:{vO+3}]")
    a(f"ds_write_b128 v26, v[{vO+4}:{vO+7}] offset:512")
    a(f"s_mov_b64 exec, s[{sMASK}:{sMASK+1}]")
    a(f"ds_write_b32 v27, v{vL}")
    a("s_mov_b64 exec, -1")
    a("s_waitcnt lgkmcnt(0)")
    a("s_mov_b64 exec, 1")
    a(f"ds_add_rtn_u32 v{vT}, v{vFL}, v{vONE} offset:{CFIN}")
    a("s_mov_b64 exec, -1")
    a("s_waitcnt lgkmcnt(0)")
    a(f"v_readfirstlane_b32 s{sT0}, v{vT}")
    a(f"s_cmp_eq_u32 s{sT0}, 3")
    a("s_cbranch_scc0 L_end")
    a("v_lshrrev_b32 v25, 5, v0")
    a("v_and_b32 v28, 31, v0")
    a("v_lshlrev_b32 v26, 10, v25")
    a("v_lshl_add_u32 v26, v28, 5, v26")
    a(f"v_add_u32 v26, {SBUF}, v26")
    for w in range(4):
        a(f"ds_read_b128 v[{32+8*w}:{35+8*w}], v26 offset:{w*4096}")
        a(f"ds_read_b128 v[{36+8*w}:{39+8*w}], v26 offset:{w*4096+16}")
    a("v_lshlrev_b32 v27, 6, v25")
    a(f"v_add_u32 v27, {MISC+LS}, v27")
    for k in range(4): a(f"ds_read_b128 v[{64+4*k}:{67+4*k}], v27 offset:{k*16}")
    a(f"s_lshl_b32 s{sT0}, s{sISB}, 16")
    a(f"s_lshl_b32 s{sT1}, s{sB}, 13")
    a(f"s_add_u32 s{sT0}, s{sT0}, s{sT1}")
    a(f"s_sub_u32 s{sT1}, 10, s{sISB}")
    a(f"s_lshl_b32 s{sT1}, s{sH}, s{sT1}")
    a(f"s_add_u32 s{sT0}, s{sT0}, s{sT1}")
    a(f"s_add_u32 s{sT0}, s{sT0}, {O_OFF}")
    a(f"v_lshlrev_b32 v29, 4, v0")
    a(f"v_add_u32 v29, s{sT0}, v29")
    a("s_waitcnt lgkmcnt(0)")
    for k in range(8):
        a(f"v_add_f32 v{32+k}, v{32+k}, v{40+k}")
        a(f"v_add_f32 v{48+k}, v{48+k}, v{56+k}")
    for k in range(8): a(f"v_add_f32 v{32+k}, v{32+k}, v{48+k}")
    for k in range(8): a(f"v_add_f32 v{64+k}, v{64+k}, v{72+k}")
    for k in range(4): a(f"v_add_f32 v{64+k}, v{64+k}, v{68+k}")
    a("v_add_f32 v64, v64, v65")
    a("v_add_f32 v66, v66, v67")
    a("v_add_f32 v64, v64, v66")
    a("v_rcp_f32 v64, v64")
    a("s_nop 0")
    for k in range(8): a(f"v_mul_f32 v{32+k}, v{32+k}, v64")
    for k in range(4): a(f"v_cvt_pk_bf16_f32 v{32+k}, v{32+2*k}, v{33+2*k}")
    a(f"s_cmp_eq_u32 s{sISB}, 1")
    a(f"s_cselect_b32 exec_hi, 0, -1")
    a(f"global_store_dwordx4 v29, v[32:35], s[{sWS}:{sWS+1}] sc1")
    a(f"s_lshl_b32 s{sT0}, s{sISB}, 7")
    a(f"s_lshl_b32 s{sT1}, s{sH}, 2")
    a(f"s_add_u32 s{sT0}, s{sT0}, s{sT1}")
    a(f"v_mov_b32 v29, s{sT0}")
    a("s_waitcnt vmcnt(0)")
    a("s_mov_b64 exec, 1")
    a(f"global_atomic_add v29, v{vONE}, s[{sDBG}:{sDBG+1}] sc1")
    ts(6)
    ts_dump([3,4,5,6,7,8,9])
    a("s_endpgm")
    a.lab("L_h0")
    a.c("helper wave 0: flag init, pointers")
    a(f"s_load_dwordx4 s[{sDBG}:{sDBG+3}], s[0:1], 88")
    zero_flags(2,3)
    a("s_waitcnt lgkmcnt(0)")
    a("s_barrier")
    a.lab("L_hout")
    a.c("---------------- helpers: out projection ----------------")
    sHJ=54
    vN=2; vG=3
    a(f"s_sub_u32 s{sHJ}, s2, 192")
    a(f"s_and_b32 s{sX}, s{sHJ}, 7")
    a(f"s_lshr_b32 s{sT1}, s{sHJ}, 3")
    a(f"s_and_b32 s{sSLOT}, s{sT1}, 3     ; sub")
    a(f"s_lshr_b32 s{sT1}, s{sHJ}, 5      ; hi")
    a(f"s_lshl_b32 s{sT1}, s{sT1}, 3")
    a(f"s_add_u32 s{sGRP}, s{sT1}, s{sX}   ; gamma")
    a(f"s_cmp_ge_u32 s{sGRP}, 14")
    a("s_cbranch_scc1 L_h_idle")
    a(f"s_cmp_ge_u32 s{sGRP}, 7")
    a(f"s_cselect_b32 s{sISB}, 1, 0")
    a(f"s_cselect_b32 s{sT0}, 40, 0")
    a(f"s_cselect_b32 s{sT1}, 7, 0")
    a(f"s_add_u32 s{sKA}, s0, s{sT0}")
    a(f"s_addc_u32 s{sKA+1}, s1, 0")
    a(f"s_sub_u32 s{sGRP}, s{sGRP}, s{sT1}")
    a(f"s_lshl_b32 s{sH}, s{sGRP}, 2")
    a(f"s_add_u32 s{sH}, s{sH}, s{sSLOT}")
    a(f"s_load_dwordx2 s[{sP0}:{sP0+1}], s[{sKA}:{sKA+1}], 32   ; wo")
    a(f"s_load_dwordx2 s[{sOUT}:{sOUT+1}], s[0:1], 80")
    a(f"v_and_b32 v{vN}, 15, v0")
    a(f"v_lshrrev_b32 v{vG}, 4, v0")
    a(f"s_mul_i32 s{sT0}, s{sWAVE}, {512*896}")
    a(f"s_lshl_b32 s{sT1}, s{sH}, 5")
    a(f"s_add_u32 s{sT0}, s{sT0}, s{sT1}")
    a(f"v_mul_u32_u24 v4, {8*896}, v{vG}")
    a(f"v_lshl_add_u32 v4, v{vN}, 1, v4")
    a(f"v_add_u32 v4, s{sT0}, v4")
    a(f"v_add_u32 v5, {4*896}, v4")
    a("s_waitcnt lgkmcnt(0)")
    a(f"s_mov_b32 s{sSRD0}, s{sP0}")
    a(f"s_mov_b32 s{sSRD0+1}, s{sP0+1}")
    a(f"s_mov_b32 s{sSRD0+2}, 3670016")
    a(f"s_mov_b32 s{sSRD0+3}, 0x20000")
    vWT=64; vTMP=128
    for ch in range(4 if not nowo else 0):
        for si in range(4):
            s_=ch*4+si
            a(f"s_mov_b32 s{sT0}, {s_*32*896}")
            for e in range(8):
                a(f"buffer_load_ushort v{vTMP+si*8+e}, v{4+(e>>2)}, s[{sSRD0}:{sSRD0+3}], s{sT0} offen offset:{(e&3)*896} {wopol}")
        a("s_waitcnt vmcnt(0)")
        for si in range(4):
            s_=ch*4+si
            for q in range(4):
                a(f"v_lshl_or_b32 v{vWT+4*s_+q}, v{vTMP+si*8+2*q+1}, 16, v{vTMP+si*8+2*q}")
    a(f"s_lshl_b32 s{sT0}, s{sISB}, 16")
    a(f"s_add_u32 s{sT0}, s{sT0}, {O_OFF}")
    a(f"s_add_u32 s{sSRD1}, s{sWS}, s{sT0}")
    a(f"s_addc_u32 s{sSRD1+1}, s{sWS+1}, 0")
    a(f"s_mov_b32 s{sSRD1+2}, 65536")
    a(f"s_mov_b32 s{sSRD1+3}, 0x20000")
    sJ=58
    a(f"s_lshl_b32 s{sT0}, s{sWAVE}, 10")
    a(f"v_lshlrev_b32 v6, 4, v0")
    a(f"v_add_u32 v6, s{sT0}, v6")
    for b in range(8): a(f"s_mov_b32 s{sJ+b}, {b*8192}")
    OST=32768
    a(f"s_mul_i32 s{sT0}, s{sWAVE}, 8448")
    a(f"s_add_u32 s{sT0}, s{sT0}, {OST}")
    a(f"v_lshlrev_b32 v9, 4, v0")
    a(f"v_add_u32 v9, s{sT0}, v9")
    a(f"v_and_b32 v10, 7, v{vN}")
    a(f"v_mul_u32_u24 v10, 1056, v10")
    a(f"v_lshl_add_u32 v10, v{vG}, 4, v10")
    a(f"v_add_u32 v10, s{sT0}, v10")
    ts(0)
    a(f"s_cmp_lg_u32 s{sWAVE}, 0")
    a("s_cbranch_scc1 L_h_wait")
    a(f"s_lshl_b32 s{sT0}, s{sISB}, 3")
    a(f"s_add_u32 s{sT0}, s{sT0}, 7")
    a(f"v_and_b32 v7, s{sT0}, v0")
    a(f"v_lshlrev_b32 v7, 2, v7")
    a(f"s_lshl_b32 s{sT0}, s{sISB}, 7")
    a(f"v_add_u32 v7, s{sT0}, v7")
    a.lab("L_h_poll")
    a(f"global_load_dword v8, v7, s[{sDBG}:{sDBG+1}] sc1")
    a("s_waitcnt vmcnt(0)")
    a("v_cmp_le_u32 vcc, 8, v8")
    a("s_nop 1")
    a("s_cmp_eq_u64 vcc, -1")
    a("s_cbranch_scc1 L_h_wait")
    bound()
    a(f"s_sleep {hsleep}")
    a("s_branch L_h_poll")
    a.lab("L_h_wait")
    a("s_barrier")
    ts(1)
    vOF=128
    for b in range(8):
        a(f"buffer_load_dwordx4 v[{vOF+4*b}:{vOF+4*b+3}], v6, s[{sSRD1}:{sSRD1+3}], s{sJ+b} offen sc1")
    for b in range(8):
        a(f"s_waitcnt vmcnt({7-b})")
        a(f"ds_write_b128 v9, v[{vOF+4*b}:{vOF+4*b+3}] offset:{b*1056}")
    vFR=160
    a("s_waitcnt lgkmcnt(0)")
    for s_ in range(16):
        a(f"ds_read_b128 v[{vFR+4*s_}:{vFR+4*s_+3}], v10 offset:{s_*64}")
    vAC=12
    for s_ in range(16):
        a(f"s_waitcnt lgkmcnt({15-s_})")
        cin="0" if s_==0 else f"v[{vAC}:{vAC+3}]"
        a(f"v_mfma_f32_16x16x32_bf16 v[{vAC}:{vAC+3}], v[{vFR+4*s_}:{vFR+4*s_+3}], v[{vWT+4*s_}:{vWT+4*s_+3}], {cin}")
    ts(2)
    a(f"s_lshl_b32 s{sT0}, s{sWAVE}, 9")
    a(f"v_lshlrev_b32 v11, 8, v{vG}")
    a(f"v_lshl_add_u32 v11, v{vN}, 2, v11")
    a(f"v_add_u32 v11, s{sT0}, v11")
    a("s_nop 4")
    a("s_mov_b32 exec_hi, 0")
    for r in range(4): a(f"ds_write_b32 v11, v{vAC+r} offset:{r*64}")
    a("s_mov_b64 exec, -1")
    a("s_waitcnt lgkmcnt(0)")
    a("s_barrier")
    a(f"s_cmp_lg_u32 s{sWAVE}, 0")
    a("s_cbranch_scc1 L_end")
    ts(3)
    a("v_lshrrev_b32 v12, 3, v0")
    a("v_and_b32 v13, 7, v0")
    a("v_lshlrev_b32 v14, 6, v12")
    a("v_lshl_add_u32 v14, v13, 3, v14")
    for w in range(8): a(f"ds_read_b64 v[{16+2*w}:{17+2*w}], v14 offset:{w*512}")
    a(f"s_mul_i32 s{sT0}, s{sISB}, 896")
    a(f"s_lshl_b32 s{sT1}, s{sH}, 5")
    a(f"s_add_u32 s{sT0}, s{sT0}, s{sT1}")
    a(f"v_mul_u32_u24 v15, 1792, v12")
    a(f"v_lshl_add_u32 v15, v13, 2, v15")
    a(f"v_add_u32 v15, s{sT0}, v15")
    a(f"s_mov_b32 s{sSRD0}, s{sOUT}")
    a(f"s_mov_b32 s{sSRD0+1}, s{sOUT+1}")
    a(f"s_mov_b32 s{sSRD0+2}, 14336")
    a(f"s_mov_b32 s{sSRD0+3}, 0x20000")
    a("s_waitcnt lgkmcnt(0)")
    for w in range(1,8):
        a(f"v_add_f32 v16, v16, v{16+2*w}")
        a(f"v_add_f32 v17, v17, v{17+2*w}")
    a("v_cvt_pk_bf16_f32 v16, v16, v17")
    a(f"buffer_store_dword v16, v15, s[{sSRD0}:{sSRD0+3}], 0 offen")
    ts(4)
    ts_dump([0,1,2,3,4])
    a("s_endpgm")
    a.lab("L_h_idle")
    a(f"s_cmp_lg_u32 s2, 230")
    a("s_cbranch_scc1 L_end")
    a(f"s_cmp_lg_u32 s{sWAVE}, 0")
    a("s_cbranch_scc1 L_end")
    a(f"s_load_dword s{sTAG}, s[{sWS}:{sWS+1}], {E_OFF}")
    a("v_cmp_gt_u32 vcc, 8, v0")
    a("v_lshlrev_b32 v4, 2, v0")
    a("v_add_u32 v5, 96, v4          ; 128 + (lane-8)*4")
    a("v_cndmask_b32 v4, v5, v4, vcc")
    a("v_cmp_gt_u32 vcc, 24, v0")
    a("v_mov_b32 v5, 0")
    a("s_nop 0")
    a("v_cndmask_b32 v4, v5, v4, vcc")
    a("s_waitcnt lgkmcnt(0)")
    a(f"s_add_u32 s{sTAG}, s{sTAG}, 0x9e3779b1")
    a.lab("L_e_poll")
    a(f"global_load_dword v8, v4, s[{sDBG}:{sDBG+1}] sc1")
    a("s_waitcnt vmcnt(0)")
    a("v_cmp_le_u32 vcc, 8, v8")
    a("s_nop 1")
    a("s_cmp_eq_u64 vcc, -1")
    a("s_cbranch_scc1 L_e_done")
    bound()
    a("s_sleep 32")
    a("s_branch L_e_poll")
    a.lab("L_e_done")
    a(f"v_mov_b32 v4, {E_OFF}")
    a(f"v_mov_b32 v5, s{sTAG}")
    a("s_mov_b64 exec, 1")
    a(f"global_store_dword v4, v5, s[{sWS}:{sWS+1}]")
    a.lab("L_end")
    a("s_endpgm")
    body=a.text()
    hdr=open("cdna_kernels/"+NAME+".s.ref").read().split("\n")
    head=[l for l in hdr if l.startswith(";") and "@launch" not in l and "Override launch" not in l and "grid=ceil" not in l]
    out="\n".join(head)+"\n"
    out+=f"; @launch grid=(256,1,1) block=(512,1,1) lds={LDS}\n"
    out+=f""".amdgcn_target "amdgcn-amd-amdhsa--gfx950"
.text
.globl {KN}
.p2align 8
.type {KN},@function
"""
    out+=body
    out+=f""".section .rodata,"a"
.p2align 6
.amdhsa_kernel {KN}
  .amdhsa_next_free_vgpr 256
  .amdhsa_next_free_sgpr 96
  .amdhsa_accum_offset 256
  .amdhsa_group_segment_fixed_size 0
  .amdhsa_kernarg_size 104
  .amdhsa_user_sgpr_count 2
  .amdhsa_user_sgpr_kernarg_segment_ptr 1
  .amdhsa_system_sgpr_workgroup_id_x 1
.end_amdhsa_kernel
"""
    return out, LDS

META=""".amdgpu_metadata
---
amdhsa.version: [1, 2]
amdhsa.kernels:
  - .name: {KN}
    .symbol: {KN}.kd
    .kernarg_segment_size: 104
    .kernarg_segment_align: 8
    .group_segment_fixed_size: 0
    .private_segment_fixed_size: 0
    .wavefront_size: 64
    .sgpr_count: 102
    .vgpr_count: 256
    .max_flat_workgroup_size: 512
    .args:
      - {{.name: kernargs, .size: 104, .offset: 0, .value_kind: by_value}}
...
.end_amdgpu_metadata
"""
if __name__=="__main__":
    import argparse
    ap=argparse.ArgumentParser()
    ap.add_argument("-o",default="cdna_kernels/"+NAME+".s")
    ap.add_argument("--diag",action="store_true")
    ap.add_argument("--meta",action="store_true")
    ap.add_argument("--D",type=int,default=40)
    ap.add_argument("--NS",type=int,default=17)
    ap.add_argument("--qwait",type=int,default=0)
    ap.add_argument("--nowo",type=int,default=0)
    ap.add_argument("--DINIT",type=int,default=24)
    ap.add_argument("--DNORM",type=int,default=40)
    ap.add_argument("--fb",type=int,default=1)
    ap.add_argument("--fbp",type=int,default=4)
    ap.add_argument("--th1",type=int,default=16)
    ap.add_argument("--th2",type=int,default=40)
    ap.add_argument("--dstep",type=int,default=4)
    ap.add_argument("--pol",default="nt")
    ap.add_argument("--wqpol",default="nt")
    ap.add_argument("--wopol",default="nt")
    ap.add_argument("--hsleep",type=int,default=8)
    ap.add_argument("--qsleep",type=int,default=9)
    ap.add_argument("--qfirst",type=int,default=1)
    args=ap.parse_args()
    s,lds=gen(D=args.D,NS=args.NS,diag=args.diag,pol=args.pol,wqpol=args.wqpol,wopol=args.wopol,hsleep=args.hsleep,qsleep=args.qsleep,qfirst=bool(args.qfirst),qwait=args.qwait,nowo=bool(args.nowo),DINIT=args.DINIT,DNORM=args.DNORM,fb=bool(args.fb),fbp=args.fbp,th1=args.th1,th2=args.th2,dstep=args.dstep)
    if args.meta: s+=META.format(KN=KN)
    open(args.o,"w").write(s)
    print("wrote",args.o,"lds",lds)
```

```python
import sys, struct
NAME="concat_heads__gqa_block_cached__mha_block_cached__decode"
KN=NAME+"_kernel"

class Asm:
    def __init__(s): s.L=[]; s.uid=0
    def __call__(s,x): s.L.append("  "+x)
    def lab(s,x): s.L.append(x+":")
    def c(s,x): s.L.append("  ; "+x)
    def new(s,p): s.uid+=1; return f"L_{p}_{s.uid}"
    def text(s): return "\n".join(s.L)+"\n"

def gen(D=40, NS=17, diag=False, pol="nt", spin_sleep=1, wqpol="nt", wopol="nt", hsleep=8, qsleep=16, qfirst=True, qwait=0, nowo=False, DINIT=24, DNORM=40, fb=True, fbp=4, th1=16, th2=40, dstep=4, dbgts=False):
    a=Asm()
    DLIST=[DNORM-2*dstep,DNORM-dstep,DNORM,DNORM+dstep,DNORM+2*dstep] if fb else [DNORM]
    RING=0; RINGB=NS*8192
    SBUF=RINGB
    MISC=SBUF+16384
    QPART=(NS-4)*8192
    FULL=0; DONE=16; CQ1=32; CQ2=36; CMX=40; CFIN=44; DLEV=48
    QL=256; MX=1280; LS=1408
    LDS=MISC+2048
    assert LDS<=163840
    CEXP=struct.unpack("<I",struct.pack("<f",1.4426950408889634/16.0))[0]
    O_OFF=0
    E_OFF=0x30004
    QP_OFF=0x100000
    TS_OFF=0x20000000
    sWAVE=3; sX=4; sSLOT=5; sB=6; sGRP=7; sKA=8
    sPAIR=10; sH=11; sISB=12; sT0=13; sT1=14; sT2=15
    sP0=16
    sDBG=20
    sWS=22
    sOUT=24
    sTAG=26
    sSRD0=28; sSRD1=32
    sTS1=42
    sW1=54
    sSP=72
    sTSB=76
    def ts(slot):
        if not diag: return
        a(f"s_memrealtime s[{sTSB+2*slot}:{sTSB+2*slot+1}]")
        a("s_waitcnt lgkmcnt(0)")
    def ts_dump(slots):
        if not diag: return
        a(f"s_load_dwordx2 s[{sTS1}:{sTS1+1}], s[0:1], 96")
        a("s_waitcnt lgkmcnt(0)")
        a(f"s_add_u32 s{sTS1}, s{sTS1}, {TS_OFF}")
        a(f"s_addc_u32 s{sTS1+1}, s{sTS1+1}, 0")
        a(f"s_lshl_b32 s44, s2, 7")
        a(f"v_mov_b32 v250, s44")
        a(f"s_mov_b64 exec, 1")
        for slot in slots:
            a(f"v_mov_b32 v252, s{sTSB+2*slot}")
            a(f"v_mov_b32 v253, s{sTSB+2*slot+1}")
            a(f"global_store_dwordx2 v250, v[252:253], s[{sTS1}:{sTS1+1}] offset:{slot*8}")
            a("s_nop 1")
    def dstamp(slot, inv=False, mask=0):
        if not dbgts: return
        Lsk=a.new("dsk")
        if mask:
            a(f"s_and_b32 s44, s2, {mask}")
            a(f"s_cmp_lg_u32 s44, 0")
            a(f"s_cbranch_scc1 {Lsk}")
        a("s_load_dwordx2 s[42:43], s[0:1], 88")
        a("s_memrealtime s[40:41]")
        a("s_waitcnt lgkmcnt(0)")
        if inv: a("s_not_b32 s40, s40")
        a("v_mov_b32 v250, s40")
        a(f"v_mov_b32 v251, {slot*4}")
        a("s_mov_b64 s[46:47], exec")
        a("s_mov_b64 exec, 1")
        a("global_atomic_umax v251, v250, s[42:43] sc1")
        a("s_mov_b64 exec, s[46:47]")
        a.lab(Lsk)
    def bound():
        a(f"s_add_u32 s{sSP}, s{sSP}, 1")
        a(f"s_cmp_gt_u32 s{sSP}, 0x200000")
        a("s_cbranch_scc1 L_end")
    def spin_ge(vaddr, off, target, vt, st=sT0, signed=False):
        L=a.new("spin"); E=a.new("spun")
        a.lab(L)
        a(f"ds_read_b32 v{vt}, v{vaddr} offset:{off}")
        a("s_waitcnt lgkmcnt(0)")
        a(f"v_readfirstlane_b32 s{st}, v{vt}")
        a(f"s_cmp_ge_{'i32' if signed else 'u32'} s{st}, {target}")
        a(f"s_cbranch_scc1 {E}")
        bound()
        if spin_sleep: a(f"s_sleep {spin_sleep}")
        a(f"s_branch {L}")
        a.lab(E)
    def signal(vaddr, off, vone):
        a("s_waitcnt lgkmcnt(0)")
        a("s_mov_b64 exec, 1")
        a(f"ds_add_u32 v{vaddr}, v{vone} offset:{off}")
        a("s_mov_b64 exec, -1")
    def attn_decode():
        a(f"s_and_b32 s{sX}, s2, 7")
        a(f"s_lshr_b32 s{sSLOT}, s2, 3")
        a(f"s_and_b32 s{sB}, s{sSLOT}, 7")
        a(f"s_lshr_b32 s{sGRP}, s{sSLOT}, 3")
        a(f"s_cmp_lg_u32 s{sGRP}, 0")
        a(f"s_cselect_b32 s{sISB}, 1, 0")
        a(f"s_lshr_b32 s{sT1}, s{sGRP}, 1")
        a(f"s_lshl_b32 s{sT1}, s{sT1}, 3")
        a(f"s_add_u32 s{sH}, s{sX}, s{sT1}")
        a(f"s_add_u32 s{sT1}, s{sISB}, 3")
        a(f"s_lshl_b32 s{sPAIR}, s{sB}, s{sT1}")
        a(f"s_add_u32 s{sPAIR}, s{sPAIR}, s{sH}")
    def zero_flags(vz,va):
        a(f"v_mov_b32 v{vz}, 0")
        a(f"v_lshlrev_b32 v{va}, 2, v0")
        a(f"v_add_u32 v{va}, {MISC}, v{va}")
        a(f"ds_write_b32 v{va}, v{vz}")

    a.lab(KN)
    a("s_cmp_ge_u32 s2, 256")
    a("s_cbranch_scc1 L_end")
    a("v_lshrrev_b32 v1, 6, v0")
    a("v_and_b32 v0, 63, v0")
    a(f"s_mov_b32 s{sSP}, 0")
    a(f"v_readfirstlane_b32 s{sWAVE}, v1")
    a(f"s_cmp_lg_u32 s{sWAVE}, 0")
    a("s_cbranch_scc1 L_qw")
    a("s_cmp_ge_u32 s2, 192")
    a("s_cbranch_scc1 L_h0")
    a.c("---------------- loader wave ----------------")
    a(f"s_cmp_ge_u32 s2, 64")
    a(f"s_cselect_b32 s{sT0}, 40, 0")
    a(f"s_add_u32 s{sKA}, s0, s{sT0}")
    a(f"s_addc_u32 s{sKA+1}, s1, 0")
    a(f"s_load_dwordx4 s[{sP0}:{sP0+3}], s[{sKA}:{sKA+1}], 8")
    a("s_setprio 3")
    attn_decode()
    vZ=2; vA=3; vFA=4; vFV=5; vKO=8; vVO=16; vD=20
    zero_flags(vZ,vA)
    a(f"v_mov_b32 v{vFA}, {MISC}")
    a("v_lshrrev_b32 v6, 5, v0      ; hi")
    a("v_and_b32 v7, 31, v0        ; lo")
    for i in range(8):
        a(f"v_add_u32 v{vKO+i}, {2*i}, v6")
        a(f"v_xor_b32 v{vKO+i}, v{vKO+i}, v7")
        a(f"v_lshlrev_b32 v{vKO+i}, 4, v{vKO+i}")
        a(f"v_lshl_add_u32 v{vKO+i}, v6, 9, v{vKO+i}")
        if i>=4: a(f"v_add_u32 v{vKO+i}, 4096, v{vKO+i}")
    a(f"v_lshlrev_b32 v{vVO}, 4, v0")
    a(f"v_add_u32 v{vVO+1}, 4096, v{vVO}")
    a(f"s_lshl_b32 s{sT0}, s{sPAIR}, 21")
    a("s_waitcnt lgkmcnt(0)")
    a("s_barrier")
    a(f"s_add_u32 s{sSRD0}, s{sP0}, s{sT0}")
    a(f"s_addc_u32 s{sSRD0+1}, s{sP0+1}, 0")
    a(f"s_mov_b32 s{sSRD0+2}, 0x200000")
    a(f"s_mov_b32 s{sSRD0+3}, 0x20000")
    a(f"s_add_u32 s{sSRD1}, s{sP0+2}, s{sT0}")
    a(f"s_addc_u32 s{sSRD1+1}, s{sP0+3}, 0")
    a(f"s_mov_b32 s{sSRD1+2}, 0x200000")
    a(f"s_mov_b32 s{sSRD1+3}, 0x20000")
    sT=48; sAL=49; sSL=50; sOFF=51; sPUB=52; sLV=53; sPV=54; vLV=24
    a(f"s_mov_b32 s{sT}, 0")
    a(f"s_mov_b32 s{sAL}, {NS-4}")
    a(f"s_mov_b32 s{sSL}, {RING}")
    a(f"s_mov_b32 s{sPUB}, 0")
    a(f"s_mov_b32 s{sLV}, {DINIT}")
    a(f"v_mov_b32 v{vLV}, 0")
    ts(0)
    dstamp(8,True,mask=31)
    dstamp(9,mask=31)
    for ph,(srd,vo,tend) in enumerate(((sSRD0,[vKO+i for i in range(8)],256),(sSRD1,[vVO]*4+[vVO+1]*4,512))):
        LT=f"L_ld_tile{ph}"; LG=f"L_ld_go{ph}"; LR=f"L_ld_ref{ph}"
        a(f"s_mov_b32 s{sOFF}, 0")
        a.lab(LT)
        if diag and ph==0:
            for tt,rg in ((NS-4,56),(NS,60)):
                a(f"s_cmp_lg_u32 s{sT}, {tt}")
                a(f"s_cbranch_scc1 L_tsx{tt}")
                a(f"s_memrealtime s[{rg}:{rg+1}]")
                a("s_waitcnt lgkmcnt(0)")
                a.lab(f"L_tsx{tt}")
        a(f"s_cmp_lt_u32 s{sT}, s{sAL}")
        a(f"s_cbranch_scc1 {LG}")
        a.lab(LR)
        a(f"ds_read_b128 v[{vD}:{vD+3}], v{vFA} offset:{DONE}")
        a("s_waitcnt lgkmcnt(0)")
        a(f"v_min_u32 v{vD}, v{vD}, v{vD+1}")
        a(f"v_min3_u32 v{vD}, v{vD}, v{vD+2}, v{vD+3}")
        a("s_nop 0")
        a(f"v_readfirstlane_b32 s{sAL}, v{vD}")
        a(f"s_lshl_b32 s{sAL}, s{sAL}, 2")
        a(f"s_add_u32 s{sAL}, s{sAL}, {NS-4}")
        a(f"s_cmp_lt_u32 s{sT}, s{sAL}")
        a(f"s_cbranch_scc1 {LG}")
        bound()
        a("s_sleep 1")
        a(f"s_branch {LR}")
        a.lab(LG)
        if diag and ph==0:
            for tt,rg in ((NS-4,58),(NS,62)):
                a(f"s_cmp_lg_u32 s{sT}, {tt}")
                a(f"s_cbranch_scc1 L_tsy{tt}")
                a(f"s_memrealtime s[{rg}:{rg+1}]")
                a("s_waitcnt lgkmcnt(0)")
                a.lab(f"L_tsy{tt}")
        def lwait(tag):
            Lgo=f"L_lw{ph}{tag}"
            dl=sorted(set(DLIST+[DINIT]),reverse=True)
            a(f"s_waitcnt vmcnt({dl[0]-4})")
            for k in range(len(dl)-1):
                a(f"s_cmp_ge_u32 s{sLV}, {dl[k]}")
                a(f"s_cbranch_scc1 {Lgo}")
                a(f"s_waitcnt vmcnt({dl[k+1]-4})")
            a.lab(Lgo)
        a("s_waitcnt lgkmcnt(0)")
        a(f"v_readfirstlane_b32 s{sLV}, v{vLV}")
        a(f"ds_read_b32 v{vLV}, v{vFA} offset:{DLEV}")
        a(f"s_max_u32 s{sLV}, s{sLV}, {DINIT}")
        a(f"s_mov_b32 m0, s{sSL}")
        lwait("a")
        for i in range(4):
            a(f"buffer_load_dwordx4 v{vo[i]}, s[{srd}:{srd+3}], s{sOFF} offen offset:{i*1024} {pol} lds")
        a(f"s_add_u32 m0, s{sSL}, 4096")
        a(f"s_add_u32 s{sPV}, s{sLV}, 7")
        a(f"s_lshr_b32 s{sPV}, s{sPV}, 3")
        a(f"s_sub_u32 s{sPV}, s{sT}, s{sPV}")
        a(f"s_add_u32 s{sPV}, s{sPV}, 1")
        a(f"s_max_i32 s{sPUB}, s{sPUB}, s{sPV}")
        a(f"v_mov_b32 v{vFV}, s{sPUB}")
        lwait("b")
        a(f"ds_write_b32 v{vFA}, v{vFV} offset:{FULL}")
        for i in range(4,8):
            a(f"buffer_load_dwordx4 v{vo[i]}, s[{srd}:{srd+3}], s{sOFF} offen offset:{(i-4)*1024} {pol} lds")
        a(f"s_add_u32 s{sOFF}, s{sOFF}, 8192")
        a(f"s_add_u32 s{sSL}, s{sSL}, 8192")
        a(f"s_cmp_eq_u32 s{sSL}, {RING+RINGB}")
        a(f"s_cselect_b32 s{sSL}, {RING}, s{sSL}")
        a(f"s_add_u32 s{sT}, s{sT}, 1")
        a(f"s_cmp_lt_u32 s{sT}, {tend}")
        a(f"s_cbranch_scc1 {LT}")
        if ph==0: ts(1)
        if ph==0: dstamp(10,mask=7)
    for k in range((max(DLIST)+7)//8*8-8,-1,-8):
        a(f"v_mov_b32 v{vFV}, {512-k//8}")
        a(f"s_waitcnt vmcnt({k})")
        a(f"ds_write_b32 v{vFA}, v{vFV} offset:{FULL}")
    ts(2)
    dstamp(11)
    ts_dump([0,1,2])
    if diag:
        for k,rg in enumerate((56,58,60,62)):
            a(f"v_mov_b32 v252, s{rg}")
            a(f"v_mov_b32 v253, s{rg+1}")
            a(f"global_store_dwordx2 v250, v[252:253], s[{sTS1}:{sTS1+1}] offset:{(10+k)*8}")
            a("s_nop 1")
    a("s_endpgm")
    a.lab("L_qw")
    a.c("---------------- distributed q projection ----------------")
    a(f"s_lshr_b32 s{sT0}, s2, 7")
    a(f"s_mul_i32 s{sT0}, s{sT0}, 40")
    a(f"s_add_u32 s{sKA}, s0, s{sT0}")
    a(f"s_addc_u32 s{sKA+1}, s1, 0")
    a(f"s_load_dwordx2 s[{sP0}:{sP0+1}], s[{sKA}:{sKA+1}], 0    ; x")
    a(f"s_load_dwordx2 s[{sP0+2}:{sP0+3}], s[{sKA}:{sKA+1}], 24   ; wq")
    a(f"s_load_dwordx4 s[{sDBG}:{sDBG+3}], s[0:1], 88")
    a(f"s_sub_u32 s{sW1}, s{sWAVE}, 1")
    vN=2; vG=3; vS16=4; vXO=8; vWO=9; vX=10; vFL=14; vONE=15; vAO=16; vAC=24; vWq=40
    a(f"v_and_b32 v{vN}, 15, v0")
    a(f"v_lshrrev_b32 v{vG}, 4, v0")
    a(f"s_and_b32 s{sT0}, s2, 3")
    a(f"s_mul_i32 s{sT0}, s{sT0}, 112")
    a(f"s_lshl_b32 s{sT1}, s{sW1}, 4")
    a(f"s_add_u32 s{sT0}, s{sT0}, s{sT1}       ; row0")
    a(f"v_lshl_add_u32 v16, v{vG}, 2, s{sT0}    ; row0+4g")
    a(f"v_lshrrev_b32 v{vXO}, 2, v{vN}")
    a(f"v_mul_u32_u24 v{vXO}, 896, v{vXO}")
    a(f"v_lshl_add_u32 v{vXO}, v16, 1, v{vXO}")
    a(f"s_lshr_b32 s{sT1}, s2, 2")
    a(f"s_and_b32 s{sT1}, s{sT1}, 31")
    a(f"s_lshl_b32 s{sT1}, s{sT1}, 8")
    a(f"v_lshlrev_b32 v{vWO}, 13, v16")
    a(f"v_lshl_add_u32 v{vWO}, v{vN}, 4, v{vWO}")
    a(f"v_add_u32 v{vWO}, s{sT1}, v{vWO}")
    a(f"s_mov_b32 s56, 8192")
    a(f"s_mov_b32 s57, 16384")
    a(f"s_mov_b32 s58, 24576")
    a(f"v_mov_b32 v{vFL}, {MISC}")
    a(f"v_mov_b32 v{vONE}, 1")
    a("s_waitcnt lgkmcnt(0)")
    if not qfirst: a("s_barrier")
    a(f"s_load_dword s{sTAG}, s[{sWS}:{sWS+1}], {E_OFF}")
    a(f"s_mov_b32 s{sSRD1}, s{sP0+2}")
    a(f"s_mov_b32 s{sSRD1+1}, s{sP0+3}")
    a(f"s_mov_b32 s{sSRD1+2}, 3670016")
    a(f"s_mov_b32 s{sSRD1+3}, 0x20000")
    a(f"s_mov_b32 s{sSRD0}, s{sP0}")
    a(f"s_mov_b32 s{sSRD0+1}, s{sP0+1}")
    a(f"s_mov_b32 s{sSRD0+2}, 7168")
    a(f"s_mov_b32 s{sSRD0+3}, 0x20000")
    so=["0","s56","s57","s58"]
    for j in range(4):
        a(f"buffer_load_dwordx4 v[{vWq+4*j}:{vWq+4*j+3}], v{vWO}, s[{sSRD1}:{sSRD1+3}], {so[j]} offen {wqpol}")
    for u in range(2):
        a(f"buffer_load_dwordx2 v[{vX+2*u}:{vX+2*u+1}], v{vXO}, s[{sSRD0}:{sSRD0+3}], 0 offen offset:{u*3584}")
    if qfirst: a("s_barrier")
    a(f"v_and_b32 v16, 1, v{vN}")
    a(f"v_cmp_eq_u32 vcc, 1, v16")
    a(f"v_mov_b32 v17, 0x0c0c0100")
    a(f"v_mov_b32 v18, 0x01000c0c")
    a(f"v_cndmask_b32 v17, v17, v18, vcc")
    a(f"v_mov_b32 v18, 0x0c0c0302")
    a(f"v_mov_b32 v19, 0x03020c0c")
    a(f"v_cndmask_b32 v18, v18, v19, vcc")
    a(f"v_bfe_u32 v16, v{vN}, 1, 1")
    a(f"v_mov_b32 v19, 0x0c0c0c0c")
    for t in range(2):
        a(f"v_cmp_eq_u32 vcc, {t}, v16")
        a("s_nop 1")
        a(f"v_cndmask_b32 v{vS16+t}, v19, v17, vcc")
        a(f"v_cndmask_b32 v{vS16+2+t}, v19, v18, vcc")
    a(f"s_lshl_b32 s{sT0}, s{sW1}, 12")
    a(f"s_add_u32 s{sT0}, s{sT0}, {QPART}")
    a(f"v_lshlrev_b32 v56, 9, v{vG}")
    a(f"v_lshl_add_u32 v56, v{vN}, 5, v56")
    a(f"v_add_u32 v56, s{sT0}, v56")
    a("s_waitcnt vmcnt(0)")
    for j in range(4):
        for u in range(2):
            ao=vAO+4*(j&1)+2*u
            for t in range(2):
                a(f"v_perm_b32 v{ao+t}, v{vX+2*u+(j>>1)}, v{vX+2*u+(j>>1)}, v{vS16+2*(j&1)+t}")
        a("s_nop 0")
        for u in range(2):
            ao=vAO+4*(j&1)+2*u
            for hf in range(2):
                acc=vAC+8*u+4*hf
                cin="0" if j==0 else f"v[{acc}:{acc+3}]"
                a(f"v_mfma_f32_16x16x16_bf16 v[{acc}:{acc+3}], v[{ao}:{ao+1}], v[{vWq+4*j+2*hf}:{vWq+4*j+2*hf+1}], {cin}")
    ts(8)
    a("s_nop 7")
    a("s_nop 0")
    for u in range(2):
        for hf in range(2):
            acc=vAC+8*u+4*hf
            a(f"ds_write_b128 v56, v[{acc}:{acc+3}] offset:{u*2048+hf*16}")
    signal(vFL,CQ1,vONE)
    a(f"s_cmp_gt_u32 s{sWAVE}, 4")
    a("s_cbranch_scc0 L_qred")
    a("s_cmp_ge_u32 s2, 192")
    a("s_cbranch_scc1 L_hout")
    a("s_endpgm")
    a.lab("L_qred")
    vT=24
    a("v_lshrrev_b32 v16, 5, v0")
    a("v_and_b32 v17, 31, v0")
    a(f"s_lshl_b32 s{sT0}, s{sW1}, 1")
    a(f"v_add_u32 v16, s{sT0}, v16           ; batch")
    a(f"v_lshlrev_b32 v18, 9, v16")
    a(f"v_lshl_add_u32 v18, v17, 4, v18")
    a(f"v_add_u32 v18, {QPART}, v18")
    a(f"s_lshl_b32 s{sT0}, s2, 13")
    a(f"s_add_u32 s{sT0}, s{sT0}, {QP_OFF}")
    a(f"v_lshlrev_b32 v19, 10, v16")
    a(f"v_lshl_add_u32 v19, v17, 4, v19")
    a(f"v_add_u32 v19, s{sT0}, v19")
    spin_ge(vFL,CQ1,7,vT)
    for w in range(7):
        a(f"ds_read_b128 v[{40+4*w}:{43+4*w}], v18 offset:{w*4096}")
    a(f"s_add_u32 s{sTAG}, s{sTAG}, 0x9e3779b1")
    a(f"s_lshl_b32 s{sT0}, s{sW1}, 2")
    a(f"s_add_u32 s{sT0}, s{sT0}, {MISC+DONE}")
    a(f"v_mov_b32 v20, s{sT0}")
    a("s_waitcnt lgkmcnt(0)")
    a(f"ds_write_b32 v20, v{vONE}")
    for k in range(4):
        a(f"v_add_f32 v{40+k}, v{40+k}, v{44+k}")
        a(f"v_add_f32 v{48+k}, v{48+k}, v{52+k}")
        a(f"v_add_f32 v{56+k}, v{56+k}, v{60+k}")
    for k in range(4):
        a(f"v_add_f32 v{40+k}, v{40+k}, v{48+k}")
        a(f"v_add_f32 v{56+k}, v{56+k}, v{64+k}")
    for k in range(4):
        a(f"v_add_f32 v{68+2*k}, v{40+k}, v{56+k}")
        a(f"v_mov_b32 v{69+2*k}, s{sTAG}")
    a(f"global_store_dwordx4 v19, v[68:71], s[{sWS}:{sWS+1}] sc1")
    a(f"global_store_dwordx4 v19, v[72:75], s[{sWS}:{sWS+1}] offset:512 sc1")
    ts(9)
    a("s_cmp_ge_u32 s2, 192")
    a("s_cbranch_scc1 L_hout")
    a.c("---------------- consumers ----------------")
    attn_decode()
    vSEL=4
    a(f"v_and_b32 v16, 7, v{vN}")
    a(f"v_lshrrev_b32 v17, 1, v16      ; te")
    a(f"v_and_b32 v16, 1, v16          ; par")
    a(f"v_cmp_eq_u32 vcc, 1, v16")
    a(f"v_mov_b32 v18, 0x0c0c0100")
    a(f"v_mov_b32 v19, 0x01000c0c")
    a(f"v_cndmask_b32 v18, v18, v19, vcc")
    a(f"v_mov_b32 v19, 0x0c0c0302")
    a(f"v_mov_b32 v20, 0x03020c0c")
    a(f"v_cndmask_b32 v19, v19, v20, vcc")
    a(f"v_mov_b32 v20, 0x0c0c0c0c")
    for t in range(4):
        a(f"v_cmp_eq_u32 vcc, {t}, v17")
        a("s_nop 1")
        a(f"v_cndmask_b32 v{vSEL+t}, v20, v18, vcc")
        a(f"v_cndmask_b32 v{vSEL+4+t}, v20, v19, vcc")
    a(f"s_cmp_eq_u32 s{sISB}, 1")
    a("s_cbranch_scc0 L_qg")
    a(f"s_cmp_ge_u32 s{sW1}, 2")
    a("s_cbranch_scc1 L_qg_done")
    a.lab("L_qg")
    a(f"s_sub_u32 s{sT1}, 2, s{sISB}")
    a(f"s_lshl_b32 s{sT0}, s{sH}, s{sT1}")
    a(f"s_add_u32 s{sT0}, s{sT0}, s{sW1}      ; c")
    a(f"s_lshl_b32 s{sT1}, s{sISB}, 5")
    a(f"s_add_u32 s{sT0}, s{sT0}, s{sT1}      ; m*32+c")
    a(f"s_lshl_b32 s{sT0}, s{sT0}, 15         ; *4*8192")
    a(f"s_lshl_b32 s{sT1}, s{sB}, 10")
    a(f"s_add_u32 s{sT0}, s{sT0}, s{sT1}")
    a(f"s_add_u32 s{sT0}, s{sT0}, {QP_OFF}")
    a(f"v_lshlrev_b32 v16, 4, v0")
    a(f"v_add_u32 v16, s{sT0}, v16")
    for kq in range(1,4): a(f"v_add_u32 v{16+kq}, {kq*8192}, v16")
    PA=160; PB=176
    def issue(base):
        for kq in range(4):
            a(f"global_load_dwordx4 v[{base+4*kq}:{base+4*kq+3}], v{16+kq}, s[{sWS}:{sWS+1}] sc1")
    def check(base,lab):
        a(f"v_xor_b32 v20, s{sTAG}, v{base+1}")
        for r in (3,5,7,9,11,13,15):
            a(f"v_xor_b32 v21, s{sTAG}, v{base+r}")
            a(f"v_or_b32 v20, v20, v21")
        a("v_cmp_eq_u32 vcc, 0, v20")
        a("s_nop 1")
        a("s_cmp_eq_u64 vcc, -1")
        a(f"s_cbranch_scc1 {lab}")
    def qsum(base):
        a(f"v_add_f32 v32, v{base}, v{base+4}")
        a(f"v_add_f32 v34, v{base+2}, v{base+6}")
        a(f"v_add_f32 v40, v{base+8}, v{base+12}")
        a(f"v_add_f32 v42, v{base+10}, v{base+14}")
    if qwait: spin_ge(vFL,FULL,qwait,vT,signed=True)
    issue(PA)
    if qsleep: a(f"s_sleep {qsleep}")
    a.lab("L_qg_poll")
    issue(PB)
    a("s_waitcnt vmcnt(4)")
    check(PA,"L_qg_gotA")
    issue(PA)
    a("s_waitcnt vmcnt(4)")
    check(PB,"L_qg_gotB")
    bound()
    a("s_branch L_qg_poll")
    a.lab("L_qg_gotB")
    qsum(PB)
    a("s_branch L_qg_got")
    a.lab("L_qg_gotA")
    qsum(PA)
    a.lab("L_qg_got")
    a("v_add_f32 v32, v32, v40")
    a("v_add_f32 v34, v34, v42")
    a("v_cvt_pk_bf16_f32 v32, v32, v34")
    a("v_and_b32 v20, 31, v0")
    a("v_lshrrev_b32 v21, 5, v0")
    a("v_lshlrev_b32 v20, 3, v20")
    a("v_lshl_add_u32 v20, v21, 2, v20")
    a(f"s_lshl_b32 s{sT0}, s{sW1}, 8")
    a(f"s_add_u32 s{sT0}, s{sT0}, {MISC+QL}")
    a(f"v_add_u32 v20, s{sT0}, v20")
    a("ds_write_b32 v20, v32")
    a.lab("L_qg_done")
    ts(7)
    signal(vFL,CQ2,vONE)
    spin_ge(vFL,CQ2,4,vT)
    vQF=32
    a(f"s_cmp_eq_u32 s{sISB}, 1")
    a(f"s_cselect_b32 s{sT0}, 0, 512")
    a(f"v_lshrrev_b32 v25, 3, v{vN}       ; qh")
    a(f"v_mul_lo_u32 v26, v25, s{sT0}")
    a(f"v_lshl_add_u32 v26, v{vG}, 4, v26")
    a(f"v_add_u32 v26, {MISC+QL}, v26")
    for s in range(8):
        a(f"ds_read_b128 v[{vQF+4*s}:{vQF+4*s+3}], v26 offset:{s*64}")
    vKA=64; vKF=72; vS=104
    vMAX=108; vSA=109; vDN=110; vDV=111; vQH=112
    a(f"v_mov_b32 v{vQH}, v25")
    for s in range(4):
        a(f"v_and_b32 v26, 12, v{vN}")
        a(f"v_xor_b32 v26, {4*s}, v26")
        a(f"v_and_b32 v27, 3, v{vN}")
        a(f"v_xor_b32 v27, v27, v{vG}")
        a(f"v_add_u32 v26, v26, v27")
        a(f"v_lshlrev_b32 v26, 4, v26")
        a(f"v_lshl_add_u32 v{vKA+s}, v{vN}, 9, v26")
    a(f"s_lshl_b32 s{sT0}, s{sW1}, 12")
    a(f"s_add_u32 s{sT0}, s{sT0}, {SBUF}")
    a(f"v_lshlrev_b32 v{vSA}, 5, v{vQH}")
    a(f"v_lshl_add_u32 v{vSA}, v{vG}, 3, v{vSA}")
    a(f"v_add_u32 v{vSA}, s{sT0}, v{vSA}")
    a(f"v_mov_b32 v{vMAX}, 0xff800000")
    a(f"s_lshl_b32 s{sT0}, s{sW1}, 2")
    a(f"s_add_u32 s{sT0}, s{sT0}, {MISC+DONE}")
    a(f"v_mov_b32 v{vDN}, s{sT0}")
    sTT=48; sFU=49; sSLO=50; sJ1=51; sMASK=52; sC=55
    a(f"s_mov_b32 s{sTT}, s{sW1}")
    a(f"s_mov_b32 s{sFU}, 0")
    a(f"s_lshl_b32 s{sSLO}, s{sW1}, 13")
    a(f"s_mov_b32 s{sJ1}, 2")
    a(f"s_mov_b32 s{sMASK}, 0x01010101")
    a(f"s_mov_b32 s{sMASK+1}, 0x01010101")
    a(f"v_mov_b32 v26, {DNORM}")
    a(f"ds_write_b32 v{vFL}, v26 offset:{DLEV}")
    a("s_waitcnt lgkmcnt(0)")
    ts(3)
    dstamp(12,mask=15)
    PR_OFF=0x38000
    vPA=200; vPS=201; vPD=202; vSM=204
    if fb:
        a(f"s_lshl_b32 s{sT0}, s2, 3")
        a(f"s_add_u32 s{sT0}, s{sT0}, {PR_OFF}")
        a(f"v_mov_b32 v{vPA}, s{sT0}")
        a(f"v_mul_u32_u24 v{vPS}, 3, v0")
        a(f"v_add_u32 v{vPS}, s2, v{vPS}")
        a(f"v_subrev_u32 v26, 192, v{vPS}")
        a(f"v_cmp_gt_u32 vcc, 192, v{vPS}")
        a(f"v_mov_b32 v{vPD+1}, s{sTAG}")
        a(f"v_not_b32 v{vSM+1}, v{vPD+1}")
        a(f"v_cndmask_b32 v{vPS}, v26, v{vPS}, vcc")
        a(f"v_lshlrev_b32 v{vPS}, 3, v{vPS}")
        a(f"v_add_u32 v{vPS}, {PR_OFF}, v{vPS}")
    def feedback(tag):
        if not fb: return
        Ls=f"L_fb_skip{tag}"; Li=f"L_fb_issue{tag}"
        a(f"s_cmp_lg_u32 s{sW1}, 0")
        a(f"s_cbranch_scc1 {Ls}")
        a(f"v_mov_b32 v{vPD}, s{sTT}")
        a("s_mov_b64 exec, 1")
        a(f"global_store_dwordx2 v{vPA}, v[{vPD}:{vPD+1}], s[{sWS}:{sWS+1}] sc1")
        a("s_mov_b64 exec, -1")
        a(f"s_and_b32 s56, s{sJ1}, {fbp-1}")
        a(f"s_cmp_lg_u32 s56, 0")
        a(f"s_cbranch_scc1 {Ls}")
        a("s_waitcnt vmcnt(1)")
        a(f"v_readfirstlane_b32 s62, v{vSM}")
        a(f"v_cmp_eq_u32 s[56:57], s{sTAG}, v{vSM+1}")
        a("s_nop 0")
        a(f"v_cmp_lt_i32 s[58:59], v{vSM}, s62")
        a(f"v_cmp_gt_i32 s[60:61], v{vSM}, s62")
        a(f"s_bitcmp1_b64 s[56:57], 0")
        a(f"s_cbranch_scc0 {Li}")
        a(f"s_and_b64 s[58:59], s[58:59], s[56:57]")
        a(f"s_and_b64 s[60:61], s[60:61], s[56:57]")
        a(f"s_bcnt1_i32_b64 s62, s[58:59]")
        a(f"s_bcnt1_i32_b64 s63, s[60:61]")
        a(f"s_sub_i32 s62, s62, s63")
        a(f"s_mov_b32 s63, {DNORM}")
        a(f"s_cmp_gt_i32 s62, {th1}")
        a(f"s_cselect_b32 s63, {DNORM-dstep}, s63")
        a(f"s_cmp_gt_i32 s62, {th2}")
        a(f"s_cselect_b32 s63, {DNORM-2*dstep}, s63")
        a(f"s_cmp_lt_i32 s62, {-th1}")
        a(f"s_cselect_b32 s63, {DNORM+dstep}, s63")
        a(f"s_cmp_lt_i32 s62, {-th2}")
        a(f"s_cselect_b32 s63, {DNORM+2*dstep}, s63")
        a(f"v_mov_b32 v{vPD}, s63")
        a(f"ds_write_b32 v{vFL}, v{vPD} offset:{DLEV}")
        a.lab(Li)
        a(f"global_load_dwordx2 v[{vSM}:{vSM+1}], v{vPS}, s[{sWS}:{sWS+1}] sc1")
        a.lab(Ls)
    def wait_full(tag):
        Lg=f"L_{tag}_go"; Ls=f"L_{tag}_spin"
        a(f"s_cmp_gt_i32 s{sFU}, s{sTT}")
        a(f"s_cbranch_scc1 {Lg}")
        a.lab(Ls)
        a(f"ds_read_b32 v{vT}, v{vFL} offset:{FULL}")
        a("s_waitcnt lgkmcnt(0)")
        a(f"v_readfirstlane_b32 s{sFU}, v{vT}")
        a(f"s_cmp_gt_i32 s{sFU}, s{sTT}")
        a(f"s_cbranch_scc1 {Lg}")
        bound()
        if spin_sleep: a(f"s_sleep {spin_sleep}")
        a(f"s_branch {Ls}")
        a.lab(Lg)
    def advance():
        a(f"s_add_u32 s{sTT}, s{sTT}, 4")
        a(f"s_add_u32 s{sSLO}, s{sSLO}, {4*8192}")
        a(f"s_cmp_ge_u32 s{sSLO}, {RINGB}")
        a(f"s_cselect_b32 s{sT0}, {RINGB}, 0")
        a(f"s_sub_u32 s{sSLO}, s{sSLO}, s{sT0}")
        a(f"s_add_u32 s{sJ1}, s{sJ1}, 1")
    a.lab("L_K")
    wait_full("K")
    for s in range(4): a(f"v_add_u32 v{vKA+4+s}, s{sSLO}, v{vKA+s}")
    for s in range(8):
        a(f"ds_read_b128 v[{vKF+4*s}:{vKF+4*s+3}], v{vKA+4+(s&3)} offset:{RING+(s>>2)*256}")
    a(f"v_mov_b32 v{vDV}, s{sJ1}")
    for s in range(8):
        a(f"s_waitcnt lgkmcnt({7-s})")
        if s==7: a(f"ds_write_b32 v{vDN}, v{vDV}")
        cin="0" if s==0 else f"v[{vS}:{vS+3}]"
        a(f"v_mfma_f32_16x16x32_bf16 v[{vS}:{vS+3}], v[{vKF+4*s}:{vKF+4*s+3}], v[{vQF+4*s}:{vQF+4*s+3}], {cin}")
    advance()
    a("s_nop 3")
    a(f"v_max3_f32 v{vMAX}, v{vMAX}, v{vS}, v{vS+1}")
    a(f"v_max3_f32 v{vMAX}, v{vMAX}, v{vS+2}, v{vS+3}")
    a(f"v_cvt_pk_bf16_f32 v{vS}, v{vS}, v{vS+1}")
    a(f"v_cvt_pk_bf16_f32 v{vS+1}, v{vS+2}, v{vS+3}")
    a(f"s_mov_b64 exec, s[{sMASK}:{sMASK+1}]")
    a(f"ds_write_b64 v{vSA}, v[{vS}:{vS+1}]")
    a("s_mov_b64 exec, -1")
    a(f"v_add_u32 v{vSA}, 64, v{vSA}")
    feedback("K")
    a(f"s_cmp_lt_u32 s{sTT}, 256")
    a("s_cbranch_scc1 L_K")
    ts(4)
    a(f"s_lshl_b32 s{sT0}, s{sW1}, 4")
    a(f"s_add_u32 s{sT0}, s{sT0}, {MISC+MX}")
    a(f"v_lshlrev_b32 v26, 6, v{vQH}")
    a(f"v_lshl_add_u32 v27, v{vG}, 2, v26")
    a(f"v_add_u32 v27, s{sT0}, v27")
    a(f"s_mov_b64 exec, s[{sMASK}:{sMASK+1}]")
    a(f"ds_write_b32 v27, v{vMAX}")
    a("s_mov_b64 exec, -1")
    signal(vFL,CMX,vONE)
    spin_ge(vFL,CMX,4,vT)
    a(f"v_add_u32 v26, {MISC+MX}, v26")
    for k in range(4): a(f"ds_read_b128 v[{72+4*k}:{75+4*k}], v26 offset:{k*16}")
    a(f"v_subrev_u32 v{vSA}, {64*64}, v{vSA}")
    a("s_waitcnt lgkmcnt(0)")
    a("v_max3_f32 v72, v72, v73, v74")
    for k in range(75,87,2): a(f"v_max3_f32 v72, v72, v{k}, v{k+1}")
    a("v_max_f32 v72, v72, v87")
    vNM=113; vL=114; vVA=115; vVC=116; vW=118
    a(f"s_mov_b32 s{sC}, {CEXP:#x}")
    a(f"v_mul_f32 v{vNM}, s{sC}, v72")
    a(f"v_sub_f32 v{vNM}, 0, v{vNM}")
    a(f"v_mov_b32 v{vL}, 0")
    a(f"v_lshlrev_b32 v{vVA}, 11, v{vG}")
    a(f"v_lshl_add_u32 v{vVA}, v{vN}, 4, v{vVA}")
    vO=120
    for k in range(8): a(f"v_mov_b32 v{vO+k}, 0")
    vVF=72; vP=104; vAP=128
    a.lab("L_V")
    a(f"ds_read_b64 v[{vW}:{vW+1}], v{vSA}")
    wait_full("V")
    a(f"v_add_u32 v{vVC}, s{sSLO}, v{vVA}")
    for r in range(4):
        for h in range(2):
            b=vVF+4*(2*r+h)
            a(f"ds_read_b128 v[{b}:{b+3}], v{vVC} offset:{RING+r*512+h*256}")
    a("s_waitcnt lgkmcnt(8)")
    a(f"v_lshlrev_b32 v{vP}, 16, v{vW}")
    a(f"v_and_b32 v{vP+1}, 0xffff0000, v{vW}")
    a(f"v_lshlrev_b32 v{vP+2}, 16, v{vW+1}")
    a(f"v_and_b32 v{vP+3}, 0xffff0000, v{vW+1}")
    for r in range(4): a(f"v_fma_f32 v{vP+r}, v{vP+r}, s{sC}, v{vNM}")
    for r in range(4): a(f"v_exp_f32 v{vP+r}, v{vP+r}")
    a(f"v_add_u32 v{vSA}, 64, v{vSA}")
    a(f"v_cvt_pk_bf16_f32 v{vW}, v{vP}, v{vP+1}")
    a(f"v_cvt_pk_bf16_f32 v{vW+1}, v{vP+2}, v{vP+3}")
    a(f"v_add_f32 v{vP}, v{vP}, v{vP+1}")
    a(f"v_add_f32 v{vP+2}, v{vP+2}, v{vP+3}")
    a(f"v_add_f32 v{vL}, v{vL}, v{vP}")
    a(f"v_add_f32 v{vL}, v{vL}, v{vP+2}")
    for r in range(4):
        for t in range(4):
            a(f"v_perm_b32 v{vAP+4*r+t}, v{vW+(r>>1)}, v{vW+(r>>1)}, v{vSEL+4*(r&1)+t}")
    a(f"v_mov_b32 v{vDV}, s{sJ1}")
    a("s_waitcnt lgkmcnt(0)")
    a(f"ds_write_b32 v{vDN}, v{vDV}")
    for r in range(4):
        for h in range(2):
            b=vVF+4*(2*r+h)
            a(f"v_mfma_f32_16x16x32_bf16 v[{vO+4*h}:{vO+4*h+3}], v[{vAP+4*r}:{vAP+4*r+3}], v[{b}:{b+3}], v[{vO+4*h}:{vO+4*h+3}]")
    advance()
    feedback("V")
    a(f"s_cmp_lt_u32 s{sTT}, 512")
    a("s_cbranch_scc1 L_V")
    ts(5)
    a(f"s_lshl_b32 s{sT0}, s{sW1}, 12")
    a(f"s_add_u32 s{sT0}, s{sT0}, {SBUF}")
    a(f"v_lshrrev_b32 v26, 1, v{vG}")
    a(f"v_lshlrev_b32 v26, 10, v26")
    a(f"v_and_b32 v27, 1, v{vG}")
    a(f"v_lshl_add_u32 v26, v27, 4, v26")
    a(f"v_lshl_add_u32 v26, v{vN}, 5, v26")
    a(f"v_add_u32 v26, s{sT0}, v26")
    a(f"s_lshl_b32 s{sT0}, s{sW1}, 4")
    a(f"s_add_u32 s{sT0}, s{sT0}, {MISC+LS}")
    a(f"v_lshlrev_b32 v27, 6, v{vQH}")
    a(f"v_lshl_add_u32 v27, v{vG}, 2, v27")
    a(f"v_add_u32 v27, s{sT0}, v27")
    a("s_nop 1")
    a(f"ds_write_b128 v26, v[{vO}:{vO+3}]")
    a(f"ds_write_b128 v26, v[{vO+4}:{vO+7}] offset:512")
    a(f"s_mov_b64 exec, s[{sMASK}:{sMASK+1}]")
    a(f"ds_write_b32 v27, v{vL}")
    a("s_mov_b64 exec, -1")
    a("s_waitcnt lgkmcnt(0)")
    a("s_mov_b64 exec, 1")
    a(f"ds_add_rtn_u32 v{vT}, v{vFL}, v{vONE} offset:{CFIN}")
    a("s_mov_b64 exec, -1")
    a("s_waitcnt lgkmcnt(0)")
    a(f"v_readfirstlane_b32 s{sT0}, v{vT}")
    a(f"s_cmp_eq_u32 s{sT0}, 3")
    a("s_cbranch_scc0 L_end")
    a("v_lshrrev_b32 v25, 5, v0")
    a("v_and_b32 v28, 31, v0")
    a("v_lshlrev_b32 v26, 10, v25")
    a("v_lshl_add_u32 v26, v28, 5, v26")
    a(f"v_add_u32 v26, {SBUF}, v26")
    for w in range(4):
        a(f"ds_read_b128 v[{32+8*w}:{35+8*w}], v26 offset:{w*4096}")
        a(f"ds_read_b128 v[{36+8*w}:{39+8*w}], v26 offset:{w*4096+16}")
    a("v_lshlrev_b32 v27, 6, v25")
    a(f"v_add_u32 v27, {MISC+LS}, v27")
    for k in range(4): a(f"ds_read_b128 v[{64+4*k}:{67+4*k}], v27 offset:{k*16}")
    a(f"s_lshl_b32 s{sT0}, s{sISB}, 16")
    a(f"s_lshl_b32 s{sT1}, s{sB}, 13")
    a(f"s_add_u32 s{sT0}, s{sT0}, s{sT1}")
    a(f"s_sub_u32 s{sT1}, 10, s{sISB}")
    a(f"s_lshl_b32 s{sT1}, s{sH}, s{sT1}")
    a(f"s_add_u32 s{sT0}, s{sT0}, s{sT1}")
    a(f"s_add_u32 s{sT0}, s{sT0}, {O_OFF}")
    a(f"v_lshlrev_b32 v29, 4, v0")
    a(f"v_add_u32 v29, s{sT0}, v29")
    a("s_waitcnt lgkmcnt(0)")
    for k in range(8):
        a(f"v_add_f32 v{32+k}, v{32+k}, v{40+k}")
        a(f"v_add_f32 v{48+k}, v{48+k}, v{56+k}")
    for k in range(8): a(f"v_add_f32 v{32+k}, v{32+k}, v{48+k}")
    for k in range(8): a(f"v_add_f32 v{64+k}, v{64+k}, v{72+k}")
    for k in range(4): a(f"v_add_f32 v{64+k}, v{64+k}, v{68+k}")
    a("v_add_f32 v64, v64, v65")
    a("v_add_f32 v66, v66, v67")
    a("v_add_f32 v64, v64, v66")
    a("v_rcp_f32 v64, v64")
    a("s_nop 0")
    for k in range(8): a(f"v_mul_f32 v{32+k}, v{32+k}, v64")
    for k in range(4): a(f"v_cvt_pk_bf16_f32 v{32+k}, v{32+2*k}, v{33+2*k}")
    a(f"s_cmp_eq_u32 s{sISB}, 1")
    a(f"s_cselect_b32 exec_hi, 0, -1")
    a(f"global_store_dwordx4 v29, v[32:35], s[{sWS}:{sWS+1}] sc1")
    a(f"s_lshl_b32 s{sT0}, s{sISB}, 7")
    a(f"s_lshl_b32 s{sT1}, s{sH}, 2")
    a(f"s_add_u32 s{sT0}, s{sT0}, s{sT1}")
    a(f"v_mov_b32 v29, s{sT0}")
    a("s_waitcnt vmcnt(0)")
    a("s_mov_b64 exec, 1")
    a(f"global_atomic_add v29, v{vONE}, s[{sDBG}:{sDBG+1}] sc1")
    ts(6)
    ts_dump([3,4,5,6,7,8,9])
    a("s_endpgm")
    a.lab("L_h0")
    a.c("helper wave 0: flag init, pointers")
    a(f"s_load_dwordx4 s[{sDBG}:{sDBG+3}], s[0:1], 88")
    zero_flags(2,3)
    a("s_waitcnt lgkmcnt(0)")
    a("s_barrier")
    a.lab("L_hout")
    a.c("---------------- helpers: out projection ----------------")
    sHJ=54
    vN=2; vG=3
    a(f"s_sub_u32 s{sHJ}, s2, 192")
    a(f"s_and_b32 s{sX}, s{sHJ}, 7")
    a(f"s_lshr_b32 s{sT1}, s{sHJ}, 3")
    a(f"s_and_b32 s{sSLOT}, s{sT1}, 3     ; sub")
    a(f"s_lshr_b32 s{sT1}, s{sHJ}, 5      ; hi")
    a(f"s_lshl_b32 s{sT1}, s{sT1}, 3")
    a(f"s_add_u32 s{sGRP}, s{sT1}, s{sX}   ; gamma")
    a(f"s_cmp_ge_u32 s{sGRP}, 14")
    a("s_cbranch_scc1 L_h_idle")
    a(f"s_cmp_ge_u32 s{sGRP}, 7")
    a(f"s_cselect_b32 s{sISB}, 1, 0")
    a(f"s_cselect_b32 s{sT0}, 40, 0")
    a(f"s_cselect_b32 s{sT1}, 7, 0")
    a(f"s_add_u32 s{sKA}, s0, s{sT0}")
    a(f"s_addc_u32 s{sKA+1}, s1, 0")
    a(f"s_sub_u32 s{sGRP}, s{sGRP}, s{sT1}")
    a(f"s_lshl_b32 s{sH}, s{sGRP}, 2")
    a(f"s_add_u32 s{sH}, s{sH}, s{sSLOT}")
    a(f"s_load_dwordx2 s[{sP0}:{sP0+1}], s[{sKA}:{sKA+1}], 32   ; wo")
    a(f"s_load_dwordx2 s[{sOUT}:{sOUT+1}], s[0:1], 80")
    a(f"v_and_b32 v{vN}, 15, v0")
    a(f"v_lshrrev_b32 v{vG}, 4, v0")
    a(f"s_mul_i32 s{sT0}, s{sWAVE}, {512*896}")
    a(f"s_lshl_b32 s{sT1}, s{sH}, 5")
    a(f"s_add_u32 s{sT0}, s{sT0}, s{sT1}")
    a(f"v_mul_u32_u24 v4, {8*896}, v{vG}")
    a(f"v_lshl_add_u32 v4, v{vN}, 1, v4")
    a(f"v_add_u32 v4, s{sT0}, v4")
    a(f"v_add_u32 v5, {4*896}, v4")
    a("s_waitcnt lgkmcnt(0)")
    a(f"s_mov_b32 s{sSRD0}, s{sP0}")
    a(f"s_mov_b32 s{sSRD0+1}, s{sP0+1}")
    a(f"s_mov_b32 s{sSRD0+2}, 3670016")
    a(f"s_mov_b32 s{sSRD0+3}, 0x20000")
    vWT=64; vTMP=128
    for ch in range(4 if not nowo else 0):
        for si in range(4):
            s_=ch*4+si
            a(f"s_mov_b32 s{sT0}, {s_*32*896}")
            for e in range(8):
                a(f"buffer_load_ushort v{vTMP+si*8+e}, v{4+(e>>2)}, s[{sSRD0}:{sSRD0+3}], s{sT0} offen offset:{(e&3)*896} {wopol}")
        a("s_waitcnt vmcnt(0)")
        for si in range(4):
            s_=ch*4+si
            for q in range(4):
                a(f"v_lshl_or_b32 v{vWT+4*s_+q}, v{vTMP+si*8+2*q+1}, 16, v{vTMP+si*8+2*q}")
    a(f"s_lshl_b32 s{sT0}, s{sISB}, 16")
    a(f"s_add_u32 s{sT0}, s{sT0}, {O_OFF}")
    a(f"s_add_u32 s{sSRD1}, s{sWS}, s{sT0}")
    a(f"s_addc_u32 s{sSRD1+1}, s{sWS+1}, 0")
    a(f"s_mov_b32 s{sSRD1+2}, 65536")
    a(f"s_mov_b32 s{sSRD1+3}, 0x20000")
    sJ=58
    a(f"s_lshl_b32 s{sT0}, s{sWAVE}, 10")
    a(f"v_lshlrev_b32 v6, 4, v0")
    a(f"v_add_u32 v6, s{sT0}, v6")
    for b in range(8): a(f"s_mov_b32 s{sJ+b}, {b*8192}")
    OST=32768
    a(f"s_mul_i32 s{sT0}, s{sWAVE}, 8448")
    a(f"s_add_u32 s{sT0}, s{sT0}, {OST}")
    a(f"v_lshlrev_b32 v9, 4, v0")
    a(f"v_add_u32 v9, s{sT0}, v9")
    a(f"v_and_b32 v10, 7, v{vN}")
    a(f"v_mul_u32_u24 v10, 1056, v10")
    a(f"v_lshl_add_u32 v10, v{vG}, 4, v10")
    a(f"v_add_u32 v10, s{sT0}, v10")
    ts(0)
    a(f"s_cmp_lg_u32 s{sWAVE}, 0")
    a("s_cbranch_scc1 L_h_wait")
    a(f"s_lshl_b32 s{sT0}, s{sISB}, 3")
    a(f"s_add_u32 s{sT0}, s{sT0}, 7")
    a(f"v_and_b32 v7, s{sT0}, v0")
    a(f"v_lshlrev_b32 v7, 2, v7")
    a(f"s_lshl_b32 s{sT0}, s{sISB}, 7")
    a(f"v_add_u32 v7, s{sT0}, v7")
    a.lab("L_h_poll")
    a(f"global_load_dword v8, v7, s[{sDBG}:{sDBG+1}] sc1")
    a("s_waitcnt vmcnt(0)")
    a("v_cmp_le_u32 vcc, 8, v8")
    a("s_nop 1")
    a("s_cmp_eq_u64 vcc, -1")
    a("s_cbranch_scc1 L_h_wait")
    bound()
    a(f"s_sleep {hsleep}")
    a("s_branch L_h_poll")
    a.lab("L_h_wait")
    a("s_barrier")
    ts(1)
    vOF=128
    for b in range(8):
        a(f"buffer_load_dwordx4 v[{vOF+4*b}:{vOF+4*b+3}], v6, s[{sSRD1}:{sSRD1+3}], s{sJ+b} offen sc1")
    for b in range(8):
        a(f"s_waitcnt vmcnt({7-b})")
        a(f"ds_write_b128 v9, v[{vOF+4*b}:{vOF+4*b+3}] offset:{b*1056}")
    vFR=160
    a("s_waitcnt lgkmcnt(0)")
    for s_ in range(16):
        a(f"ds_read_b128 v[{vFR+4*s_}:{vFR+4*s_+3}], v10 offset:{s_*64}")
    vAC=12
    for s_ in range(16):
        a(f"s_waitcnt lgkmcnt({15-s_})")
        cin="0" if s_==0 else f"v[{vAC}:{vAC+3}]"
        a(f"v_mfma_f32_16x16x32_bf16 v[{vAC}:{vAC+3}], v[{vFR+4*s_}:{vFR+4*s_+3}], v[{vWT+4*s_}:{vWT+4*s_+3}], {cin}")
    ts(2)
    a(f"s_lshl_b32 s{sT0}, s{sWAVE}, 9")
    a(f"v_lshlrev_b32 v11, 8, v{vG}")
    a(f"v_lshl_add_u32 v11, v{vN}, 2, v11")
    a(f"v_add_u32 v11, s{sT0}, v11")
    a("s_nop 4")
    a("s_mov_b32 exec_hi, 0")
    for r in range(4): a(f"ds_write_b32 v11, v{vAC+r} offset:{r*64}")
    a("s_mov_b64 exec, -1")
    a("s_waitcnt lgkmcnt(0)")
    a("s_barrier")
    a(f"s_cmp_lg_u32 s{sWAVE}, 0")
    a("s_cbranch_scc1 L_end")
    ts(3)
    a("v_lshrrev_b32 v12, 3, v0")
    a("v_and_b32 v13, 7, v0")
    a("v_lshlrev_b32 v14, 6, v12")
    a("v_lshl_add_u32 v14, v13, 3, v14")
    for w in range(8): a(f"ds_read_b64 v[{16+2*w}:{17+2*w}], v14 offset:{w*512}")
    a(f"s_mul_i32 s{sT0}, s{sISB}, 896")
    a(f"s_lshl_b32 s{sT1}, s{sH}, 5")
    a(f"s_add_u32 s{sT0}, s{sT0}, s{sT1}")
    a(f"v_mul_u32_u24 v15, 1792, v12")
    a(f"v_lshl_add_u32 v15, v13, 2, v15")
    a(f"v_add_u32 v15, s{sT0}, v15")
    a(f"s_mov_b32 s{sSRD0}, s{sOUT}")
    a(f"s_mov_b32 s{sSRD0+1}, s{sOUT+1}")
    a(f"s_mov_b32 s{sSRD0+2}, 14336")
    a(f"s_mov_b32 s{sSRD0+3}, 0x20000")
    a("s_waitcnt lgkmcnt(0)")
    for w in range(1,8):
        a(f"v_add_f32 v16, v16, v{16+2*w}")
        a(f"v_add_f32 v17, v17, v{17+2*w}")
    a("v_cvt_pk_bf16_f32 v16, v16, v17")
    a(f"buffer_store_dword v16, v15, s[{sSRD0}:{sSRD0+3}], 0 offen")
    ts(4)
    dstamp(13)
    ts_dump([0,1,2,3,4])
    a("s_endpgm")
    a.lab("L_h_idle")
    a(f"s_cmp_lg_u32 s2, 230")
    a("s_cbranch_scc1 L_end")
    a(f"s_cmp_lg_u32 s{sWAVE}, 0")
    a("s_cbranch_scc1 L_end")
    a(f"s_load_dword s{sTAG}, s[{sWS}:{sWS+1}], {E_OFF}")
    a("v_cmp_gt_u32 vcc, 8, v0")
    a("v_lshlrev_b32 v4, 2, v0")
    a("v_add_u32 v5, 96, v4          ; 128 + (lane-8)*4")
    a("v_cndmask_b32 v4, v5, v4, vcc")
    a("v_cmp_gt_u32 vcc, 24, v0")
    a("v_mov_b32 v5, 0")
    a("s_nop 0")
    a("v_cndmask_b32 v4, v5, v4, vcc")
    a("s_waitcnt lgkmcnt(0)")
    a(f"s_add_u32 s{sTAG}, s{sTAG}, 0x9e3779b1")
    a.lab("L_e_poll")
    a(f"global_load_dword v8, v4, s[{sDBG}:{sDBG+1}] sc1")
    a("s_waitcnt vmcnt(0)")
    a("v_cmp_le_u32 vcc, 8, v8")
    a("s_nop 1")
    a("s_cmp_eq_u64 vcc, -1")
    a("s_cbranch_scc1 L_e_done")
    bound()
    a("s_sleep 32")
    a("s_branch L_e_poll")
    a.lab("L_e_done")
    a(f"v_mov_b32 v4, {E_OFF}")
    a(f"v_mov_b32 v5, s{sTAG}")
    a("s_mov_b64 exec, 1")
    a(f"global_store_dword v4, v5, s[{sWS}:{sWS+1}]")
    a.lab("L_end")
    a("s_endpgm")
    body=a.text()
    hdr=open("cdna_kernels/"+NAME+".s.ref").read().split("\n")
    head=[l for l in hdr if l.startswith(";") and "@launch" not in l and "Override launch" not in l and "grid=ceil" not in l]
    out="\n".join(head)+"\n"
    out+=f"; @launch grid=(256,1,1) block=(512,1,1) lds={LDS}\n"
    out+=f""".amdgcn_target "amdgcn-amd-amdhsa--gfx950"
.text
.globl {KN}
.p2align 8
.type {KN},@function
"""
    out+=body
    out+=f""".section .rodata,"a"
.p2align 6
.amdhsa_kernel {KN}
  .amdhsa_next_free_vgpr 256
  .amdhsa_next_free_sgpr 96
  .amdhsa_accum_offset 256
  .amdhsa_group_segment_fixed_size 0
  .amdhsa_kernarg_size 104
  .amdhsa_user_sgpr_count 2
  .amdhsa_user_sgpr_kernarg_segment_ptr 1
  .amdhsa_system_sgpr_workgroup_id_x 1
.end_amdhsa_kernel
"""
    return out, LDS

META=""".amdgpu_metadata
---
amdhsa.version: [1, 2]
amdhsa.kernels:
  - .name: {KN}
    .symbol: {KN}.kd
    .kernarg_segment_size: 104
    .kernarg_segment_align: 8
    .group_segment_fixed_size: 0
    .private_segment_fixed_size: 0
    .wavefront_size: 64
    .sgpr_count: 102
    .vgpr_count: 256
    .max_flat_workgroup_size: 512
    .args:
      - {{.name: kernargs, .size: 104, .offset: 0, .value_kind: by_value}}
...
.end_amdgpu_metadata
"""
if __name__=="__main__":
    import argparse
    ap=argparse.ArgumentParser()
    ap.add_argument("-o",default="cdna_kernels/"+NAME+".s")
    ap.add_argument("--diag",action="store_true")
    ap.add_argument("--meta",action="store_true")
    ap.add_argument("--D",type=int,default=40)
    ap.add_argument("--NS",type=int,default=17)
    ap.add_argument("--qwait",type=int,default=0)
    ap.add_argument("--nowo",type=int,default=0)
    ap.add_argument("--DINIT",type=int,default=24)
    ap.add_argument("--DNORM",type=int,default=40)
    ap.add_argument("--fb",type=int,default=0)
    ap.add_argument("--dbgts",type=int,default=0)
    ap.add_argument("--fbp",type=int,default=4)
    ap.add_argument("--th1",type=int,default=16)
    ap.add_argument("--th2",type=int,default=40)
    ap.add_argument("--dstep",type=int,default=4)
    ap.add_argument("--pol",default="nt")
    ap.add_argument("--wqpol",default="nt")
    ap.add_argument("--wopol",default="nt")
    ap.add_argument("--hsleep",type=int,default=8)
    ap.add_argument("--qsleep",type=int,default=9)
    ap.add_argument("--qfirst",type=int,default=1)
    args=ap.parse_args()
    s,lds=gen(D=args.D,NS=args.NS,diag=args.diag,pol=args.pol,wqpol=args.wqpol,wopol=args.wopol,hsleep=args.hsleep,qsleep=args.qsleep,qfirst=bool(args.qfirst),qwait=args.qwait,nowo=bool(args.nowo),DINIT=args.DINIT,DNORM=args.DNORM,fb=bool(args.fb),fbp=args.fbp,th1=args.th1,th2=args.th2,dstep=args.dstep,dbgts=bool(args.dbgts))
    if args.meta: s+=META.format(KN=KN)
    open(args.o,"w").write(s)
    print("wrote",args.o,"lds",lds)
```

```python
import sys, struct
NAME="concat_heads__gqa_block_cached__mha_block_cached__decode"
KN=NAME+"_kernel"

class Asm:
    def __init__(s): s.L=[]; s.uid=0
    def __call__(s,x): s.L.append("  "+x)
    def lab(s,x): s.L.append(x+":")
    def c(s,x): s.L.append("  ; "+x)
    def new(s,p): s.uid+=1; return f"L_{p}_{s.uid}"
    def text(s): return "\n".join(s.L)+"\n"

def gen(D=40, NS=17, diag=False, pol="nt", spin_sleep=1, wqpol="nt", wopol="nt", hsleep=8, qsleep=16, qfirst=True, qwait=0, nowo=False, DINIT=24, DNORM=40, fb=True, fbp=4, th1=16, th2=40, dstep=4, dbgts=False, polVA='nt', polVB='nt'):
    a=Asm()
    DLIST=[DNORM-2*dstep,DNORM-dstep,DNORM,DNORM+dstep,DNORM+2*dstep] if fb else [DNORM]
    RING=0; RINGB=NS*8192
    SBUF=RINGB
    MISC=SBUF+16384
    QPART=(NS-4)*8192
    FULL=0; DONE=16; CQ1=32; CQ2=36; CMX=40; CFIN=44; DLEV=48
    QL=256; MX=1280; LS=1408
    LDS=MISC+2048
    assert LDS<=163840
    CEXP=struct.unpack("<I",struct.pack("<f",1.4426950408889634/16.0))[0]
    O_OFF=0
    E_OFF=0x30004
    QP_OFF=0x100000
    TS_OFF=0x20000000
    sWAVE=3; sX=4; sSLOT=5; sB=6; sGRP=7; sKA=8
    sPAIR=10; sH=11; sISB=12; sT0=13; sT1=14; sT2=15
    sP0=16
    sDBG=20
    sWS=22
    sOUT=24
    sTAG=26
    sSRD0=28; sSRD1=32
    sTS1=42
    sW1=54
    sSP=72
    sTSB=76
    def ts(slot):
        if not diag: return
        a(f"s_memrealtime s[{sTSB+2*slot}:{sTSB+2*slot+1}]")
        a("s_waitcnt lgkmcnt(0)")
    def ts_dump(slots):
        if not diag: return
        a(f"s_load_dwordx2 s[{sTS1}:{sTS1+1}], s[0:1], 96")
        a("s_waitcnt lgkmcnt(0)")
        a(f"s_add_u32 s{sTS1}, s{sTS1}, {TS_OFF}")
        a(f"s_addc_u32 s{sTS1+1}, s{sTS1+1}, 0")
        a(f"s_lshl_b32 s44, s2, 7")
        a(f"v_mov_b32 v250, s44")
        a(f"s_mov_b64 exec, 1")
        for slot in slots:
            a(f"v_mov_b32 v252, s{sTSB+2*slot}")
            a(f"v_mov_b32 v253, s{sTSB+2*slot+1}")
            a(f"global_store_dwordx2 v250, v[252:253], s[{sTS1}:{sTS1+1}] offset:{slot*8}")
            a("s_nop 1")
    def dstamp(slot, inv=False, mask=0):
        if not dbgts: return
        Lsk=a.new("dsk")
        if mask:
            a(f"s_and_b32 s44, s2, {mask}")
            a(f"s_cmp_lg_u32 s44, 0")
            a(f"s_cbranch_scc1 {Lsk}")
        a("s_load_dwordx2 s[42:43], s[0:1], 88")
        a("s_memrealtime s[40:41]")
        a("s_waitcnt lgkmcnt(0)")
        if inv: a("s_not_b32 s40, s40")
        a("v_mov_b32 v250, s40")
        a(f"v_mov_b32 v251, {slot*4}")
        a("s_mov_b64 s[46:47], exec")
        a("s_mov_b64 exec, 1")
        a("global_atomic_umax v251, v250, s[42:43] sc1")
        a("s_mov_b64 exec, s[46:47]")
        a.lab(Lsk)
    def bound():
        a(f"s_add_u32 s{sSP}, s{sSP}, 1")
        a(f"s_cmp_gt_u32 s{sSP}, 0x200000")
        a("s_cbranch_scc1 L_end")
    def spin_ge(vaddr, off, target, vt, st=sT0, signed=False):
        L=a.new("spin"); E=a.new("spun")
        a.lab(L)
        a(f"ds_read_b32 v{vt}, v{vaddr} offset:{off}")
        a("s_waitcnt lgkmcnt(0)")
        a(f"v_readfirstlane_b32 s{st}, v{vt}")
        a(f"s_cmp_ge_{'i32' if signed else 'u32'} s{st}, {target}")
        a(f"s_cbranch_scc1 {E}")
        bound()
        if spin_sleep: a(f"s_sleep {spin_sleep}")
        a(f"s_branch {L}")
        a.lab(E)
    def signal(vaddr, off, vone):
        a("s_waitcnt lgkmcnt(0)")
        a("s_mov_b64 exec, 1")
        a(f"ds_add_u32 v{vaddr}, v{vone} offset:{off}")
        a("s_mov_b64 exec, -1")
    def attn_decode():
        a(f"s_and_b32 s{sX}, s2, 7")
        a(f"s_lshr_b32 s{sSLOT}, s2, 3")
        a(f"s_and_b32 s{sB}, s{sSLOT}, 7")
        a(f"s_lshr_b32 s{sGRP}, s{sSLOT}, 3")
        a(f"s_cmp_lg_u32 s{sGRP}, 0")
        a(f"s_cselect_b32 s{sISB}, 1, 0")
        a(f"s_lshr_b32 s{sT1}, s{sGRP}, 1")
        a(f"s_lshl_b32 s{sT1}, s{sT1}, 3")
        a(f"s_add_u32 s{sH}, s{sX}, s{sT1}")
        a(f"s_add_u32 s{sT1}, s{sISB}, 3")
        a(f"s_lshl_b32 s{sPAIR}, s{sB}, s{sT1}")
        a(f"s_add_u32 s{sPAIR}, s{sPAIR}, s{sH}")
    def zero_flags(vz,va):
        a(f"v_mov_b32 v{vz}, 0")
        a(f"v_lshlrev_b32 v{va}, 2, v0")
        a(f"v_add_u32 v{va}, {MISC}, v{va}")
        a(f"ds_write_b32 v{va}, v{vz}")

    a.lab(KN)
    a("s_cmp_ge_u32 s2, 256")
    a("s_cbranch_scc1 L_end")
    a("v_lshrrev_b32 v1, 6, v0")
    a("v_and_b32 v0, 63, v0")
    a(f"s_mov_b32 s{sSP}, 0")
    a(f"v_readfirstlane_b32 s{sWAVE}, v1")
    a(f"s_cmp_lg_u32 s{sWAVE}, 0")
    a("s_cbranch_scc1 L_qw")
    a("s_cmp_ge_u32 s2, 192")
    a("s_cbranch_scc1 L_h0")
    a.c("---------------- loader wave ----------------")
    a(f"s_cmp_ge_u32 s2, 64")
    a(f"s_cselect_b32 s{sT0}, 40, 0")
    a(f"s_add_u32 s{sKA}, s0, s{sT0}")
    a(f"s_addc_u32 s{sKA+1}, s1, 0")
    a(f"s_load_dwordx4 s[{sP0}:{sP0+3}], s[{sKA}:{sKA+1}], 8")
    a("s_setprio 3")
    attn_decode()
    vZ=2; vA=3; vFA=4; vFV=5; vKO=8; vVO=16; vD=20
    zero_flags(vZ,vA)
    a(f"v_mov_b32 v{vFA}, {MISC}")
    a("v_lshrrev_b32 v6, 5, v0      ; hi")
    a("v_and_b32 v7, 31, v0        ; lo")
    for i in range(8):
        a(f"v_add_u32 v{vKO+i}, {2*i}, v6")
        a(f"v_xor_b32 v{vKO+i}, v{vKO+i}, v7")
        a(f"v_lshlrev_b32 v{vKO+i}, 4, v{vKO+i}")
        a(f"v_lshl_add_u32 v{vKO+i}, v6, 9, v{vKO+i}")
        if i>=4: a(f"v_add_u32 v{vKO+i}, 4096, v{vKO+i}")
    a(f"v_lshlrev_b32 v{vVO}, 4, v0")
    a(f"v_add_u32 v{vVO+1}, 4096, v{vVO}")
    a(f"s_lshl_b32 s{sT0}, s{sPAIR}, 21")
    a("s_waitcnt lgkmcnt(0)")
    a("s_barrier")
    a(f"s_add_u32 s{sSRD0}, s{sP0}, s{sT0}")
    a(f"s_addc_u32 s{sSRD0+1}, s{sP0+1}, 0")
    a(f"s_mov_b32 s{sSRD0+2}, 0x200000")
    a(f"s_mov_b32 s{sSRD0+3}, 0x20000")
    a(f"s_add_u32 s{sSRD1}, s{sP0+2}, s{sT0}")
    a(f"s_addc_u32 s{sSRD1+1}, s{sP0+3}, 0")
    a(f"s_mov_b32 s{sSRD1+2}, 0x200000")
    a(f"s_mov_b32 s{sSRD1+3}, 0x20000")
    sT=48; sAL=49; sSL=50; sOFF=51; sPUB=52; sLV=53; sPV=54; vLV=24
    a(f"s_mov_b32 s{sT}, 0")
    a(f"s_mov_b32 s{sAL}, {NS-4}")
    a(f"s_mov_b32 s{sSL}, {RING}")
    a(f"s_mov_b32 s{sPUB}, 0")
    a(f"s_mov_b32 s{sLV}, {DINIT}")
    a(f"v_mov_b32 v{vLV}, 0")
    ts(0)
    dstamp(8,True,mask=31)
    dstamp(9,mask=31)
    phases=[(sSRD0,[vKO+i for i in range(8)],256,pol,None)]
    if polVA==polVB: phases.append((sSRD1,[vVO]*4+[vVO+1]*4,512,polVA,None))
    else:
        phases.append((sSRD1,[vVO]*4+[vVO+1]*4,512,polVA,'A'))
        phases.append((sSRD1,[vVO]*4+[vVO+1]*4,512,polVB,'B'))
    for ph,(srd,vo,tend,pol,sel) in enumerate(phases):
        if sel=='A':
            a(f"s_cmp_eq_u32 s{sISB}, 1")
            a("s_cbranch_scc1 L_ld_VB")
        if sel=='B':
            a("s_branch L_ld_drain")
            a.lab("L_ld_VB")
        LT=f"L_ld_tile{ph}"; LG=f"L_ld_go{ph}"; LR=f"L_ld_ref{ph}"
        a(f"s_mov_b32 s{sOFF}, 0")
        a.lab(LT)
        if diag and ph==0:
            for tt,rg in ((NS-4,56),(NS,60)):
                a(f"s_cmp_lg_u32 s{sT}, {tt}")
                a(f"s_cbranch_scc1 L_tsx{tt}")
                a(f"s_memrealtime s[{rg}:{rg+1}]")
                a("s_waitcnt lgkmcnt(0)")
                a.lab(f"L_tsx{tt}")
        a(f"s_cmp_lt_u32 s{sT}, s{sAL}")
        a(f"s_cbranch_scc1 {LG}")
        a.lab(LR)
        a(f"ds_read_b128 v[{vD}:{vD+3}], v{vFA} offset:{DONE}")
        a("s_waitcnt lgkmcnt(0)")
        a(f"v_min_u32 v{vD}, v{vD}, v{vD+1}")
        a(f"v_min3_u32 v{vD}, v{vD}, v{vD+2}, v{vD+3}")
        a("s_nop 0")
        a(f"v_readfirstlane_b32 s{sAL}, v{vD}")
        a(f"s_lshl_b32 s{sAL}, s{sAL}, 2")
        a(f"s_add_u32 s{sAL}, s{sAL}, {NS-4}")
        a(f"s_cmp_lt_u32 s{sT}, s{sAL}")
        a(f"s_cbranch_scc1 {LG}")
        bound()
        a("s_sleep 1")
        a(f"s_branch {LR}")
        a.lab(LG)
        if diag and ph==0:
            for tt,rg in ((NS-4,58),(NS,62)):
                a(f"s_cmp_lg_u32 s{sT}, {tt}")
                a(f"s_cbranch_scc1 L_tsy{tt}")
                a(f"s_memrealtime s[{rg}:{rg+1}]")
                a("s_waitcnt lgkmcnt(0)")
                a.lab(f"L_tsy{tt}")
        def lwait(tag):
            Lgo=f"L_lw{ph}{tag}"
            dl=sorted(set(DLIST+[DINIT]),reverse=True)
            a(f"s_waitcnt vmcnt({dl[0]-4})")
            for k in range(len(dl)-1):
                a(f"s_cmp_ge_u32 s{sLV}, {dl[k]}")
                a(f"s_cbranch_scc1 {Lgo}")
                a(f"s_waitcnt vmcnt({dl[k+1]-4})")
            a.lab(Lgo)
        a("s_waitcnt lgkmcnt(0)")
        a(f"v_readfirstlane_b32 s{sLV}, v{vLV}")
        a(f"ds_read_b32 v{vLV}, v{vFA} offset:{DLEV}")
        a(f"s_max_u32 s{sLV}, s{sLV}, {DINIT}")
        a(f"s_mov_b32 m0, s{sSL}")
        lwait("a")
        for i in range(4):
            a(f"buffer_load_dwordx4 v{vo[i]}, s[{srd}:{srd+3}], s{sOFF} offen offset:{i*1024} {pol} lds")
        a(f"s_add_u32 m0, s{sSL}, 4096")
        a(f"s_add_u32 s{sPV}, s{sLV}, 7")
        a(f"s_lshr_b32 s{sPV}, s{sPV}, 3")
        a(f"s_sub_u32 s{sPV}, s{sT}, s{sPV}")
        a(f"s_add_u32 s{sPV}, s{sPV}, 1")
        a(f"s_max_i32 s{sPUB}, s{sPUB}, s{sPV}")
        a(f"v_mov_b32 v{vFV}, s{sPUB}")
        lwait("b")
        a(f"ds_write_b32 v{vFA}, v{vFV} offset:{FULL}")
        for i in range(4,8):
            a(f"buffer_load_dwordx4 v{vo[i]}, s[{srd}:{srd+3}], s{sOFF} offen offset:{(i-4)*1024} {pol} lds")
        a(f"s_add_u32 s{sOFF}, s{sOFF}, 8192")
        a(f"s_add_u32 s{sSL}, s{sSL}, 8192")
        a(f"s_cmp_eq_u32 s{sSL}, {RING+RINGB}")
        a(f"s_cselect_b32 s{sSL}, {RING}, s{sSL}")
        a(f"s_add_u32 s{sT}, s{sT}, 1")
        a(f"s_cmp_lt_u32 s{sT}, {tend}")
        a(f"s_cbranch_scc1 {LT}")
        if ph==0: ts(1)
        if ph==0: dstamp(10,mask=7)
    a.lab("L_ld_drain")
    for k in range((max(DLIST)+7)//8*8-8,-1,-8):
        a(f"v_mov_b32 v{vFV}, {512-k//8}")
        a(f"s_waitcnt vmcnt({k})")
        a(f"ds_write_b32 v{vFA}, v{vFV} offset:{FULL}")
    ts(2)
    dstamp(11)
    ts_dump([0,1,2])
    if diag:
        for k,rg in enumerate((56,58,60,62)):
            a(f"v_mov_b32 v252, s{rg}")
            a(f"v_mov_b32 v253, s{rg+1}")
            a(f"global_store_dwordx2 v250, v[252:253], s[{sTS1}:{sTS1+1}] offset:{(10+k)*8}")
            a("s_nop 1")
    a("s_endpgm")
    a.lab("L_qw")
    a.c("---------------- distributed q projection ----------------")
    a(f"s_lshr_b32 s{sT0}, s2, 7")
    a(f"s_mul_i32 s{sT0}, s{sT0}, 40")
    a(f"s_add_u32 s{sKA}, s0, s{sT0}")
    a(f"s_addc_u32 s{sKA+1}, s1, 0")
    a(f"s_load_dwordx2 s[{sP0}:{sP0+1}], s[{sKA}:{sKA+1}], 0    ; x")
    a(f"s_load_dwordx2 s[{sP0+2}:{sP0+3}], s[{sKA}:{sKA+1}], 24   ; wq")
    a(f"s_load_dwordx4 s[{sDBG}:{sDBG+3}], s[0:1], 88")
    a(f"s_sub_u32 s{sW1}, s{sWAVE}, 1")
    vN=2; vG=3; vS16=4; vXO=8; vWO=9; vX=10; vFL=14; vONE=15; vAO=16; vAC=24; vWq=40
    a(f"v_and_b32 v{vN}, 15, v0")
    a(f"v_lshrrev_b32 v{vG}, 4, v0")
    a(f"s_and_b32 s{sT0}, s2, 3")
    a(f"s_mul_i32 s{sT0}, s{sT0}, 112")
    a(f"s_lshl_b32 s{sT1}, s{sW1}, 4")
    a(f"s_add_u32 s{sT0}, s{sT0}, s{sT1}       ; row0")
    a(f"v_lshl_add_u32 v16, v{vG}, 2, s{sT0}    ; row0+4g")
    a(f"v_lshrrev_b32 v{vXO}, 2, v{vN}")
    a(f"v_mul_u32_u24 v{vXO}, 896, v{vXO}")
    a(f"v_lshl_add_u32 v{vXO}, v16, 1, v{vXO}")
    a(f"s_lshr_b32 s{sT1}, s2, 2")
    a(f"s_and_b32 s{sT1}, s{sT1}, 31")
    a(f"s_lshl_b32 s{sT1}, s{sT1}, 8")
    a(f"v_lshlrev_b32 v{vWO}, 13, v16")
    a(f"v_lshl_add_u32 v{vWO}, v{vN}, 4, v{vWO}")
    a(f"v_add_u32 v{vWO}, s{sT1}, v{vWO}")
    a(f"s_mov_b32 s56, 8192")
    a(f"s_mov_b32 s57, 16384")
    a(f"s_mov_b32 s58, 24576")
    a(f"v_mov_b32 v{vFL}, {MISC}")
    a(f"v_mov_b32 v{vONE}, 1")
    a("s_waitcnt lgkmcnt(0)")
    if not qfirst: a("s_barrier")
    a(f"s_load_dword s{sTAG}, s[{sWS}:{sWS+1}], {E_OFF}")
    a(f"s_mov_b32 s{sSRD1}, s{sP0+2}")
    a(f"s_mov_b32 s{sSRD1+1}, s{sP0+3}")
    a(f"s_mov_b32 s{sSRD1+2}, 3670016")
    a(f"s_mov_b32 s{sSRD1+3}, 0x20000")
    a(f"s_mov_b32 s{sSRD0}, s{sP0}")
    a(f"s_mov_b32 s{sSRD0+1}, s{sP0+1}")
    a(f"s_mov_b32 s{sSRD0+2}, 7168")
    a(f"s_mov_b32 s{sSRD0+3}, 0x20000")
    so=["0","s56","s57","s58"]
    for j in range(4):
        a(f"buffer_load_dwordx4 v[{vWq+4*j}:{vWq+4*j+3}], v{vWO}, s[{sSRD1}:{sSRD1+3}], {so[j]} offen {wqpol}")
    for u in range(2):
        a(f"buffer_load_dwordx2 v[{vX+2*u}:{vX+2*u+1}], v{vXO}, s[{sSRD0}:{sSRD0+3}], 0 offen offset:{u*3584}")
    if qfirst: a("s_barrier")
    a(f"v_and_b32 v16, 1, v{vN}")
    a(f"v_cmp_eq_u32 vcc, 1, v16")
    a(f"v_mov_b32 v17, 0x0c0c0100")
    a(f"v_mov_b32 v18, 0x01000c0c")
    a(f"v_cndmask_b32 v17, v17, v18, vcc")
    a(f"v_mov_b32 v18, 0x0c0c0302")
    a(f"v_mov_b32 v19, 0x03020c0c")
    a(f"v_cndmask_b32 v18, v18, v19, vcc")
    a(f"v_bfe_u32 v16, v{vN}, 1, 1")
    a(f"v_mov_b32 v19, 0x0c0c0c0c")
    for t in range(2):
        a(f"v_cmp_eq_u32 vcc, {t}, v16")
        a("s_nop 1")
        a(f"v_cndmask_b32 v{vS16+t}, v19, v17, vcc")
        a(f"v_cndmask_b32 v{vS16+2+t}, v19, v18, vcc")
    a(f"s_lshl_b32 s{sT0}, s{sW1}, 12")
    a(f"s_add_u32 s{sT0}, s{sT0}, {QPART}")
    a(f"v_lshlrev_b32 v56, 9, v{vG}")
    a(f"v_lshl_add_u32 v56, v{vN}, 5, v56")
    a(f"v_add_u32 v56, s{sT0}, v56")
    a("s_waitcnt vmcnt(0)")
    for j in range(4):
        for u in range(2):
            ao=vAO+4*(j&1)+2*u
            for t in range(2):
                a(f"v_perm_b32 v{ao+t}, v{vX+2*u+(j>>1)}, v{vX+2*u+(j>>1)}, v{vS16+2*(j&1)+t}")
        a("s_nop 0")
        for u in range(2):
            ao=vAO+4*(j&1)+2*u
            for hf in range(2):
                acc=vAC+8*u+4*hf
                cin="0" if j==0 else f"v[{acc}:{acc+3}]"
                a(f"v_mfma_f32_16x16x16_bf16 v[{acc}:{acc+3}], v[{ao}:{ao+1}], v[{vWq+4*j+2*hf}:{vWq+4*j+2*hf+1}], {cin}")
    ts(8)
    a("s_nop 7")
    a("s_nop 0")
    for u in range(2):
        for hf in range(2):
            acc=vAC+8*u+4*hf
            a(f"ds_write_b128 v56, v[{acc}:{acc+3}] offset:{u*2048+hf*16}")
    signal(vFL,CQ1,vONE)
    a(f"s_cmp_gt_u32 s{sWAVE}, 4")
    a("s_cbranch_scc0 L_qred")
    a("s_cmp_ge_u32 s2, 192")
    a("s_cbranch_scc1 L_hout")
    a("s_endpgm")
    a.lab("L_qred")
    vT=24
    a("v_lshrrev_b32 v16, 5, v0")
    a("v_and_b32 v17, 31, v0")
    a(f"s_lshl_b32 s{sT0}, s{sW1}, 1")
    a(f"v_add_u32 v16, s{sT0}, v16           ; batch")
    a(f"v_lshlrev_b32 v18, 9, v16")
    a(f"v_lshl_add_u32 v18, v17, 4, v18")
    a(f"v_add_u32 v18, {QPART}, v18")
    a(f"s_lshl_b32 s{sT0}, s2, 13")
    a(f"s_add_u32 s{sT0}, s{sT0}, {QP_OFF}")
    a(f"v_lshlrev_b32 v19, 10, v16")
    a(f"v_lshl_add_u32 v19, v17, 4, v19")
    a(f"v_add_u32 v19, s{sT0}, v19")
    spin_ge(vFL,CQ1,7,vT)
    for w in range(7):
        a(f"ds_read_b128 v[{40+4*w}:{43+4*w}], v18 offset:{w*4096}")
    a(f"s_add_u32 s{sTAG}, s{sTAG}, 0x9e3779b1")
    a(f"s_lshl_b32 s{sT0}, s{sW1}, 2")
    a(f"s_add_u32 s{sT0}, s{sT0}, {MISC+DONE}")
    a(f"v_mov_b32 v20, s{sT0}")
    a("s_waitcnt lgkmcnt(0)")
    a(f"ds_write_b32 v20, v{vONE}")
    for k in range(4):
        a(f"v_add_f32 v{40+k}, v{40+k}, v{44+k}")
        a(f"v_add_f32 v{48+k}, v{48+k}, v{52+k}")
        a(f"v_add_f32 v{56+k}, v{56+k}, v{60+k}")
    for k in range(4):
        a(f"v_add_f32 v{40+k}, v{40+k}, v{48+k}")
        a(f"v_add_f32 v{56+k}, v{56+k}, v{64+k}")
    for k in range(4):
        a(f"v_add_f32 v{68+2*k}, v{40+k}, v{56+k}")
        a(f"v_mov_b32 v{69+2*k}, s{sTAG}")
    a(f"global_store_dwordx4 v19, v[68:71], s[{sWS}:{sWS+1}] sc1")
    a(f"global_store_dwordx4 v19, v[72:75], s[{sWS}:{sWS+1}] offset:512 sc1")
    ts(9)
    a("s_cmp_ge_u32 s2, 192")
    a("s_cbranch_scc1 L_hout")
    a.c("---------------- consumers ----------------")
    attn_decode()
    vSEL=4
    a(f"v_and_b32 v16, 7, v{vN}")
    a(f"v_lshrrev_b32 v17, 1, v16      ; te")
    a(f"v_and_b32 v16, 1, v16          ; par")
    a(f"v_cmp_eq_u32 vcc, 1, v16")
    a(f"v_mov_b32 v18, 0x0c0c0100")
    a(f"v_mov_b32 v19, 0x01000c0c")
    a(f"v_cndmask_b32 v18, v18, v19, vcc")
    a(f"v_mov_b32 v19, 0x0c0c0302")
    a(f"v_mov_b32 v20, 0x03020c0c")
    a(f"v_cndmask_b32 v19, v19, v20, vcc")
    a(f"v_mov_b32 v20, 0x0c0c0c0c")
    for t in range(4):
        a(f"v_cmp_eq_u32 vcc, {t}, v17")
        a("s_nop 1")
        a(f"v_cndmask_b32 v{vSEL+t}, v20, v18, vcc")
        a(f"v_cndmask_b32 v{vSEL+4+t}, v20, v19, vcc")
    a(f"s_cmp_eq_u32 s{sISB}, 1")
    a("s_cbranch_scc0 L_qg")
    a(f"s_cmp_ge_u32 s{sW1}, 2")
    a("s_cbranch_scc1 L_qg_done")
    a.lab("L_qg")
    a(f"s_sub_u32 s{sT1}, 2, s{sISB}")
    a(f"s_lshl_b32 s{sT0}, s{sH}, s{sT1}")
    a(f"s_add_u32 s{sT0}, s{sT0}, s{sW1}      ; c")
    a(f"s_lshl_b32 s{sT1}, s{sISB}, 5")
    a(f"s_add_u32 s{sT0}, s{sT0}, s{sT1}      ; m*32+c")
    a(f"s_lshl_b32 s{sT0}, s{sT0}, 15         ; *4*8192")
    a(f"s_lshl_b32 s{sT1}, s{sB}, 10")
    a(f"s_add_u32 s{sT0}, s{sT0}, s{sT1}")
    a(f"s_add_u32 s{sT0}, s{sT0}, {QP_OFF}")
    a(f"v_lshlrev_b32 v16, 4, v0")
    a(f"v_add_u32 v16, s{sT0}, v16")
    for kq in range(1,4): a(f"v_add_u32 v{16+kq}, {kq*8192}, v16")
    PA=160; PB=176
    def issue(base):
        for kq in range(4):
            a(f"global_load_dwordx4 v[{base+4*kq}:{base+4*kq+3}], v{16+kq}, s[{sWS}:{sWS+1}] sc1")
    def check(base,lab):
        a(f"v_xor_b32 v20, s{sTAG}, v{base+1}")
        for r in (3,5,7,9,11,13,15):
            a(f"v_xor_b32 v21, s{sTAG}, v{base+r}")
            a(f"v_or_b32 v20, v20, v21")
        a("v_cmp_eq_u32 vcc, 0, v20")
        a("s_nop 1")
        a("s_cmp_eq_u64 vcc, -1")
        a(f"s_cbranch_scc1 {lab}")
    def qsum(base):
        a(f"v_add_f32 v32, v{base}, v{base+4}")
        a(f"v_add_f32 v34, v{base+2}, v{base+6}")
        a(f"v_add_f32 v40, v{base+8}, v{base+12}")
        a(f"v_add_f32 v42, v{base+10}, v{base+14}")
    if qwait: spin_ge(vFL,FULL,qwait,vT,signed=True)
    issue(PA)
    if qsleep: a(f"s_sleep {qsleep}")
    a.lab("L_qg_poll")
    issue(PB)
    a("s_waitcnt vmcnt(4)")
    check(PA,"L_qg_gotA")
    issue(PA)
    a("s_waitcnt vmcnt(4)")
    check(PB,"L_qg_gotB")
    bound()
    a("s_branch L_qg_poll")
    a.lab("L_qg_gotB")
    qsum(PB)
    a("s_branch L_qg_got")
    a.lab("L_qg_gotA")
    qsum(PA)
    a.lab("L_qg_got")
    a("v_add_f32 v32, v32, v40")
    a("v_add_f32 v34, v34, v42")
    a("v_cvt_pk_bf16_f32 v32, v32, v34")
    a("v_and_b32 v20, 31, v0")
    a("v_lshrrev_b32 v21, 5, v0")
    a("v_lshlrev_b32 v20, 3, v20")
    a("v_lshl_add_u32 v20, v21, 2, v20")
    a(f"s_lshl_b32 s{sT0}, s{sW1}, 8")
    a(f"s_add_u32 s{sT0}, s{sT0}, {MISC+QL}")
    a(f"v_add_u32 v20, s{sT0}, v20")
    a("ds_write_b32 v20, v32")
    a.lab("L_qg_done")
    ts(7)
    signal(vFL,CQ2,vONE)
    spin_ge(vFL,CQ2,4,vT)
    vQF=32
    a(f"s_cmp_eq_u32 s{sISB}, 1")
    a(f"s_cselect_b32 s{sT0}, 0, 512")
    a(f"v_lshrrev_b32 v25, 3, v{vN}       ; qh")
    a(f"v_mul_lo_u32 v26, v25, s{sT0}")
    a(f"v_lshl_add_u32 v26, v{vG}, 4, v26")
    a(f"v_add_u32 v26, {MISC+QL}, v26")
    for s in range(8):
        a(f"ds_read_b128 v[{vQF+4*s}:{vQF+4*s+3}], v26 offset:{s*64}")
    vKA=64; vKF=72; vS=104
    vMAX=108; vSA=109; vDN=110; vDV=111; vQH=112
    a(f"v_mov_b32 v{vQH}, v25")
    for s in range(4):
        a(f"v_and_b32 v26, 12, v{vN}")
        a(f"v_xor_b32 v26, {4*s}, v26")
        a(f"v_and_b32 v27, 3, v{vN}")
        a(f"v_xor_b32 v27, v27, v{vG}")
        a(f"v_add_u32 v26, v26, v27")
        a(f"v_lshlrev_b32 v26, 4, v26")
        a(f"v_lshl_add_u32 v{vKA+s}, v{vN}, 9, v26")
    a(f"s_lshl_b32 s{sT0}, s{sW1}, 12")
    a(f"s_add_u32 s{sT0}, s{sT0}, {SBUF}")
    a(f"v_lshlrev_b32 v{vSA}, 5, v{vQH}")
    a(f"v_lshl_add_u32 v{vSA}, v{vG}, 3, v{vSA}")
    a(f"v_add_u32 v{vSA}, s{sT0}, v{vSA}")
    a(f"v_mov_b32 v{vMAX}, 0xff800000")
    a(f"s_lshl_b32 s{sT0}, s{sW1}, 2")
    a(f"s_add_u32 s{sT0}, s{sT0}, {MISC+DONE}")
    a(f"v_mov_b32 v{vDN}, s{sT0}")
    sTT=48; sFU=49; sSLO=50; sJ1=51; sMASK=52; sC=55
    a(f"s_mov_b32 s{sTT}, s{sW1}")
    a(f"s_mov_b32 s{sFU}, 0")
    a(f"s_lshl_b32 s{sSLO}, s{sW1}, 13")
    a(f"s_mov_b32 s{sJ1}, 2")
    a(f"s_mov_b32 s{sMASK}, 0x01010101")
    a(f"s_mov_b32 s{sMASK+1}, 0x01010101")
    a(f"v_mov_b32 v26, {DNORM}")
    a(f"ds_write_b32 v{vFL}, v26 offset:{DLEV}")
    a("s_waitcnt lgkmcnt(0)")
    ts(3)
    dstamp(12,mask=15)
    PR_OFF=0x38000
    vPA=200; vPS=201; vPD=202; vSM=204
    if fb:
        a(f"s_lshl_b32 s{sT0}, s2, 3")
        a(f"s_add_u32 s{sT0}, s{sT0}, {PR_OFF}")
        a(f"v_mov_b32 v{vPA}, s{sT0}")
        a(f"v_mul_u32_u24 v{vPS}, 3, v0")
        a(f"v_add_u32 v{vPS}, s2, v{vPS}")
        a(f"v_subrev_u32 v26, 192, v{vPS}")
        a(f"v_cmp_gt_u32 vcc, 192, v{vPS}")
        a(f"v_mov_b32 v{vPD+1}, s{sTAG}")
        a(f"v_not_b32 v{vSM+1}, v{vPD+1}")
        a(f"v_cndmask_b32 v{vPS}, v26, v{vPS}, vcc")
        a(f"v_lshlrev_b32 v{vPS}, 3, v{vPS}")
        a(f"v_add_u32 v{vPS}, {PR_OFF}, v{vPS}")
    def feedback(tag):
        if not fb: return
        Ls=f"L_fb_skip{tag}"; Li=f"L_fb_issue{tag}"
        a(f"s_cmp_lg_u32 s{sW1}, 0")
        a(f"s_cbranch_scc1 {Ls}")
        a(f"v_mov_b32 v{vPD}, s{sTT}")
        a("s_mov_b64 exec, 1")
        a(f"global_store_dwordx2 v{vPA}, v[{vPD}:{vPD+1}], s[{sWS}:{sWS+1}] sc1")
        a("s_mov_b64 exec, -1")
        a(f"s_and_b32 s56, s{sJ1}, {fbp-1}")
        a(f"s_cmp_lg_u32 s56, 0")
        a(f"s_cbranch_scc1 {Ls}")
        a("s_waitcnt vmcnt(1)")
        a(f"v_readfirstlane_b32 s62, v{vSM}")
        a(f"v_cmp_eq_u32 s[56:57], s{sTAG}, v{vSM+1}")
        a("s_nop 0")
        a(f"v_cmp_lt_i32 s[58:59], v{vSM}, s62")
        a(f"v_cmp_gt_i32 s[60:61], v{vSM}, s62")
        a(f"s_bitcmp1_b64 s[56:57], 0")
        a(f"s_cbranch_scc0 {Li}")
        a(f"s_and_b64 s[58:59], s[58:59], s[56:57]")
        a(f"s_and_b64 s[60:61], s[60:61], s[56:57]")
        a(f"s_bcnt1_i32_b64 s62, s[58:59]")
        a(f"s_bcnt1_i32_b64 s63, s[60:61]")
        a(f"s_sub_i32 s62, s62, s63")
        a(f"s_mov_b32 s63, {DNORM}")
        a(f"s_cmp_gt_i32 s62, {th1}")
        a(f"s_cselect_b32 s63, {DNORM-dstep}, s63")
        a(f"s_cmp_gt_i32 s62, {th2}")
        a(f"s_cselect_b32 s63, {DNORM-2*dstep}, s63")
        a(f"s_cmp_lt_i32 s62, {-th1}")
        a(f"s_cselect_b32 s63, {DNORM+dstep}, s63")
        a(f"s_cmp_lt_i32 s62, {-th2}")
        a(f"s_cselect_b32 s63, {DNORM+2*dstep}, s63")
        a(f"v_mov_b32 v{vPD}, s63")
        a(f"ds_write_b32 v{vFL}, v{vPD} offset:{DLEV}")
        a.lab(Li)
        a(f"global_load_dwordx2 v[{vSM}:{vSM+1}], v{vPS}, s[{sWS}:{sWS+1}] sc1")
        a.lab(Ls)
    def wait_full(tag):
        Lg=f"L_{tag}_go"; Ls=f"L_{tag}_spin"
        a(f"s_cmp_gt_i32 s{sFU}, s{sTT}")
        a(f"s_cbranch_scc1 {Lg}")
        a.lab(Ls)
        a(f"ds_read_b32 v{vT}, v{vFL} offset:{FULL}")
        a("s_waitcnt lgkmcnt(0)")
        a(f"v_readfirstlane_b32 s{sFU}, v{vT}")
        a(f"s_cmp_gt_i32 s{sFU}, s{sTT}")
        a(f"s_cbranch_scc1 {Lg}")
        bound()
        if spin_sleep: a(f"s_sleep {spin_sleep}")
        a(f"s_branch {Ls}")
        a.lab(Lg)
    def advance():
        a(f"s_add_u32 s{sTT}, s{sTT}, 4")
        a(f"s_add_u32 s{sSLO}, s{sSLO}, {4*8192}")
        a(f"s_cmp_ge_u32 s{sSLO}, {RINGB}")
        a(f"s_cselect_b32 s{sT0}, {RINGB}, 0")
        a(f"s_sub_u32 s{sSLO}, s{sSLO}, s{sT0}")
        a(f"s_add_u32 s{sJ1}, s{sJ1}, 1")
    a.lab("L_K")
    wait_full("K")
    for s in range(4): a(f"v_add_u32 v{vKA+4+s}, s{sSLO}, v{vKA+s}")
    for s in range(8):
        a(f"ds_read_b128 v[{vKF+4*s}:{vKF+4*s+3}], v{vKA+4+(s&3)} offset:{RING+(s>>2)*256}")
    a(f"v_mov_b32 v{vDV}, s{sJ1}")
    for s in range(8):
        a(f"s_waitcnt lgkmcnt({7-s})")
        if s==7: a(f"ds_write_b32 v{vDN}, v{vDV}")
        cin="0" if s==0 else f"v[{vS}:{vS+3}]"
        a(f"v_mfma_f32_16x16x32_bf16 v[{vS}:{vS+3}], v[{vKF+4*s}:{vKF+4*s+3}], v[{vQF+4*s}:{vQF+4*s+3}], {cin}")
    advance()
    a("s_nop 3")
    a(f"v_max3_f32 v{vMAX}, v{vMAX}, v{vS}, v{vS+1}")
    a(f"v_max3_f32 v{vMAX}, v{vMAX}, v{vS+2}, v{vS+3}")
    a(f"v_cvt_pk_bf16_f32 v{vS}, v{vS}, v{vS+1}")
    a(f"v_cvt_pk_bf16_f32 v{vS+1}, v{vS+2}, v{vS+3}")
    a(f"s_mov_b64 exec, s[{sMASK}:{sMASK+1}]")
    a(f"ds_write_b64 v{vSA}, v[{vS}:{vS+1}]")
    a("s_mov_b64 exec, -1")
    a(f"v_add_u32 v{vSA}, 64, v{vSA}")
    feedback("K")
    a(f"s_cmp_lt_u32 s{sTT}, 256")
    a("s_cbranch_scc1 L_K")
    ts(4)
    a(f"s_lshl_b32 s{sT0}, s{sW1}, 4")
    a(f"s_add_u32 s{sT0}, s{sT0}, {MISC+MX}")
    a(f"v_lshlrev_b32 v26, 6, v{vQH}")
    a(f"v_lshl_add_u32 v27, v{vG}, 2, v26")
    a(f"v_add_u32 v27, s{sT0}, v27")
    a(f"s_mov_b64 exec, s[{sMASK}:{sMASK+1}]")
    a(f"ds_write_b32 v27, v{vMAX}")
    a("s_mov_b64 exec, -1")
    signal(vFL,CMX,vONE)
    spin_ge(vFL,CMX,4,vT)
    a(f"v_add_u32 v26, {MISC+MX}, v26")
    for k in range(4): a(f"ds_read_b128 v[{72+4*k}:{75+4*k}], v26 offset:{k*16}")
    a(f"v_subrev_u32 v{vSA}, {64*64}, v{vSA}")
    a("s_waitcnt lgkmcnt(0)")
    a("v_max3_f32 v72, v72, v73, v74")
    for k in range(75,87,2): a(f"v_max3_f32 v72, v72, v{k}, v{k+1}")
    a("v_max_f32 v72, v72, v87")
    vNM=113; vL=114; vVA=115; vVC=116; vW=118
    a(f"s_mov_b32 s{sC}, {CEXP:#x}")
    a(f"v_mul_f32 v{vNM}, s{sC}, v72")
    a(f"v_sub_f32 v{vNM}, 0, v{vNM}")
    a(f"v_mov_b32 v{vL}, 0")
    a(f"v_lshlrev_b32 v{vVA}, 11, v{vG}")
    a(f"v_lshl_add_u32 v{vVA}, v{vN}, 4, v{vVA}")
    vO=120
    for k in range(8): a(f"v_mov_b32 v{vO+k}, 0")
    vVF=72; vP=104; vAP=128
    a.lab("L_V")
    a(f"ds_read_b64 v[{vW}:{vW+1}], v{vSA}")
    wait_full("V")
    a(f"v_add_u32 v{vVC}, s{sSLO}, v{vVA}")
    for r in range(4):
        for h in range(2):
            b=vVF+4*(2*r+h)
            a(f"ds_read_b128 v[{b}:{b+3}], v{vVC} offset:{RING+r*512+h*256}")
    a("s_waitcnt lgkmcnt(8)")
    a(f"v_lshlrev_b32 v{vP}, 16, v{vW}")
    a(f"v_and_b32 v{vP+1}, 0xffff0000, v{vW}")
    a(f"v_lshlrev_b32 v{vP+2}, 16, v{vW+1}")
    a(f"v_and_b32 v{vP+3}, 0xffff0000, v{vW+1}")
    for r in range(4): a(f"v_fma_f32 v{vP+r}, v{vP+r}, s{sC}, v{vNM}")
    for r in range(4): a(f"v_exp_f32 v{vP+r}, v{vP+r}")
    a(f"v_add_u32 v{vSA}, 64, v{vSA}")
    a(f"v_cvt_pk_bf16_f32 v{vW}, v{vP}, v{vP+1}")
    a(f"v_cvt_pk_bf16_f32 v{vW+1}, v{vP+2}, v{vP+3}")
    a(f"v_add_f32 v{vP}, v{vP}, v{vP+1}")
    a(f"v_add_f32 v{vP+2}, v{vP+2}, v{vP+3}")
    a(f"v_add_f32 v{vL}, v{vL}, v{vP}")
    a(f"v_add_f32 v{vL}, v{vL}, v{vP+2}")
    for r in range(4):
        for t in range(4):
            a(f"v_perm_b32 v{vAP+4*r+t}, v{vW+(r>>1)}, v{vW+(r>>1)}, v{vSEL+4*(r&1)+t}")
    a(f"v_mov_b32 v{vDV}, s{sJ1}")
    a("s_waitcnt lgkmcnt(0)")
    a(f"ds_write_b32 v{vDN}, v{vDV}")
    for r in range(4):
        for h in range(2):
            b=vVF+4*(2*r+h)
            a(f"v_mfma_f32_16x16x32_bf16 v[{vO+4*h}:{vO+4*h+3}], v[{vAP+4*r}:{vAP+4*r+3}], v[{b}:{b+3}], v[{vO+4*h}:{vO+4*h+3}]")
    advance()
    feedback("V")
    a(f"s_cmp_lt_u32 s{sTT}, 512")
    a("s_cbranch_scc1 L_V")
    ts(5)
    a(f"s_lshl_b32 s{sT0}, s{sW1}, 12")
    a(f"s_add_u32 s{sT0}, s{sT0}, {SBUF}")
    a(f"v_lshrrev_b32 v26, 1, v{vG}")
    a(f"v_lshlrev_b32 v26, 10, v26")
    a(f"v_and_b32 v27, 1, v{vG}")
    a(f"v_lshl_add_u32 v26, v27, 4, v26")
    a(f"v_lshl_add_u32 v26, v{vN}, 5, v26")
    a(f"v_add_u32 v26, s{sT0}, v26")
    a(f"s_lshl_b32 s{sT0}, s{sW1}, 4")
    a(f"s_add_u32 s{sT0}, s{sT0}, {MISC+LS}")
    a(f"v_lshlrev_b32 v27, 6, v{vQH}")
    a(f"v_lshl_add_u32 v27, v{vG}, 2, v27")
    a(f"v_add_u32 v27, s{sT0}, v27")
    a("s_nop 1")
    a(f"ds_write_b128 v26, v[{vO}:{vO+3}]")
    a(f"ds_write_b128 v26, v[{vO+4}:{vO+7}] offset:512")
    a(f"s_mov_b64 exec, s[{sMASK}:{sMASK+1}]")
    a(f"ds_write_b32 v27, v{vL}")
    a("s_mov_b64 exec, -1")
    a("s_waitcnt lgkmcnt(0)")
    a("s_mov_b64 exec, 1")
    a(f"ds_add_rtn_u32 v{vT}, v{vFL}, v{vONE} offset:{CFIN}")
    a("s_mov_b64 exec, -1")
    a("s_waitcnt lgkmcnt(0)")
    a(f"v_readfirstlane_b32 s{sT0}, v{vT}")
    a(f"s_cmp_eq_u32 s{sT0}, 3")
    a("s_cbranch_scc0 L_end")
    a("v_lshrrev_b32 v25, 5, v0")
    a("v_and_b32 v28, 31, v0")
    a("v_lshlrev_b32 v26, 10, v25")
    a("v_lshl_add_u32 v26, v28, 5, v26")
    a(f"v_add_u32 v26, {SBUF}, v26")
    for w in range(4):
        a(f"ds_read_b128 v[{32+8*w}:{35+8*w}], v26 offset:{w*4096}")
        a(f"ds_read_b128 v[{36+8*w}:{39+8*w}], v26 offset:{w*4096+16}")
    a("v_lshlrev_b32 v27, 6, v25")
    a(f"v_add_u32 v27, {MISC+LS}, v27")
    for k in range(4): a(f"ds_read_b128 v[{64+4*k}:{67+4*k}], v27 offset:{k*16}")
    a(f"s_lshl_b32 s{sT0}, s{sISB}, 16")
    a(f"s_lshl_b32 s{sT1}, s{sB}, 13")
    a(f"s_add_u32 s{sT0}, s{sT0}, s{sT1}")
    a(f"s_sub_u32 s{sT1}, 10, s{sISB}")
    a(f"s_lshl_b32 s{sT1}, s{sH}, s{sT1}")
    a(f"s_add_u32 s{sT0}, s{sT0}, s{sT1}")
    a(f"s_add_u32 s{sT0}, s{sT0}, {O_OFF}")
    a(f"v_lshlrev_b32 v29, 4, v0")
    a(f"v_add_u32 v29, s{sT0}, v29")
    a("s_waitcnt lgkmcnt(0)")
    for k in range(8):
        a(f"v_add_f32 v{32+k}, v{32+k}, v{40+k}")
        a(f"v_add_f32 v{48+k}, v{48+k}, v{56+k}")
    for k in range(8): a(f"v_add_f32 v{32+k}, v{32+k}, v{48+k}")
    for k in range(8): a(f"v_add_f32 v{64+k}, v{64+k}, v{72+k}")
    for k in range(4): a(f"v_add_f32 v{64+k}, v{64+k}, v{68+k}")
    a("v_add_f32 v64, v64, v65")
    a("v_add_f32 v66, v66, v67")
    a("v_add_f32 v64, v64, v66")
    a("v_rcp_f32 v64, v64")
    a("s_nop 0")
    for k in range(8): a(f"v_mul_f32 v{32+k}, v{32+k}, v64")
    for k in range(4): a(f"v_cvt_pk_bf16_f32 v{32+k}, v{32+2*k}, v{33+2*k}")
    a(f"s_cmp_eq_u32 s{sISB}, 1")
    a(f"s_cselect_b32 exec_hi, 0, -1")
    a(f"global_store_dwordx4 v29, v[32:35], s[{sWS}:{sWS+1}] sc1")
    a(f"s_lshl_b32 s{sT0}, s{sISB}, 7")
    a(f"s_lshl_b32 s{sT1}, s{sH}, 2")
    a(f"s_add_u32 s{sT0}, s{sT0}, s{sT1}")
    a(f"v_mov_b32 v29, s{sT0}")
    a("s_waitcnt vmcnt(0)")
    a("s_mov_b64 exec, 1")
    a(f"global_atomic_add v29, v{vONE}, s[{sDBG}:{sDBG+1}] sc1")
    ts(6)
    ts_dump([3,4,5,6,7,8,9])
    a("s_endpgm")
    a.lab("L_h0")
    a.c("helper wave 0: flag init, pointers")
    a(f"s_load_dwordx4 s[{sDBG}:{sDBG+3}], s[0:1], 88")
    zero_flags(2,3)
    a("s_waitcnt lgkmcnt(0)")
    a("s_barrier")
    a.lab("L_hout")
    a.c("---------------- helpers: out projection ----------------")
    sHJ=54
    vN=2; vG=3
    a(f"s_sub_u32 s{sHJ}, s2, 192")
    a(f"s_and_b32 s{sX}, s{sHJ}, 7")
    a(f"s_lshr_b32 s{sT1}, s{sHJ}, 3")
    a(f"s_and_b32 s{sSLOT}, s{sT1}, 3     ; sub")
    a(f"s_lshr_b32 s{sT1}, s{sHJ}, 5      ; hi")
    a(f"s_lshl_b32 s{sT1}, s{sT1}, 3")
    a(f"s_add_u32 s{sGRP}, s{sT1}, s{sX}   ; gamma")
    a(f"s_cmp_ge_u32 s{sGRP}, 14")
    a("s_cbranch_scc1 L_h_idle")
    a(f"s_cmp_ge_u32 s{sGRP}, 7")
    a(f"s_cselect_b32 s{sISB}, 1, 0")
    a(f"s_cselect_b32 s{sT0}, 40, 0")
    a(f"s_cselect_b32 s{sT1}, 7, 0")
    a(f"s_add_u32 s{sKA}, s0, s{sT0}")
    a(f"s_addc_u32 s{sKA+1}, s1, 0")
    a(f"s_sub_u32 s{sGRP}, s{sGRP}, s{sT1}")
    a(f"s_lshl_b32 s{sH}, s{sGRP}, 2")
    a(f"s_add_u32 s{sH}, s{sH}, s{sSLOT}")
    a(f"s_load_dwordx2 s[{sP0}:{sP0+1}], s[{sKA}:{sKA+1}], 32   ; wo")
    a(f"s_load_dwordx2 s[{sOUT}:{sOUT+1}], s[0:1], 80")
    a(f"v_and_b32 v{vN}, 15, v0")
    a(f"v_lshrrev_b32 v{vG}, 4, v0")
    a(f"s_mul_i32 s{sT0}, s{sWAVE}, {512*896}")
    a(f"s_lshl_b32 s{sT1}, s{sH}, 5")
    a(f"s_add_u32 s{sT0}, s{sT0}, s{sT1}")
    a(f"v_mul_u32_u24 v4, {8*896}, v{vG}")
    a(f"v_lshl_add_u32 v4, v{vN}, 1, v4")
    a(f"v_add_u32 v4, s{sT0}, v4")
    a(f"v_add_u32 v5, {4*896}, v4")
    a("s_waitcnt lgkmcnt(0)")
    a(f"s_mov_b32 s{sSRD0}, s{sP0}")
    a(f"s_mov_b32 s{sSRD0+1}, s{sP0+1}")
    a(f"s_mov_b32 s{sSRD0+2}, 3670016")
    a(f"s_mov_b32 s{sSRD0+3}, 0x20000")
    vWT=64; vTMP=128
    for ch in range(4 if not nowo else 0):
        for si in range(4):
            s_=ch*4+si
            a(f"s_mov_b32 s{sT0}, {s_*32*896}")
            for e in range(8):
                a(f"buffer_load_ushort v{vTMP+si*8+e}, v{4+(e>>2)}, s[{sSRD0}:{sSRD0+3}], s{sT0} offen offset:{(e&3)*896} {wopol}")
        a("s_waitcnt vmcnt(0)")
        for si in range(4):
            s_=ch*4+si
            for q in range(4):
                a(f"v_lshl_or_b32 v{vWT+4*s_+q}, v{vTMP+si*8+2*q+1}, 16, v{vTMP+si*8+2*q}")
    a(f"s_lshl_b32 s{sT0}, s{sISB}, 16")
    a(f"s_add_u32 s{sT0}, s{sT0}, {O_OFF}")
    a(f"s_add_u32 s{sSRD1}, s{sWS}, s{sT0}")
    a(f"s_addc_u32 s{sSRD1+1}, s{sWS+1}, 0")
    a(f"s_mov_b32 s{sSRD1+2}, 65536")
    a(f"s_mov_b32 s{sSRD1+3}, 0x20000")
    sJ=58
    a(f"s_lshl_b32 s{sT0}, s{sWAVE}, 10")
    a(f"v_lshlrev_b32 v6, 4, v0")
    a(f"v_add_u32 v6, s{sT0}, v6")
    for b in range(8): a(f"s_mov_b32 s{sJ+b}, {b*8192}")
    OST=32768
    a(f"s_mul_i32 s{sT0}, s{sWAVE}, 8448")
    a(f"s_add_u32 s{sT0}, s{sT0}, {OST}")
    a(f"v_lshlrev_b32 v9, 4, v0")
    a(f"v_add_u32 v9, s{sT0}, v9")
    a(f"v_and_b32 v10, 7, v{vN}")
    a(f"v_mul_u32_u24 v10, 1056, v10")
    a(f"v_lshl_add_u32 v10, v{vG}, 4, v10")
    a(f"v_add_u32 v10, s{sT0}, v10")
    ts(0)
    a(f"s_cmp_lg_u32 s{sWAVE}, 0")
    a("s_cbranch_scc1 L_h_wait")
    a(f"s_lshl_b32 s{sT0}, s{sISB}, 3")
    a(f"s_add_u32 s{sT0}, s{sT0}, 7")
    a(f"v_and_b32 v7, s{sT0}, v0")
    a(f"v_lshlrev_b32 v7, 2, v7")
    a(f"s_lshl_b32 s{sT0}, s{sISB}, 7")
    a(f"v_add_u32 v7, s{sT0}, v7")
    a.lab("L_h_poll")
    a(f"global_load_dword v8, v7, s[{sDBG}:{sDBG+1}] sc1")
    a("s_waitcnt vmcnt(0)")
    a("v_cmp_le_u32 vcc, 8, v8")
    a("s_nop 1")
    a("s_cmp_eq_u64 vcc, -1")
    a("s_cbranch_scc1 L_h_wait")
    bound()
    a(f"s_sleep {hsleep}")
    a("s_branch L_h_poll")
    a.lab("L_h_wait")
    a("s_barrier")
    ts(1)
    vOF=128
    for b in range(8):
        a(f"buffer_load_dwordx4 v[{vOF+4*b}:{vOF+4*b+3}], v6, s[{sSRD1}:{sSRD1+3}], s{sJ+b} offen sc1")
    for b in range(8):
        a(f"s_waitcnt vmcnt({7-b})")
        a(f"ds_write_b128 v9, v[{vOF+4*b}:{vOF+4*b+3}] offset:{b*1056}")
    vFR=160
    a("s_waitcnt lgkmcnt(0)")
    for s_ in range(16):
        a(f"ds_read_b128 v[{vFR+4*s_}:{vFR+4*s_+3}], v10 offset:{s_*64}")
    vAC=12
    for s_ in range(16):
        a(f"s_waitcnt lgkmcnt({15-s_})")
        cin="0" if s_==0 else f"v[{vAC}:{vAC+3}]"
        a(f"v_mfma_f32_16x16x32_bf16 v[{vAC}:{vAC+3}], v[{vFR+4*s_}:{vFR+4*s_+3}], v[{vWT+4*s_}:{vWT+4*s_+3}], {cin}")
    ts(2)
    a(f"s_lshl_b32 s{sT0}, s{sWAVE}, 9")
    a(f"v_lshlrev_b32 v11, 8, v{vG}")
    a(f"v_lshl_add_u32 v11, v{vN}, 2, v11")
    a(f"v_add_u32 v11, s{sT0}, v11")
    a("s_nop 4")
    a("s_mov_b32 exec_hi, 0")
    for r in range(4): a(f"ds_write_b32 v11, v{vAC+r} offset:{r*64}")
    a("s_mov_b64 exec, -1")
    a("s_waitcnt lgkmcnt(0)")
    a("s_barrier")
    a(f"s_cmp_lg_u32 s{sWAVE}, 0")
    a("s_cbranch_scc1 L_end")
    ts(3)
    a("v_lshrrev_b32 v12, 3, v0")
    a("v_and_b32 v13, 7, v0")
    a("v_lshlrev_b32 v14, 6, v12")
    a("v_lshl_add_u32 v14, v13, 3, v14")
    for w in range(8): a(f"ds_read_b64 v[{16+2*w}:{17+2*w}], v14 offset:{w*512}")
    a(f"s_mul_i32 s{sT0}, s{sISB}, 896")
    a(f"s_lshl_b32 s{sT1}, s{sH}, 5")
    a(f"s_add_u32 s{sT0}, s{sT0}, s{sT1}")
    a(f"v_mul_u32_u24 v15, 1792, v12")
    a(f"v_lshl_add_u32 v15, v13, 2, v15")
    a(f"v_add_u32 v15, s{sT0}, v15")
    a(f"s_mov_b32 s{sSRD0}, s{sOUT}")
    a(f"s_mov_b32 s{sSRD0+1}, s{sOUT+1}")
    a(f"s_mov_b32 s{sSRD0+2}, 14336")
    a(f"s_mov_b32 s{sSRD0+3}, 0x20000")
    a("s_waitcnt lgkmcnt(0)")
    for w in range(1,8):
        a(f"v_add_f32 v16, v16, v{16+2*w}")
        a(f"v_add_f32 v17, v17, v{17+2*w}")
    a("v_cvt_pk_bf16_f32 v16, v16, v17")
    a(f"buffer_store_dword v16, v15, s[{sSRD0}:{sSRD0+3}], 0 offen")
    ts(4)
    dstamp(13)
    ts_dump([0,1,2,3,4])
    a("s_endpgm")
    a.lab("L_h_idle")
    a(f"s_cmp_lg_u32 s2, 230")
    a("s_cbranch_scc1 L_end")
    a(f"s_cmp_lg_u32 s{sWAVE}, 0")
    a("s_cbranch_scc1 L_end")
    a(f"s_load_dword s{sTAG}, s[{sWS}:{sWS+1}], {E_OFF}")
    a("v_cmp_gt_u32 vcc, 8, v0")
    a("v_lshlrev_b32 v4, 2, v0")
    a("v_add_u32 v5, 96, v4          ; 128 + (lane-8)*4")
    a("v_cndmask_b32 v4, v5, v4, vcc")
    a("v_cmp_gt_u32 vcc, 24, v0")
    a("v_mov_b32 v5, 0")
    a("s_nop 0")
    a("v_cndmask_b32 v4, v5, v4, vcc")
    a("s_waitcnt lgkmcnt(0)")
    a(f"s_add_u32 s{sTAG}, s{sTAG}, 0x9e3779b1")
    a.lab("L_e_poll")
    a(f"global_load_dword v8, v4, s[{sDBG}:{sDBG+1}] sc1")
    a("s_waitcnt vmcnt(0)")
    a("v_cmp_le_u32 vcc, 8, v8")
    a("s_nop 1")
    a("s_cmp_eq_u64 vcc, -1")
    a("s_cbranch_scc1 L_e_done")
    bound()
    a("s_sleep 32")
    a("s_branch L_e_poll")
    a.lab("L_e_done")
    a(f"v_mov_b32 v4, {E_OFF}")
    a(f"v_mov_b32 v5, s{sTAG}")
    a("s_mov_b64 exec, 1")
    a(f"global_store_dword v4, v5, s[{sWS}:{sWS+1}]")
    a.lab("L_end")
    a("s_endpgm")
    body=a.text()
    hdr=open("cdna_kernels/"+NAME+".s.ref").read().split("\n")
    head=[l for l in hdr if l.startswith(";") and "@launch" not in l and "Override launch" not in l and "grid=ceil" not in l]
    out="\n".join(head)+"\n"
    out+=f"; @launch grid=(256,1,1) block=(512,1,1) lds={LDS}\n"
    out+=f""".amdgcn_target "amdgcn-amd-amdhsa--gfx950"
.text
.globl {KN}
.p2align 8
.type {KN},@function
"""
    out+=body
    out+=f""".section .rodata,"a"
.p2align 6
.amdhsa_kernel {KN}
  .amdhsa_next_free_vgpr 256
  .amdhsa_next_free_sgpr 96
  .amdhsa_accum_offset 256
  .amdhsa_group_segment_fixed_size 0
  .amdhsa_kernarg_size 104
  .amdhsa_user_sgpr_count 2
  .amdhsa_user_sgpr_kernarg_segment_ptr 1
  .amdhsa_system_sgpr_workgroup_id_x 1
.end_amdhsa_kernel
"""
    return out, LDS

META=""".amdgpu_metadata
---
amdhsa.version: [1, 2]
amdhsa.kernels:
  - .name: {KN}
    .symbol: {KN}.kd
    .kernarg_segment_size: 104
    .kernarg_segment_align: 8
    .group_segment_fixed_size: 0
    .private_segment_fixed_size: 0
    .wavefront_size: 64
    .sgpr_count: 102
    .vgpr_count: 256
    .max_flat_workgroup_size: 512
    .args:
      - {{.name: kernargs, .size: 104, .offset: 0, .value_kind: by_value}}
...
.end_amdgpu_metadata
"""
if __name__=="__main__":
    import argparse
    ap=argparse.ArgumentParser()
    ap.add_argument("-o",default="cdna_kernels/"+NAME+".s")
    ap.add_argument("--diag",action="store_true")
    ap.add_argument("--meta",action="store_true")
    ap.add_argument("--D",type=int,default=40)
    ap.add_argument("--NS",type=int,default=17)
    ap.add_argument("--qwait",type=int,default=0)
    ap.add_argument("--nowo",type=int,default=0)
    ap.add_argument("--DINIT",type=int,default=24)
    ap.add_argument("--DNORM",type=int,default=40)
    ap.add_argument("--fb",type=int,default=0)
    ap.add_argument("--dbgts",type=int,default=0)
    ap.add_argument("--polVA",default="nt")
    ap.add_argument("--polVB",default="nt")
    ap.add_argument("--fbp",type=int,default=4)
    ap.add_argument("--th1",type=int,default=16)
    ap.add_argument("--th2",type=int,default=40)
    ap.add_argument("--dstep",type=int,default=4)
    ap.add_argument("--pol",default="nt")
    ap.add_argument("--wqpol",default="nt")
    ap.add_argument("--wopol",default="nt")
    ap.add_argument("--hsleep",type=int,default=8)
    ap.add_argument("--qsleep",type=int,default=9)
    ap.add_argument("--qfirst",type=int,default=1)
    args=ap.parse_args()
    s,lds=gen(D=args.D,NS=args.NS,diag=args.diag,pol=args.pol,wqpol=args.wqpol,wopol=args.wopol,hsleep=args.hsleep,qsleep=args.qsleep,qfirst=bool(args.qfirst),qwait=args.qwait,nowo=bool(args.nowo),DINIT=args.DINIT,DNORM=args.DNORM,fb=bool(args.fb),fbp=args.fbp,th1=args.th1,th2=args.th2,dstep=args.dstep,dbgts=bool(args.dbgts),polVA=args.polVA,polVB=args.polVB)
    if args.meta: s+=META.format(KN=KN)
    open(args.o,"w").write(s)
    print("wrote",args.o,"lds",lds)
```

```python
import sys, struct
NAME="concat_heads__gqa_block_cached__mha_block_cached__decode"
KN=NAME+"_kernel"

class Asm:
    def __init__(s): s.L=[]; s.uid=0
    def __call__(s,x): s.L.append("  "+x)
    def lab(s,x): s.L.append(x+":")
    def c(s,x): s.L.append("  ; "+x)
    def new(s,p): s.uid+=1; return f"L_{p}_{s.uid}"
    def text(s): return "\n".join(s.L)+"\n"

def gen(D=40, NS=17, diag=False, pol="nt", spin_sleep=1, wqpol="nt", wopol="nt", hsleep=8, qsleep=16, qfirst=True, qwait=0, nowo=False, DINIT=24, DNORM=40, fb=True, fbp=4, th1=16, th2=40, dstep=4, dbgts=False, polVA='nt', polVB='nt', probe=-1):
    a=Asm()
    DLIST=[DNORM-2*dstep,DNORM-dstep,DNORM,DNORM+dstep,DNORM+2*dstep] if fb else [DNORM]
    RING=0; RINGB=NS*8192
    SBUF=RINGB
    MISC=SBUF+16384
    QPART=(NS-4)*8192
    FULL=0; DONE=16; CQ1=32; CQ2=36; CMX=40; CFIN=44; DLEV=48
    QL=256; MX=1280; LS=1408
    LDS=MISC+2048
    assert LDS<=163840
    CEXP=struct.unpack("<I",struct.pack("<f",1.4426950408889634/16.0))[0]
    O_OFF=0
    E_OFF=0x30004
    QP_OFF=0x100000
    TS_OFF=0x20000000
    sWAVE=3; sX=4; sSLOT=5; sB=6; sGRP=7; sKA=8
    sPAIR=10; sH=11; sISB=12; sT0=13; sT1=14; sT2=15
    sP0=16
    sDBG=20
    sWS=22
    sOUT=24
    sTAG=26
    sSRD0=28; sSRD1=32
    sTS1=42
    sW1=54
    sSP=72
    sTSB=76
    def ts(slot):
        if not diag: return
        a(f"s_memrealtime s[{sTSB+2*slot}:{sTSB+2*slot+1}]")
        a("s_waitcnt lgkmcnt(0)")
    def ts_dump(slots):
        if not diag: return
        a(f"s_load_dwordx2 s[{sTS1}:{sTS1+1}], s[0:1], 96")
        a("s_waitcnt lgkmcnt(0)")
        a(f"s_add_u32 s{sTS1}, s{sTS1}, {TS_OFF}")
        a(f"s_addc_u32 s{sTS1+1}, s{sTS1+1}, 0")
        a(f"s_lshl_b32 s44, s2, 7")
        a(f"v_mov_b32 v250, s44")
        a(f"s_mov_b64 exec, 1")
        for slot in slots:
            a(f"v_mov_b32 v252, s{sTSB+2*slot}")
            a(f"v_mov_b32 v253, s{sTSB+2*slot+1}")
            a(f"global_store_dwordx2 v250, v[252:253], s[{sTS1}:{sTS1+1}] offset:{slot*8}")
            a("s_nop 1")
    def dstamp(slot, inv=False, mask=0):
        if not dbgts: return
        if probe>=0 and slot!=probe: return
        if probe>=0: mask=0
        Lsk=a.new("dsk")
        if mask:
            a(f"s_and_b32 s44, s2, {mask}")
            a(f"s_cmp_lg_u32 s44, 0")
            a(f"s_cbranch_scc1 {Lsk}")
        a("s_load_dwordx2 s[42:43], s[0:1], 88")
        a("s_memrealtime s[40:41]")
        a("s_waitcnt lgkmcnt(0)")
        if inv: a("s_not_b32 s40, s40")
        a("v_mov_b32 v250, s40")
        a(f"v_mov_b32 v251, {slot*4}")
        a("s_mov_b64 s[46:47], exec")
        a("s_mov_b64 exec, 1")
        a("global_atomic_umax v251, v250, s[42:43] sc1")
        a("s_mov_b64 exec, s[46:47]")
        a.lab(Lsk)
    def bound():
        a(f"s_add_u32 s{sSP}, s{sSP}, 1")
        a(f"s_cmp_gt_u32 s{sSP}, 0x200000")
        a("s_cbranch_scc1 L_end")
    def spin_ge(vaddr, off, target, vt, st=sT0, signed=False):
        L=a.new("spin"); E=a.new("spun")
        a.lab(L)
        a(f"ds_read_b32 v{vt}, v{vaddr} offset:{off}")
        a("s_waitcnt lgkmcnt(0)")
        a(f"v_readfirstlane_b32 s{st}, v{vt}")
        a(f"s_cmp_ge_{'i32' if signed else 'u32'} s{st}, {target}")
        a(f"s_cbranch_scc1 {E}")
        bound()
        if spin_sleep: a(f"s_sleep {spin_sleep}")
        a(f"s_branch {L}")
        a.lab(E)
    def signal(vaddr, off, vone):
        a("s_waitcnt lgkmcnt(0)")
        a("s_mov_b64 exec, 1")
        a(f"ds_add_u32 v{vaddr}, v{vone} offset:{off}")
        a("s_mov_b64 exec, -1")
    def attn_decode():
        a(f"s_and_b32 s{sX}, s2, 7")
        a(f"s_lshr_b32 s{sSLOT}, s2, 3")
        a(f"s_and_b32 s{sB}, s{sSLOT}, 7")
        a(f"s_lshr_b32 s{sGRP}, s{sSLOT}, 3")
        a(f"s_cmp_lg_u32 s{sGRP}, 0")
        a(f"s_cselect_b32 s{sISB}, 1, 0")
        a(f"s_lshr_b32 s{sT1}, s{sGRP}, 1")
        a(f"s_lshl_b32 s{sT1}, s{sT1}, 3")
        a(f"s_add_u32 s{sH}, s{sX}, s{sT1}")
        a(f"s_add_u32 s{sT1}, s{sISB}, 3")
        a(f"s_lshl_b32 s{sPAIR}, s{sB}, s{sT1}")
        a(f"s_add_u32 s{sPAIR}, s{sPAIR}, s{sH}")
    def zero_flags(vz,va):
        a(f"v_mov_b32 v{vz}, 0")
        a(f"v_lshlrev_b32 v{va}, 2, v0")
        a(f"v_add_u32 v{va}, {MISC}, v{va}")
        a(f"ds_write_b32 v{va}, v{vz}")

    a.lab(KN)
    a("s_cmp_ge_u32 s2, 256")
    a("s_cbranch_scc1 L_end")
    a("v_lshrrev_b32 v1, 6, v0")
    a("v_and_b32 v0, 63, v0")
    a(f"s_mov_b32 s{sSP}, 0")
    a(f"v_readfirstlane_b32 s{sWAVE}, v1")
    a(f"s_cmp_lg_u32 s{sWAVE}, 0")
    a("s_cbranch_scc1 L_qw")
    a("s_cmp_ge_u32 s2, 192")
    a("s_cbranch_scc1 L_h0")
    a.c("---------------- loader wave ----------------")
    a(f"s_cmp_ge_u32 s2, 64")
    a(f"s_cselect_b32 s{sT0}, 40, 0")
    a(f"s_add_u32 s{sKA}, s0, s{sT0}")
    a(f"s_addc_u32 s{sKA+1}, s1, 0")
    a(f"s_load_dwordx4 s[{sP0}:{sP0+3}], s[{sKA}:{sKA+1}], 8")
    a("s_setprio 3")
    attn_decode()
    vZ=2; vA=3; vFA=4; vFV=5; vKO=8; vVO=16; vD=20
    zero_flags(vZ,vA)
    a(f"v_mov_b32 v{vFA}, {MISC}")
    a("v_lshrrev_b32 v6, 5, v0      ; hi")
    a("v_and_b32 v7, 31, v0        ; lo")
    for i in range(8):
        a(f"v_add_u32 v{vKO+i}, {2*i}, v6")
        a(f"v_xor_b32 v{vKO+i}, v{vKO+i}, v7")
        a(f"v_lshlrev_b32 v{vKO+i}, 4, v{vKO+i}")
        a(f"v_lshl_add_u32 v{vKO+i}, v6, 9, v{vKO+i}")
        if i>=4: a(f"v_add_u32 v{vKO+i}, 4096, v{vKO+i}")
    a(f"v_lshlrev_b32 v{vVO}, 4, v0")
    a(f"v_add_u32 v{vVO+1}, 4096, v{vVO}")
    a(f"s_lshl_b32 s{sT0}, s{sPAIR}, 21")
    a("s_waitcnt lgkmcnt(0)")
    a("s_barrier")
    a(f"s_add_u32 s{sSRD0}, s{sP0}, s{sT0}")
    a(f"s_addc_u32 s{sSRD0+1}, s{sP0+1}, 0")
    a(f"s_mov_b32 s{sSRD0+2}, 0x200000")
    a(f"s_mov_b32 s{sSRD0+3}, 0x20000")
    a(f"s_add_u32 s{sSRD1}, s{sP0+2}, s{sT0}")
    a(f"s_addc_u32 s{sSRD1+1}, s{sP0+3}, 0")
    a(f"s_mov_b32 s{sSRD1+2}, 0x200000")
    a(f"s_mov_b32 s{sSRD1+3}, 0x20000")
    sT=48; sAL=49; sSL=50; sOFF=51; sPUB=52; sLV=53; sPV=54; vLV=24
    a(f"s_mov_b32 s{sT}, 0")
    a(f"s_mov_b32 s{sAL}, {NS-4}")
    a(f"s_mov_b32 s{sSL}, {RING}")
    a(f"s_mov_b32 s{sPUB}, 0")
    a(f"s_mov_b32 s{sLV}, {DINIT}")
    a(f"v_mov_b32 v{vLV}, 0")
    ts(0)
    dstamp(8,True,mask=31)
    dstamp(9,mask=31)
    phases=[(sSRD0,[vKO+i for i in range(8)],256,pol,None)]
    if polVA==polVB: phases.append((sSRD1,[vVO]*4+[vVO+1]*4,512,polVA,None))
    else:
        phases.append((sSRD1,[vVO]*4+[vVO+1]*4,512,polVA,'A'))
        phases.append((sSRD1,[vVO]*4+[vVO+1]*4,512,polVB,'B'))
    for ph,(srd,vo,tend,pol,sel) in enumerate(phases):
        if sel=='A':
            a(f"s_cmp_eq_u32 s{sISB}, 1")
            a("s_cbranch_scc1 L_ld_VB")
        if sel=='B':
            a("s_branch L_ld_drain")
            a.lab("L_ld_VB")
        LT=f"L_ld_tile{ph}"; LG=f"L_ld_go{ph}"; LR=f"L_ld_ref{ph}"
        a(f"s_mov_b32 s{sOFF}, 0")
        a.lab(LT)
        if diag and ph==0:
            for tt,rg in ((NS-4,56),(NS,60)):
                a(f"s_cmp_lg_u32 s{sT}, {tt}")
                a(f"s_cbranch_scc1 L_tsx{tt}")
                a(f"s_memrealtime s[{rg}:{rg+1}]")
                a("s_waitcnt lgkmcnt(0)")
                a.lab(f"L_tsx{tt}")
        a(f"s_cmp_lt_u32 s{sT}, s{sAL}")
        a(f"s_cbranch_scc1 {LG}")
        a.lab(LR)
        a(f"ds_read_b128 v[{vD}:{vD+3}], v{vFA} offset:{DONE}")
        a("s_waitcnt lgkmcnt(0)")
        a(f"v_min_u32 v{vD}, v{vD}, v{vD+1}")
        a(f"v_min3_u32 v{vD}, v{vD}, v{vD+2}, v{vD+3}")
        a("s_nop 0")
        a(f"v_readfirstlane_b32 s{sAL}, v{vD}")
        a(f"s_lshl_b32 s{sAL}, s{sAL}, 2")
        a(f"s_add_u32 s{sAL}, s{sAL}, {NS-4}")
        a(f"s_cmp_lt_u32 s{sT}, s{sAL}")
        a(f"s_cbranch_scc1 {LG}")
        bound()
        a("s_sleep 1")
        a(f"s_branch {LR}")
        a.lab(LG)
        if diag and ph==0:
            for tt,rg in ((NS-4,58),(NS,62)):
                a(f"s_cmp_lg_u32 s{sT}, {tt}")
                a(f"s_cbranch_scc1 L_tsy{tt}")
                a(f"s_memrealtime s[{rg}:{rg+1}]")
                a("s_waitcnt lgkmcnt(0)")
                a.lab(f"L_tsy{tt}")
        def lwait(tag):
            Lgo=f"L_lw{ph}{tag}"
            dl=sorted(set(DLIST+[DINIT]),reverse=True)
            a(f"s_waitcnt vmcnt({dl[0]-4})")
            for k in range(len(dl)-1):
                a(f"s_cmp_ge_u32 s{sLV}, {dl[k]}")
                a(f"s_cbranch_scc1 {Lgo}")
                a(f"s_waitcnt vmcnt({dl[k+1]-4})")
            a.lab(Lgo)
        a("s_waitcnt lgkmcnt(0)")
        a(f"v_readfirstlane_b32 s{sLV}, v{vLV}")
        a(f"ds_read_b32 v{vLV}, v{vFA} offset:{DLEV}")
        a(f"s_max_u32 s{sLV}, s{sLV}, {DINIT}")
        a(f"s_mov_b32 m0, s{sSL}")
        lwait("a")
        for i in range(4):
            a(f"buffer_load_dwordx4 v{vo[i]}, s[{srd}:{srd+3}], s{sOFF} offen offset:{i*1024} {pol} lds")
        a(f"s_add_u32 m0, s{sSL}, 4096")
        a(f"s_add_u32 s{sPV}, s{sLV}, 7")
        a(f"s_lshr_b32 s{sPV}, s{sPV}, 3")
        a(f"s_sub_u32 s{sPV}, s{sT}, s{sPV}")
        a(f"s_add_u32 s{sPV}, s{sPV}, 1")
        a(f"s_max_i32 s{sPUB}, s{sPUB}, s{sPV}")
        a(f"v_mov_b32 v{vFV}, s{sPUB}")
        lwait("b")
        a(f"ds_write_b32 v{vFA}, v{vFV} offset:{FULL}")
        for i in range(4,8):
            a(f"buffer_load_dwordx4 v{vo[i]}, s[{srd}:{srd+3}], s{sOFF} offen offset:{(i-4)*1024} {pol} lds")
        a(f"s_add_u32 s{sOFF}, s{sOFF}, 8192")
        a(f"s_add_u32 s{sSL}, s{sSL}, 8192")
        a(f"s_cmp_eq_u32 s{sSL}, {RING+RINGB}")
        a(f"s_cselect_b32 s{sSL}, {RING}, s{sSL}")
        a(f"s_add_u32 s{sT}, s{sT}, 1")
        a(f"s_cmp_lt_u32 s{sT}, {tend}")
        a(f"s_cbranch_scc1 {LT}")
        if ph==0: ts(1)
        if ph==0: dstamp(10,mask=7)
    a.lab("L_ld_drain")
    for k in range((max(DLIST)+7)//8*8-8,-1,-8):
        a(f"v_mov_b32 v{vFV}, {512-k//8}")
        a(f"s_waitcnt vmcnt({k})")
        a(f"ds_write_b32 v{vFA}, v{vFV} offset:{FULL}")
    ts(2)
    dstamp(11)
    ts_dump([0,1,2])
    if diag:
        for k,rg in enumerate((56,58,60,62)):
            a(f"v_mov_b32 v252, s{rg}")
            a(f"v_mov_b32 v253, s{rg+1}")
            a(f"global_store_dwordx2 v250, v[252:253], s[{sTS1}:{sTS1+1}] offset:{(10+k)*8}")
            a("s_nop 1")
    a("s_endpgm")
    a.lab("L_qw")
    a.c("---------------- distributed q projection ----------------")
    a(f"s_lshr_b32 s{sT0}, s2, 7")
    a(f"s_mul_i32 s{sT0}, s{sT0}, 40")
    a(f"s_add_u32 s{sKA}, s0, s{sT0}")
    a(f"s_addc_u32 s{sKA+1}, s1, 0")
    a(f"s_load_dwordx2 s[{sP0}:{sP0+1}], s[{sKA}:{sKA+1}], 0    ; x")
    a(f"s_load_dwordx2 s[{sP0+2}:{sP0+3}], s[{sKA}:{sKA+1}], 24   ; wq")
    a(f"s_load_dwordx4 s[{sDBG}:{sDBG+3}], s[0:1], 88")
    a(f"s_sub_u32 s{sW1}, s{sWAVE}, 1")
    vN=2; vG=3; vS16=4; vXO=8; vWO=9; vX=10; vFL=14; vONE=15; vAO=16; vAC=24; vWq=40
    a(f"v_and_b32 v{vN}, 15, v0")
    a(f"v_lshrrev_b32 v{vG}, 4, v0")
    a(f"s_and_b32 s{sT0}, s2, 3")
    a(f"s_mul_i32 s{sT0}, s{sT0}, 112")
    a(f"s_lshl_b32 s{sT1}, s{sW1}, 4")
    a(f"s_add_u32 s{sT0}, s{sT0}, s{sT1}       ; row0")
    a(f"v_lshl_add_u32 v16, v{vG}, 2, s{sT0}    ; row0+4g")
    a(f"v_lshrrev_b32 v{vXO}, 2, v{vN}")
    a(f"v_mul_u32_u24 v{vXO}, 896, v{vXO}")
    a(f"v_lshl_add_u32 v{vXO}, v16, 1, v{vXO}")
    a(f"s_lshr_b32 s{sT1}, s2, 2")
    a(f"s_and_b32 s{sT1}, s{sT1}, 31")
    a(f"s_lshl_b32 s{sT1}, s{sT1}, 8")
    a(f"v_lshlrev_b32 v{vWO}, 13, v16")
    a(f"v_lshl_add_u32 v{vWO}, v{vN}, 4, v{vWO}")
    a(f"v_add_u32 v{vWO}, s{sT1}, v{vWO}")
    a(f"s_mov_b32 s56, 8192")
    a(f"s_mov_b32 s57, 16384")
    a(f"s_mov_b32 s58, 24576")
    a(f"v_mov_b32 v{vFL}, {MISC}")
    a(f"v_mov_b32 v{vONE}, 1")
    a("s_waitcnt lgkmcnt(0)")
    if not qfirst: a("s_barrier")
    a(f"s_load_dword s{sTAG}, s[{sWS}:{sWS+1}], {E_OFF}")
    a(f"s_mov_b32 s{sSRD1}, s{sP0+2}")
    a(f"s_mov_b32 s{sSRD1+1}, s{sP0+3}")
    a(f"s_mov_b32 s{sSRD1+2}, 3670016")
    a(f"s_mov_b32 s{sSRD1+3}, 0x20000")
    a(f"s_mov_b32 s{sSRD0}, s{sP0}")
    a(f"s_mov_b32 s{sSRD0+1}, s{sP0+1}")
    a(f"s_mov_b32 s{sSRD0+2}, 7168")
    a(f"s_mov_b32 s{sSRD0+3}, 0x20000")
    so=["0","s56","s57","s58"]
    for j in range(4):
        a(f"buffer_load_dwordx4 v[{vWq+4*j}:{vWq+4*j+3}], v{vWO}, s[{sSRD1}:{sSRD1+3}], {so[j]} offen {wqpol}")
    for u in range(2):
        a(f"buffer_load_dwordx2 v[{vX+2*u}:{vX+2*u+1}], v{vXO}, s[{sSRD0}:{sSRD0+3}], 0 offen offset:{u*3584}")
    if qfirst: a("s_barrier")
    a(f"v_and_b32 v16, 1, v{vN}")
    a(f"v_cmp_eq_u32 vcc, 1, v16")
    a(f"v_mov_b32 v17, 0x0c0c0100")
    a(f"v_mov_b32 v18, 0x01000c0c")
    a(f"v_cndmask_b32 v17, v17, v18, vcc")
    a(f"v_mov_b32 v18, 0x0c0c0302")
    a(f"v_mov_b32 v19, 0x03020c0c")
    a(f"v_cndmask_b32 v18, v18, v19, vcc")
    a(f"v_bfe_u32 v16, v{vN}, 1, 1")
    a(f"v_mov_b32 v19, 0x0c0c0c0c")
    for t in range(2):
        a(f"v_cmp_eq_u32 vcc, {t}, v16")
        a("s_nop 1")
        a(f"v_cndmask_b32 v{vS16+t}, v19, v17, vcc")
        a(f"v_cndmask_b32 v{vS16+2+t}, v19, v18, vcc")
    a(f"s_lshl_b32 s{sT0}, s{sW1}, 12")
    a(f"s_add_u32 s{sT0}, s{sT0}, {QPART}")
    a(f"v_lshlrev_b32 v56, 9, v{vG}")
    a(f"v_lshl_add_u32 v56, v{vN}, 5, v56")
    a(f"v_add_u32 v56, s{sT0}, v56")
    a("s_waitcnt vmcnt(0)")
    for j in range(4):
        for u in range(2):
            ao=vAO+4*(j&1)+2*u
            for t in range(2):
                a(f"v_perm_b32 v{ao+t}, v{vX+2*u+(j>>1)}, v{vX+2*u+(j>>1)}, v{vS16+2*(j&1)+t}")
        a("s_nop 0")
        for u in range(2):
            ao=vAO+4*(j&1)+2*u
            for hf in range(2):
                acc=vAC+8*u+4*hf
                cin="0" if j==0 else f"v[{acc}:{acc+3}]"
                a(f"v_mfma_f32_16x16x16_bf16 v[{acc}:{acc+3}], v[{ao}:{ao+1}], v[{vWq+4*j+2*hf}:{vWq+4*j+2*hf+1}], {cin}")
    ts(8)
    a("s_nop 7")
    a("s_nop 0")
    for u in range(2):
        for hf in range(2):
            acc=vAC+8*u+4*hf
            a(f"ds_write_b128 v56, v[{acc}:{acc+3}] offset:{u*2048+hf*16}")
    signal(vFL,CQ1,vONE)
    a(f"s_cmp_gt_u32 s{sWAVE}, 4")
    a("s_cbranch_scc0 L_qred")
    a("s_cmp_ge_u32 s2, 192")
    a("s_cbranch_scc1 L_hout")
    a("s_endpgm")
    a.lab("L_qred")
    vT=24
    a("v_lshrrev_b32 v16, 5, v0")
    a("v_and_b32 v17, 31, v0")
    a(f"s_lshl_b32 s{sT0}, s{sW1}, 1")
    a(f"v_add_u32 v16, s{sT0}, v16           ; batch")
    a(f"v_lshlrev_b32 v18, 9, v16")
    a(f"v_lshl_add_u32 v18, v17, 4, v18")
    a(f"v_add_u32 v18, {QPART}, v18")
    a(f"s_lshl_b32 s{sT0}, s2, 13")
    a(f"s_add_u32 s{sT0}, s{sT0}, {QP_OFF}")
    a(f"v_lshlrev_b32 v19, 10, v16")
    a(f"v_lshl_add_u32 v19, v17, 4, v19")
    a(f"v_add_u32 v19, s{sT0}, v19")
    spin_ge(vFL,CQ1,7,vT)
    for w in range(7):
        a(f"ds_read_b128 v[{40+4*w}:{43+4*w}], v18 offset:{w*4096}")
    a(f"s_add_u32 s{sTAG}, s{sTAG}, 0x9e3779b1")
    a(f"s_lshl_b32 s{sT0}, s{sW1}, 2")
    a(f"s_add_u32 s{sT0}, s{sT0}, {MISC+DONE}")
    a(f"v_mov_b32 v20, s{sT0}")
    a("s_waitcnt lgkmcnt(0)")
    a(f"ds_write_b32 v20, v{vONE}")
    for k in range(4):
        a(f"v_add_f32 v{40+k}, v{40+k}, v{44+k}")
        a(f"v_add_f32 v{48+k}, v{48+k}, v{52+k}")
        a(f"v_add_f32 v{56+k}, v{56+k}, v{60+k}")
    for k in range(4):
        a(f"v_add_f32 v{40+k}, v{40+k}, v{48+k}")
        a(f"v_add_f32 v{56+k}, v{56+k}, v{64+k}")
    for k in range(4):
        a(f"v_add_f32 v{68+2*k}, v{40+k}, v{56+k}")
        a(f"v_mov_b32 v{69+2*k}, s{sTAG}")
    a(f"global_store_dwordx4 v19, v[68:71], s[{sWS}:{sWS+1}] sc1")
    a(f"global_store_dwordx4 v19, v[72:75], s[{sWS}:{sWS+1}] offset:512 sc1")
    ts(9)
    a("s_cmp_ge_u32 s2, 192")
    a("s_cbranch_scc1 L_hout")
    a.c("---------------- consumers ----------------")
    attn_decode()
    vSEL=4
    a(f"v_and_b32 v16, 7, v{vN}")
    a(f"v_lshrrev_b32 v17, 1, v16      ; te")
    a(f"v_and_b32 v16, 1, v16          ; par")
    a(f"v_cmp_eq_u32 vcc, 1, v16")
    a(f"v_mov_b32 v18, 0x0c0c0100")
    a(f"v_mov_b32 v19, 0x01000c0c")
    a(f"v_cndmask_b32 v18, v18, v19, vcc")
    a(f"v_mov_b32 v19, 0x0c0c0302")
    a(f"v_mov_b32 v20, 0x03020c0c")
    a(f"v_cndmask_b32 v19, v19, v20, vcc")
    a(f"v_mov_b32 v20, 0x0c0c0c0c")
    for t in range(4):
        a(f"v_cmp_eq_u32 vcc, {t}, v17")
        a("s_nop 1")
        a(f"v_cndmask_b32 v{vSEL+t}, v20, v18, vcc")
        a(f"v_cndmask_b32 v{vSEL+4+t}, v20, v19, vcc")
    a(f"s_cmp_eq_u32 s{sISB}, 1")
    a("s_cbranch_scc0 L_qg")
    a(f"s_cmp_ge_u32 s{sW1}, 2")
    a("s_cbranch_scc1 L_qg_done")
    a.lab("L_qg")
    a(f"s_sub_u32 s{sT1}, 2, s{sISB}")
    a(f"s_lshl_b32 s{sT0}, s{sH}, s{sT1}")
    a(f"s_add_u32 s{sT0}, s{sT0}, s{sW1}      ; c")
    a(f"s_lshl_b32 s{sT1}, s{sISB}, 5")
    a(f"s_add_u32 s{sT0}, s{sT0}, s{sT1}      ; m*32+c")
    a(f"s_lshl_b32 s{sT0}, s{sT0}, 15         ; *4*8192")
    a(f"s_lshl_b32 s{sT1}, s{sB}, 10")
    a(f"s_add_u32 s{sT0}, s{sT0}, s{sT1}")
    a(f"s_add_u32 s{sT0}, s{sT0}, {QP_OFF}")
    a(f"v_lshlrev_b32 v16, 4, v0")
    a(f"v_add_u32 v16, s{sT0}, v16")
    for kq in range(1,4): a(f"v_add_u32 v{16+kq}, {kq*8192}, v16")
    PA=160; PB=176
    def issue(base):
        for kq in range(4):
            a(f"global_load_dwordx4 v[{base+4*kq}:{base+4*kq+3}], v{16+kq}, s[{sWS}:{sWS+1}] sc1")
    def check(base,lab):
        a(f"v_xor_b32 v20, s{sTAG}, v{base+1}")
        for r in (3,5,7,9,11,13,15):
            a(f"v_xor_b32 v21, s{sTAG}, v{base+r}")
            a(f"v_or_b32 v20, v20, v21")
        a("v_cmp_eq_u32 vcc, 0, v20")
        a("s_nop 1")
        a("s_cmp_eq_u64 vcc, -1")
        a(f"s_cbranch_scc1 {lab}")
    def qsum(base):
        a(f"v_add_f32 v32, v{base}, v{base+4}")
        a(f"v_add_f32 v34, v{base+2}, v{base+6}")
        a(f"v_add_f32 v40, v{base+8}, v{base+12}")
        a(f"v_add_f32 v42, v{base+10}, v{base+14}")
    if qwait: spin_ge(vFL,FULL,qwait,vT,signed=True)
    issue(PA)
    if qsleep: a(f"s_sleep {qsleep}")
    a.lab("L_qg_poll")
    issue(PB)
    a("s_waitcnt vmcnt(4)")
    check(PA,"L_qg_gotA")
    issue(PA)
    a("s_waitcnt vmcnt(4)")
    check(PB,"L_qg_gotB")
    bound()
    a("s_branch L_qg_poll")
    a.lab("L_qg_gotB")
    qsum(PB)
    a("s_branch L_qg_got")
    a.lab("L_qg_gotA")
    qsum(PA)
    a.lab("L_qg_got")
    a("v_add_f32 v32, v32, v40")
    a("v_add_f32 v34, v34, v42")
    a("v_cvt_pk_bf16_f32 v32, v32, v34")
    a("v_and_b32 v20, 31, v0")
    a("v_lshrrev_b32 v21, 5, v0")
    a("v_lshlrev_b32 v20, 3, v20")
    a("v_lshl_add_u32 v20, v21, 2, v20")
    a(f"s_lshl_b32 s{sT0}, s{sW1}, 8")
    a(f"s_add_u32 s{sT0}, s{sT0}, {MISC+QL}")
    a(f"v_add_u32 v20, s{sT0}, v20")
    a("ds_write_b32 v20, v32")
    a.lab("L_qg_done")
    ts(7)
    signal(vFL,CQ2,vONE)
    spin_ge(vFL,CQ2,4,vT)
    vQF=32
    a(f"s_cmp_eq_u32 s{sISB}, 1")
    a(f"s_cselect_b32 s{sT0}, 0, 512")
    a(f"v_lshrrev_b32 v25, 3, v{vN}       ; qh")
    a(f"v_mul_lo_u32 v26, v25, s{sT0}")
    a(f"v_lshl_add_u32 v26, v{vG}, 4, v26")
    a(f"v_add_u32 v26, {MISC+QL}, v26")
    for s in range(8):
        a(f"ds_read_b128 v[{vQF+4*s}:{vQF+4*s+3}], v26 offset:{s*64}")
    vKA=64; vKF=72; vS=104
    vMAX=108; vSA=109; vDN=110; vDV=111; vQH=112
    a(f"v_mov_b32 v{vQH}, v25")
    for s in range(4):
        a(f"v_and_b32 v26, 12, v{vN}")
        a(f"v_xor_b32 v26, {4*s}, v26")
        a(f"v_and_b32 v27, 3, v{vN}")
        a(f"v_xor_b32 v27, v27, v{vG}")
        a(f"v_add_u32 v26, v26, v27")
        a(f"v_lshlrev_b32 v26, 4, v26")
        a(f"v_lshl_add_u32 v{vKA+s}, v{vN}, 9, v26")
    a(f"s_lshl_b32 s{sT0}, s{sW1}, 12")
    a(f"s_add_u32 s{sT0}, s{sT0}, {SBUF}")
    a(f"v_lshlrev_b32 v{vSA}, 5, v{vQH}")
    a(f"v_lshl_add_u32 v{vSA}, v{vG}, 3, v{vSA}")
    a(f"v_add_u32 v{vSA}, s{sT0}, v{vSA}")
    a(f"v_mov_b32 v{vMAX}, 0xff800000")
    a(f"s_lshl_b32 s{sT0}, s{sW1}, 2")
    a(f"s_add_u32 s{sT0}, s{sT0}, {MISC+DONE}")
    a(f"v_mov_b32 v{vDN}, s{sT0}")
    sTT=48; sFU=49; sSLO=50; sJ1=51; sMASK=52; sC=55
    a(f"s_mov_b32 s{sTT}, s{sW1}")
    a(f"s_mov_b32 s{sFU}, 0")
    a(f"s_lshl_b32 s{sSLO}, s{sW1}, 13")
    a(f"s_mov_b32 s{sJ1}, 2")
    a(f"s_mov_b32 s{sMASK}, 0x01010101")
    a(f"s_mov_b32 s{sMASK+1}, 0x01010101")
    a(f"v_mov_b32 v26, {DNORM}")
    a(f"ds_write_b32 v{vFL}, v26 offset:{DLEV}")
    a("s_waitcnt lgkmcnt(0)")
    ts(3)
    dstamp(12,mask=15)
    PR_OFF=0x38000
    vPA=200; vPS=201; vPD=202; vSM=204
    if fb:
        a(f"s_lshl_b32 s{sT0}, s2, 3")
        a(f"s_add_u32 s{sT0}, s{sT0}, {PR_OFF}")
        a(f"v_mov_b32 v{vPA}, s{sT0}")
        a(f"v_mul_u32_u24 v{vPS}, 3, v0")
        a(f"v_add_u32 v{vPS}, s2, v{vPS}")
        a(f"v_subrev_u32 v26, 192, v{vPS}")
        a(f"v_cmp_gt_u32 vcc, 192, v{vPS}")
        a(f"v_mov_b32 v{vPD+1}, s{sTAG}")
        a(f"v_not_b32 v{vSM+1}, v{vPD+1}")
        a(f"v_cndmask_b32 v{vPS}, v26, v{vPS}, vcc")
        a(f"v_lshlrev_b32 v{vPS}, 3, v{vPS}")
        a(f"v_add_u32 v{vPS}, {PR_OFF}, v{vPS}")
    def feedback(tag):
        if not fb: return
        Ls=f"L_fb_skip{tag}"; Li=f"L_fb_issue{tag}"
        a(f"s_cmp_lg_u32 s{sW1}, 0")
        a(f"s_cbranch_scc1 {Ls}")
        a(f"v_mov_b32 v{vPD}, s{sTT}")
        a("s_mov_b64 exec, 1")
        a(f"global_store_dwordx2 v{vPA}, v[{vPD}:{vPD+1}], s[{sWS}:{sWS+1}] sc1")
        a("s_mov_b64 exec, -1")
        a(f"s_and_b32 s56, s{sJ1}, {fbp-1}")
        a(f"s_cmp_lg_u32 s56, 0")
        a(f"s_cbranch_scc1 {Ls}")
        a("s_waitcnt vmcnt(1)")
        a(f"v_readfirstlane_b32 s62, v{vSM}")
        a(f"v_cmp_eq_u32 s[56:57], s{sTAG}, v{vSM+1}")
        a("s_nop 0")
        a(f"v_cmp_lt_i32 s[58:59], v{vSM}, s62")
        a(f"v_cmp_gt_i32 s[60:61], v{vSM}, s62")
        a(f"s_bitcmp1_b64 s[56:57], 0")
        a(f"s_cbranch_scc0 {Li}")
        a(f"s_and_b64 s[58:59], s[58:59], s[56:57]")
        a(f"s_and_b64 s[60:61], s[60:61], s[56:57]")
        a(f"s_bcnt1_i32_b64 s62, s[58:59]")
        a(f"s_bcnt1_i32_b64 s63, s[60:61]")
        a(f"s_sub_i32 s62, s62, s63")
        a(f"s_mov_b32 s63, {DNORM}")
        a(f"s_cmp_gt_i32 s62, {th1}")
        a(f"s_cselect_b32 s63, {DNORM-dstep}, s63")
        a(f"s_cmp_gt_i32 s62, {th2}")
        a(f"s_cselect_b32 s63, {DNORM-2*dstep}, s63")
        a(f"s_cmp_lt_i32 s62, {-th1}")
        a(f"s_cselect_b32 s63, {DNORM+dstep}, s63")
        a(f"s_cmp_lt_i32 s62, {-th2}")
        a(f"s_cselect_b32 s63, {DNORM+2*dstep}, s63")
        a(f"v_mov_b32 v{vPD}, s63")
        a(f"ds_write_b32 v{vFL}, v{vPD} offset:{DLEV}")
        a.lab(Li)
        a(f"global_load_dwordx2 v[{vSM}:{vSM+1}], v{vPS}, s[{sWS}:{sWS+1}] sc1")
        a.lab(Ls)
    def wait_full(tag):
        Lg=f"L_{tag}_go"; Ls=f"L_{tag}_spin"
        a(f"s_cmp_gt_i32 s{sFU}, s{sTT}")
        a(f"s_cbranch_scc1 {Lg}")
        a.lab(Ls)
        a(f"ds_read_b32 v{vT}, v{vFL} offset:{FULL}")
        a("s_waitcnt lgkmcnt(0)")
        a(f"v_readfirstlane_b32 s{sFU}, v{vT}")
        a(f"s_cmp_gt_i32 s{sFU}, s{sTT}")
        a(f"s_cbranch_scc1 {Lg}")
        bound()
        if spin_sleep: a(f"s_sleep {spin_sleep}")
        a(f"s_branch {Ls}")
        a.lab(Lg)
    def advance():
        a(f"s_add_u32 s{sTT}, s{sTT}, 4")
        a(f"s_add_u32 s{sSLO}, s{sSLO}, {4*8192}")
        a(f"s_cmp_ge_u32 s{sSLO}, {RINGB}")
        a(f"s_cselect_b32 s{sT0}, {RINGB}, 0")
        a(f"s_sub_u32 s{sSLO}, s{sSLO}, s{sT0}")
        a(f"s_add_u32 s{sJ1}, s{sJ1}, 1")
    a.lab("L_K")
    wait_full("K")
    for s in range(4): a(f"v_add_u32 v{vKA+4+s}, s{sSLO}, v{vKA+s}")
    for s in range(8):
        a(f"ds_read_b128 v[{vKF+4*s}:{vKF+4*s+3}], v{vKA+4+(s&3)} offset:{RING+(s>>2)*256}")
    a(f"v_mov_b32 v{vDV}, s{sJ1}")
    for s in range(8):
        a(f"s_waitcnt lgkmcnt({7-s})")
        if s==7: a(f"ds_write_b32 v{vDN}, v{vDV}")
        cin="0" if s==0 else f"v[{vS}:{vS+3}]"
        a(f"v_mfma_f32_16x16x32_bf16 v[{vS}:{vS+3}], v[{vKF+4*s}:{vKF+4*s+3}], v[{vQF+4*s}:{vQF+4*s+3}], {cin}")
    advance()
    a("s_nop 3")
    a(f"v_max3_f32 v{vMAX}, v{vMAX}, v{vS}, v{vS+1}")
    a(f"v_max3_f32 v{vMAX}, v{vMAX}, v{vS+2}, v{vS+3}")
    a(f"v_cvt_pk_bf16_f32 v{vS}, v{vS}, v{vS+1}")
    a(f"v_cvt_pk_bf16_f32 v{vS+1}, v{vS+2}, v{vS+3}")
    a(f"s_mov_b64 exec, s[{sMASK}:{sMASK+1}]")
    a(f"ds_write_b64 v{vSA}, v[{vS}:{vS+1}]")
    a("s_mov_b64 exec, -1")
    a(f"v_add_u32 v{vSA}, 64, v{vSA}")
    feedback("K")
    a(f"s_cmp_lt_u32 s{sTT}, 256")
    a("s_cbranch_scc1 L_K")
    ts(4)
    a(f"s_lshl_b32 s{sT0}, s{sW1}, 4")
    a(f"s_add_u32 s{sT0}, s{sT0}, {MISC+MX}")
    a(f"v_lshlrev_b32 v26, 6, v{vQH}")
    a(f"v_lshl_add_u32 v27, v{vG}, 2, v26")
    a(f"v_add_u32 v27, s{sT0}, v27")
    a(f"s_mov_b64 exec, s[{sMASK}:{sMASK+1}]")
    a(f"ds_write_b32 v27, v{vMAX}")
    a("s_mov_b64 exec, -1")
    signal(vFL,CMX,vONE)
    spin_ge(vFL,CMX,4,vT)
    a(f"v_add_u32 v26, {MISC+MX}, v26")
    for k in range(4): a(f"ds_read_b128 v[{72+4*k}:{75+4*k}], v26 offset:{k*16}")
    a(f"v_subrev_u32 v{vSA}, {64*64}, v{vSA}")
    a("s_waitcnt lgkmcnt(0)")
    a("v_max3_f32 v72, v72, v73, v74")
    for k in range(75,87,2): a(f"v_max3_f32 v72, v72, v{k}, v{k+1}")
    a("v_max_f32 v72, v72, v87")
    vNM=113; vL=114; vVA=115; vVC=116; vW=118
    a(f"s_mov_b32 s{sC}, {CEXP:#x}")
    a(f"v_mul_f32 v{vNM}, s{sC}, v72")
    a(f"v_sub_f32 v{vNM}, 0, v{vNM}")
    a(f"v_mov_b32 v{vL}, 0")
    a(f"v_lshlrev_b32 v{vVA}, 11, v{vG}")
    a(f"v_lshl_add_u32 v{vVA}, v{vN}, 4, v{vVA}")
    vO=120
    for k in range(8): a(f"v_mov_b32 v{vO+k}, 0")
    vVF=72; vP=104; vAP=128
    a.lab("L_V")
    a(f"ds_read_b64 v[{vW}:{vW+1}], v{vSA}")
    wait_full("V")
    a(f"v_add_u32 v{vVC}, s{sSLO}, v{vVA}")
    for r in range(4):
        for h in range(2):
            b=vVF+4*(2*r+h)
            a(f"ds_read_b128 v[{b}:{b+3}], v{vVC} offset:{RING+r*512+h*256}")
    a("s_waitcnt lgkmcnt(8)")
    a(f"v_lshlrev_b32 v{vP}, 16, v{vW}")
    a(f"v_and_b32 v{vP+1}, 0xffff0000, v{vW}")
    a(f"v_lshlrev_b32 v{vP+2}, 16, v{vW+1}")
    a(f"v_and_b32 v{vP+3}, 0xffff0000, v{vW+1}")
    for r in range(4): a(f"v_fma_f32 v{vP+r}, v{vP+r}, s{sC}, v{vNM}")
    for r in range(4): a(f"v_exp_f32 v{vP+r}, v{vP+r}")
    a(f"v_add_u32 v{vSA}, 64, v{vSA}")
    a(f"v_cvt_pk_bf16_f32 v{vW}, v{vP}, v{vP+1}")
    a(f"v_cvt_pk_bf16_f32 v{vW+1}, v{vP+2}, v{vP+3}")
    a(f"v_add_f32 v{vP}, v{vP}, v{vP+1}")
    a(f"v_add_f32 v{vP+2}, v{vP+2}, v{vP+3}")
    a(f"v_add_f32 v{vL}, v{vL}, v{vP}")
    a(f"v_add_f32 v{vL}, v{vL}, v{vP+2}")
    for r in range(4):
        for t in range(4):
            a(f"v_perm_b32 v{vAP+4*r+t}, v{vW+(r>>1)}, v{vW+(r>>1)}, v{vSEL+4*(r&1)+t}")
    a(f"v_mov_b32 v{vDV}, s{sJ1}")
    a("s_waitcnt lgkmcnt(0)")
    a(f"ds_write_b32 v{vDN}, v{vDV}")
    for r in range(4):
        for h in range(2):
            b=vVF+4*(2*r+h)
            a(f"v_mfma_f32_16x16x32_bf16 v[{vO+4*h}:{vO+4*h+3}], v[{vAP+4*r}:{vAP+4*r+3}], v[{b}:{b+3}], v[{vO+4*h}:{vO+4*h+3}]")
    advance()
    feedback("V")
    a(f"s_cmp_lt_u32 s{sTT}, 512")
    a("s_cbranch_scc1 L_V")
    ts(5)
    a(f"s_lshl_b32 s{sT0}, s{sW1}, 12")
    a(f"s_add_u32 s{sT0}, s{sT0}, {SBUF}")
    a(f"v_lshrrev_b32 v26, 1, v{vG}")
    a(f"v_lshlrev_b32 v26, 10, v26")
    a(f"v_and_b32 v27, 1, v{vG}")
    a(f"v_lshl_add_u32 v26, v27, 4, v26")
    a(f"v_lshl_add_u32 v26, v{vN}, 5, v26")
    a(f"v_add_u32 v26, s{sT0}, v26")
    a(f"s_lshl_b32 s{sT0}, s{sW1}, 4")
    a(f"s_add_u32 s{sT0}, s{sT0}, {MISC+LS}")
    a(f"v_lshlrev_b32 v27, 6, v{vQH}")
    a(f"v_lshl_add_u32 v27, v{vG}, 2, v27")
    a(f"v_add_u32 v27, s{sT0}, v27")
    a("s_nop 1")
    a(f"ds_write_b128 v26, v[{vO}:{vO+3}]")
    a(f"ds_write_b128 v26, v[{vO+4}:{vO+7}] offset:512")
    a(f"s_mov_b64 exec, s[{sMASK}:{sMASK+1}]")
    a(f"ds_write_b32 v27, v{vL}")
    a("s_mov_b64 exec, -1")
    a("s_waitcnt lgkmcnt(0)")
    a("s_mov_b64 exec, 1")
    a(f"ds_add_rtn_u32 v{vT}, v{vFL}, v{vONE} offset:{CFIN}")
    a("s_mov_b64 exec, -1")
    a("s_waitcnt lgkmcnt(0)")
    a(f"v_readfirstlane_b32 s{sT0}, v{vT}")
    a(f"s_cmp_eq_u32 s{sT0}, 3")
    a("s_cbranch_scc0 L_end")
    a("v_lshrrev_b32 v25, 5, v0")
    a("v_and_b32 v28, 31, v0")
    a("v_lshlrev_b32 v26, 10, v25")
    a("v_lshl_add_u32 v26, v28, 5, v26")
    a(f"v_add_u32 v26, {SBUF}, v26")
    for w in range(4):
        a(f"ds_read_b128 v[{32+8*w}:{35+8*w}], v26 offset:{w*4096}")
        a(f"ds_read_b128 v[{36+8*w}:{39+8*w}], v26 offset:{w*4096+16}")
    a("v_lshlrev_b32 v27, 6, v25")
    a(f"v_add_u32 v27, {MISC+LS}, v27")
    for k in range(4): a(f"ds_read_b128 v[{64+4*k}:{67+4*k}], v27 offset:{k*16}")
    a(f"s_lshl_b32 s{sT0}, s{sISB}, 16")
    a(f"s_lshl_b32 s{sT1}, s{sB}, 13")
    a(f"s_add_u32 s{sT0}, s{sT0}, s{sT1}")
    a(f"s_sub_u32 s{sT1}, 10, s{sISB}")
    a(f"s_lshl_b32 s{sT1}, s{sH}, s{sT1}")
    a(f"s_add_u32 s{sT0}, s{sT0}, s{sT1}")
    a(f"s_add_u32 s{sT0}, s{sT0}, {O_OFF}")
    a(f"v_lshlrev_b32 v29, 4, v0")
    a(f"v_add_u32 v29, s{sT0}, v29")
    a("s_waitcnt lgkmcnt(0)")
    for k in range(8):
        a(f"v_add_f32 v{32+k}, v{32+k}, v{40+k}")
        a(f"v_add_f32 v{48+k}, v{48+k}, v{56+k}")
    for k in range(8): a(f"v_add_f32 v{32+k}, v{32+k}, v{48+k}")
    for k in range(8): a(f"v_add_f32 v{64+k}, v{64+k}, v{72+k}")
    for k in range(4): a(f"v_add_f32 v{64+k}, v{64+k}, v{68+k}")
    a("v_add_f32 v64, v64, v65")
    a("v_add_f32 v66, v66, v67")
    a("v_add_f32 v64, v64, v66")
    a("v_rcp_f32 v64, v64")
    a("s_nop 0")
    for k in range(8): a(f"v_mul_f32 v{32+k}, v{32+k}, v64")
    for k in range(4): a(f"v_cvt_pk_bf16_f32 v{32+k}, v{32+2*k}, v{33+2*k}")
    a(f"s_cmp_eq_u32 s{sISB}, 1")
    a(f"s_cselect_b32 exec_hi, 0, -1")
    a(f"global_store_dwordx4 v29, v[32:35], s[{sWS}:{sWS+1}] sc1")
    a(f"s_lshl_b32 s{sT0}, s{sISB}, 7")
    a(f"s_lshl_b32 s{sT1}, s{sH}, 2")
    a(f"s_add_u32 s{sT0}, s{sT0}, s{sT1}")
    a(f"v_mov_b32 v29, s{sT0}")
    a("s_waitcnt vmcnt(0)")
    a("s_mov_b64 exec, 1")
    a(f"global_atomic_add v29, v{vONE}, s[{sDBG}:{sDBG+1}] sc1")
    ts(6)
    ts_dump([3,4,5,6,7,8,9])
    a("s_endpgm")
    a.lab("L_h0")
    a.c("helper wave 0: flag init, pointers")
    a(f"s_load_dwordx4 s[{sDBG}:{sDBG+3}], s[0:1], 88")
    zero_flags(2,3)
    a("s_waitcnt lgkmcnt(0)")
    a("s_barrier")
    a.lab("L_hout")
    a.c("---------------- helpers: out projection ----------------")
    sHJ=54
    vN=2; vG=3
    a(f"s_sub_u32 s{sHJ}, s2, 192")
    a(f"s_and_b32 s{sX}, s{sHJ}, 7")
    a(f"s_lshr_b32 s{sT1}, s{sHJ}, 3")
    a(f"s_and_b32 s{sSLOT}, s{sT1}, 3     ; sub")
    a(f"s_lshr_b32 s{sT1}, s{sHJ}, 5      ; hi")
    a(f"s_lshl_b32 s{sT1}, s{sT1}, 3")
    a(f"s_add_u32 s{sGRP}, s{sT1}, s{sX}   ; gamma")
    a(f"s_cmp_ge_u32 s{sGRP}, 14")
    a("s_cbranch_scc1 L_h_idle")
    a(f"s_cmp_ge_u32 s{sGRP}, 7")
    a(f"s_cselect_b32 s{sISB}, 1, 0")
    a(f"s_cselect_b32 s{sT0}, 40, 0")
    a(f"s_cselect_b32 s{sT1}, 7, 0")
    a(f"s_add_u32 s{sKA}, s0, s{sT0}")
    a(f"s_addc_u32 s{sKA+1}, s1, 0")
    a(f"s_sub_u32 s{sGRP}, s{sGRP}, s{sT1}")
    a(f"s_lshl_b32 s{sH}, s{sGRP}, 2")
    a(f"s_add_u32 s{sH}, s{sH}, s{sSLOT}")
    a(f"s_load_dwordx2 s[{sP0}:{sP0+1}], s[{sKA}:{sKA+1}], 32   ; wo")
    a(f"s_load_dwordx2 s[{sOUT}:{sOUT+1}], s[0:1], 80")
    a(f"v_and_b32 v{vN}, 15, v0")
    a(f"v_lshrrev_b32 v{vG}, 4, v0")
    a(f"s_mul_i32 s{sT0}, s{sWAVE}, {512*896}")
    a(f"s_lshl_b32 s{sT1}, s{sH}, 5")
    a(f"s_add_u32 s{sT0}, s{sT0}, s{sT1}")
    a(f"v_mul_u32_u24 v4, {8*896}, v{vG}")
    a(f"v_lshl_add_u32 v4, v{vN}, 1, v4")
    a(f"v_add_u32 v4, s{sT0}, v4")
    a(f"v_add_u32 v5, {4*896}, v4")
    a("s_waitcnt lgkmcnt(0)")
    a(f"s_mov_b32 s{sSRD0}, s{sP0}")
    a(f"s_mov_b32 s{sSRD0+1}, s{sP0+1}")
    a(f"s_mov_b32 s{sSRD0+2}, 3670016")
    a(f"s_mov_b32 s{sSRD0+3}, 0x20000")
    vWT=64; vTMP=128
    for ch in range(4 if not nowo else 0):
        for si in range(4):
            s_=ch*4+si
            a(f"s_mov_b32 s{sT0}, {s_*32*896}")
            for e in range(8):
                a(f"buffer_load_ushort v{vTMP+si*8+e}, v{4+(e>>2)}, s[{sSRD0}:{sSRD0+3}], s{sT0} offen offset:{(e&3)*896} {wopol}")
        a("s_waitcnt vmcnt(0)")
        for si in range(4):
            s_=ch*4+si
            for q in range(4):
                a(f"v_lshl_or_b32 v{vWT+4*s_+q}, v{vTMP+si*8+2*q+1}, 16, v{vTMP+si*8+2*q}")
    a(f"s_lshl_b32 s{sT0}, s{sISB}, 16")
    a(f"s_add_u32 s{sT0}, s{sT0}, {O_OFF}")
    a(f"s_add_u32 s{sSRD1}, s{sWS}, s{sT0}")
    a(f"s_addc_u32 s{sSRD1+1}, s{sWS+1}, 0")
    a(f"s_mov_b32 s{sSRD1+2}, 65536")
    a(f"s_mov_b32 s{sSRD1+3}, 0x20000")
    sJ=58
    a(f"s_lshl_b32 s{sT0}, s{sWAVE}, 10")
    a(f"v_lshlrev_b32 v6, 4, v0")
    a(f"v_add_u32 v6, s{sT0}, v6")
    for b in range(8): a(f"s_mov_b32 s{sJ+b}, {b*8192}")
    OST=32768
    a(f"s_mul_i32 s{sT0}, s{sWAVE}, 8448")
    a(f"s_add_u32 s{sT0}, s{sT0}, {OST}")
    a(f"v_lshlrev_b32 v9, 4, v0")
    a(f"v_add_u32 v9, s{sT0}, v9")
    a(f"v_and_b32 v10, 7, v{vN}")
    a(f"v_mul_u32_u24 v10, 1056, v10")
    a(f"v_lshl_add_u32 v10, v{vG}, 4, v10")
    a(f"v_add_u32 v10, s{sT0}, v10")
    ts(0)
    a(f"s_cmp_lg_u32 s{sWAVE}, 0")
    a("s_cbranch_scc1 L_h_wait")
    a(f"s_lshl_b32 s{sT0}, s{sISB}, 3")
    a(f"s_add_u32 s{sT0}, s{sT0}, 7")
    a(f"v_and_b32 v7, s{sT0}, v0")
    a(f"v_lshlrev_b32 v7, 2, v7")
    a(f"s_lshl_b32 s{sT0}, s{sISB}, 7")
    a(f"v_add_u32 v7, s{sT0}, v7")
    a.lab("L_h_poll")
    a(f"global_load_dword v8, v7, s[{sDBG}:{sDBG+1}] sc1")
    a("s_waitcnt vmcnt(0)")
    a("v_cmp_le_u32 vcc, 8, v8")
    a("s_nop 1")
    a("s_cmp_eq_u64 vcc, -1")
    a("s_cbranch_scc1 L_h_wait")
    bound()
    a(f"s_sleep {hsleep}")
    a("s_branch L_h_poll")
    a.lab("L_h_wait")
    a("s_barrier")
    ts(1)
    vOF=128
    for b in range(8):
        a(f"buffer_load_dwordx4 v[{vOF+4*b}:{vOF+4*b+3}], v6, s[{sSRD1}:{sSRD1+3}], s{sJ+b} offen sc1")
    for b in range(8):
        a(f"s_waitcnt vmcnt({7-b})")
        a(f"ds_write_b128 v9, v[{vOF+4*b}:{vOF+4*b+3}] offset:{b*1056}")
    vFR=160
    a("s_waitcnt lgkmcnt(0)")
    for s_ in range(16):
        a(f"ds_read_b128 v[{vFR+4*s_}:{vFR+4*s_+3}], v10 offset:{s_*64}")
    vAC=12
    for s_ in range(16):
        a(f"s_waitcnt lgkmcnt({15-s_})")
        cin="0" if s_==0 else f"v[{vAC}:{vAC+3}]"
        a(f"v_mfma_f32_16x16x32_bf16 v[{vAC}:{vAC+3}], v[{vFR+4*s_}:{vFR+4*s_+3}], v[{vWT+4*s_}:{vWT+4*s_+3}], {cin}")
    ts(2)
    a(f"s_lshl_b32 s{sT0}, s{sWAVE}, 9")
    a(f"v_lshlrev_b32 v11, 8, v{vG}")
    a(f"v_lshl_add_u32 v11, v{vN}, 2, v11")
    a(f"v_add_u32 v11, s{sT0}, v11")
    a("s_nop 4")
    a("s_mov_b32 exec_hi, 0")
    for r in range(4): a(f"ds_write_b32 v11, v{vAC+r} offset:{r*64}")
    a("s_mov_b64 exec, -1")
    a("s_waitcnt lgkmcnt(0)")
    a("s_barrier")
    a(f"s_cmp_lg_u32 s{sWAVE}, 0")
    a("s_cbranch_scc1 L_end")
    ts(3)
    a("v_lshrrev_b32 v12, 3, v0")
    a("v_and_b32 v13, 7, v0")
    a("v_lshlrev_b32 v14, 6, v12")
    a("v_lshl_add_u32 v14, v13, 3, v14")
    for w in range(8): a(f"ds_read_b64 v[{16+2*w}:{17+2*w}], v14 offset:{w*512}")
    a(f"s_mul_i32 s{sT0}, s{sISB}, 896")
    a(f"s_lshl_b32 s{sT1}, s{sH}, 5")
    a(f"s_add_u32 s{sT0}, s{sT0}, s{sT1}")
    a(f"v_mul_u32_u24 v15, 1792, v12")
    a(f"v_lshl_add_u32 v15, v13, 2, v15")
    a(f"v_add_u32 v15, s{sT0}, v15")
    a(f"s_mov_b32 s{sSRD0}, s{sOUT}")
    a(f"s_mov_b32 s{sSRD0+1}, s{sOUT+1}")
    a(f"s_mov_b32 s{sSRD0+2}, 14336")
    a(f"s_mov_b32 s{sSRD0+3}, 0x20000")
    a("s_waitcnt lgkmcnt(0)")
    for w in range(1,8):
        a(f"v_add_f32 v16, v16, v{16+2*w}")
        a(f"v_add_f32 v17, v17, v{17+2*w}")
    a("v_cvt_pk_bf16_f32 v16, v16, v17")
    a(f"buffer_store_dword v16, v15, s[{sSRD0}:{sSRD0+3}], 0 offen")
    ts(4)
    dstamp(13)
    ts_dump([0,1,2,3,4])
    a("s_endpgm")
    a.lab("L_h_idle")
    a(f"s_cmp_lg_u32 s2, 230")
    a("s_cbranch_scc1 L_end")
    a(f"s_cmp_lg_u32 s{sWAVE}, 0")
    a("s_cbranch_scc1 L_end")
    a(f"s_load_dword s{sTAG}, s[{sWS}:{sWS+1}], {E_OFF}")
    if probe>=0 or probe==-2:
        a("s_memrealtime s[60:61]")
    a("v_cmp_gt_u32 vcc, 8, v0")
    a("v_lshlrev_b32 v4, 2, v0")
    a("v_add_u32 v5, 96, v4          ; 128 + (lane-8)*4")
    a("v_cndmask_b32 v4, v5, v4, vcc")
    a("v_cmp_gt_u32 vcc, 24, v0")
    a("v_mov_b32 v5, 0")
    a("s_nop 0")
    a("v_cndmask_b32 v4, v5, v4, vcc")
    a("s_waitcnt lgkmcnt(0)")
    a(f"s_add_u32 s{sTAG}, s{sTAG}, 0x9e3779b1")
    a.lab("L_e_poll")
    a(f"global_load_dword v8, v4, s[{sDBG}:{sDBG+1}] sc1")
    a("s_waitcnt vmcnt(0)")
    a("v_cmp_le_u32 vcc, 8, v8")
    a("s_nop 1")
    a("s_cmp_eq_u64 vcc, -1")
    a("s_cbranch_scc1 L_e_done")
    bound()
    a("s_sleep 32")
    a("s_branch L_e_poll")
    a.lab("L_e_done")
    a(f"v_mov_b32 v4, {E_OFF}")
    a(f"v_mov_b32 v5, s{sTAG}")
    a("s_mov_b64 exec, 1")
    a(f"global_store_dword v4, v5, s[{sWS}:{sWS+1}]")
    if probe>=0 or probe==-2:
        a.lab("L_pr1")
        a("s_memrealtime s[62:63]")
        a("s_waitcnt lgkmcnt(0)")
        a("s_sub_u32 s64, s62, s60")
        a("s_cmp_lt_u32 s64, 17000")
        a("s_cbranch_scc1 L_pr1")
        if probe>=0:
            a(f"v_mov_b32 v6, {probe*4}")
            a(f"global_load_dword v7, v6, s[{sDBG}:{sDBG+1}] sc1")
            a("s_waitcnt vmcnt(0)")
            a("v_readfirstlane_b32 s65, v7")
            a("s_nop 3")
            a("s_sub_u32 s65, s65, s60        ; delta")
            a("s_min_u32 s65, s65, 40000")
            a("s_add_u32 s65, s65, 20000")
        else:
            a("s_mov_b32 s65, 20000")
        a.lab("L_pr2")
        a("s_memrealtime s[62:63]")
        a("s_waitcnt lgkmcnt(0)")
        a("s_sub_u32 s64, s62, s60")
        a("s_cmp_lt_u32 s64, s65")
        a("s_cbranch_scc1 L_pr2")
    a.lab("L_end")
    a("s_endpgm")
    body=a.text()
    hdr=open("cdna_kernels/"+NAME+".s.ref").read().split("\n")
    head=[l for l in hdr if l.startswith(";") and "@launch" not in l and "Override launch" not in l and "grid=ceil" not in l]
    out="\n".join(head)+"\n"
    out+=f"; @launch grid=(256,1,1) block=(512,1,1) lds={LDS}\n"
    out+=f""".amdgcn_target "amdgcn-amd-amdhsa--gfx950"
.text
.globl {KN}
.p2align 8
.type {KN},@function
"""
    out+=body
    out+=f""".section .rodata,"a"
.p2align 6
.amdhsa_kernel {KN}
  .amdhsa_next_free_vgpr 256
  .amdhsa_next_free_sgpr 96
  .amdhsa_accum_offset 256
  .amdhsa_group_segment_fixed_size 0
  .amdhsa_kernarg_size 104
  .amdhsa_user_sgpr_count 2
  .amdhsa_user_sgpr_kernarg_segment_ptr 1
  .amdhsa_system_sgpr_workgroup_id_x 1
.end_amdhsa_kernel
"""
    return out, LDS

META=""".amdgpu_metadata
---
amdhsa.version: [1, 2]
amdhsa.kernels:
  - .name: {KN}
    .symbol: {KN}.kd
    .kernarg_segment_size: 104
    .kernarg_segment_align: 8
    .group_segment_fixed_size: 0
    .private_segment_fixed_size: 0
    .wavefront_size: 64
    .sgpr_count: 102
    .vgpr_count: 256
    .max_flat_workgroup_size: 512
    .args:
      - {{.name: kernargs, .size: 104, .offset: 0, .value_kind: by_value}}
...
.end_amdgpu_metadata
"""
if __name__=="__main__":
    import argparse
    ap=argparse.ArgumentParser()
    ap.add_argument("-o",default="cdna_kernels/"+NAME+".s")
    ap.add_argument("--diag",action="store_true")
    ap.add_argument("--meta",action="store_true")
    ap.add_argument("--D",type=int,default=40)
    ap.add_argument("--NS",type=int,default=17)
    ap.add_argument("--qwait",type=int,default=0)
    ap.add_argument("--nowo",type=int,default=0)
    ap.add_argument("--DINIT",type=int,default=24)
    ap.add_argument("--DNORM",type=int,default=40)
    ap.add_argument("--fb",type=int,default=0)
    ap.add_argument("--dbgts",type=int,default=0)
    ap.add_argument("--probe",type=int,default=-1)
    ap.add_argument("--polVA",default="nt")
    ap.add_argument("--polVB",default="nt")
    ap.add_argument("--fbp",type=int,default=4)
    ap.add_argument("--th1",type=int,default=16)
    ap.add_argument("--th2",type=int,default=40)
    ap.add_argument("--dstep",type=int,default=4)
    ap.add_argument("--pol",default="nt")
    ap.add_argument("--wqpol",default="nt")
    ap.add_argument("--wopol",default="nt")
    ap.add_argument("--hsleep",type=int,default=8)
    ap.add_argument("--qsleep",type=int,default=9)
    ap.add_argument("--qfirst",type=int,default=1)
    args=ap.parse_args()
    s,lds=gen(D=args.D,NS=args.NS,diag=args.diag,pol=args.pol,wqpol=args.wqpol,wopol=args.wopol,hsleep=args.hsleep,qsleep=args.qsleep,qfirst=bool(args.qfirst),qwait=args.qwait,nowo=bool(args.nowo),DINIT=args.DINIT,DNORM=args.DNORM,fb=bool(args.fb),fbp=args.fbp,th1=args.th1,th2=args.th2,dstep=args.dstep,dbgts=bool(args.dbgts),polVA=args.polVA,polVB=args.polVB,probe=args.probe)
    if args.meta: s+=META.format(KN=KN)
    open(args.o,"w").write(s)
    print("wrote",args.o,"lds",lds)
```

```python
import sys, struct
NAME="concat_heads__gqa_block_cached__mha_block_cached__decode"
KN=NAME+"_kernel"

class Asm:
    def __init__(s): s.L=[]; s.uid=0
    def __call__(s,x): s.L.append("  "+x)
    def lab(s,x): s.L.append(x+":")
    def c(s,x): s.L.append("  ; "+x)
    def new(s,p): s.uid+=1; return f"L_{p}_{s.uid}"
    def text(s): return "\n".join(s.L)+"\n"

def gen(D=40, NS=17, diag=False, pol="nt", spin_sleep=0, wqpol="nt", wopol="nt", hsleep=2, hslow=32, qsleep=16,
        wolate=True, probe=-1, trig=0):
    a=Asm()
    RING=0; RINGB=NS*8192
    SBUF=RINGB
    MISC=SBUF+16384
    QPART=(NS-4)*8192
    FULL=0; DONE=16; CQ1=32; CQ2=36; CMX=40; CFIN=44
    QL=256; MX=1280; LS=1408
    LDS=MISC+2048
    assert LDS<=163840
    CEXP=struct.unpack("<I",struct.pack("<f",1.4426950408889634/16.0))[0]
    O_OFF=0
    E_OFF=0x30004
    QP_OFF=0x100000
    TS_OFF=0x20000000
    sWAVE=3; sX=4; sSLOT=5; sB=6; sGRP=7; sKA=8
    sPAIR=10; sH=11; sISB=12; sT0=13; sT1=14; sT2=15
    sP0=16
    sDBG=20
    sWS=22
    sOUT=24
    sTAG=26
    sSRD0=28; sSRD1=32
    sTS1=42
    sW1=54
    sSP=72
    sTSB=76
    def ts(slot):
        if not diag: return
        a(f"s_memrealtime s[{sTSB+2*slot}:{sTSB+2*slot+1}]")
        a("s_waitcnt lgkmcnt(0)")
    def ts_dump(slots):
        if not diag: return
        a(f"s_load_dwordx2 s[{sTS1}:{sTS1+1}], s[0:1], 96")
        a("s_waitcnt lgkmcnt(0)")
        a(f"s_add_u32 s{sTS1}, s{sTS1}, {TS_OFF}")
        a(f"s_addc_u32 s{sTS1+1}, s{sTS1+1}, 0")
        a(f"s_lshl_b32 s44, s2, 7")
        a(f"v_mov_b32 v250, s44")
        a(f"s_mov_b64 exec, 1")
        for slot in slots:
            a(f"v_mov_b32 v252, s{sTSB+2*slot}")
            a(f"v_mov_b32 v253, s{sTSB+2*slot+1}")
            a(f"global_store_dwordx2 v250, v[252:253], s[{sTS1}:{sTS1+1}] offset:{slot*8}")
            a("s_nop 1")
    def bound():
        a(f"s_add_u32 s{sSP}, s{sSP}, 1")
        a(f"s_cmp_gt_u32 s{sSP}, 0x400000")
        a("s_cbranch_scc1 L_end")
    def spin_ge(vaddr, off, target, vt, st=sT0):
        L=a.new("spin"); E=a.new("spun")
        a.lab(L)
        a(f"ds_read_b32 v{vt}, v{vaddr} offset:{off}")
        a("s_waitcnt lgkmcnt(0)")
        a(f"v_readfirstlane_b32 s{st}, v{vt}")
        a(f"s_cmp_ge_u32 s{st}, {target}")
        a(f"s_cbranch_scc1 {E}")
        bound()
        if spin_sleep: a(f"s_sleep {spin_sleep}")
        a(f"s_branch {L}")
        a.lab(E)
    def signal(vaddr, off, vone):
        a("s_waitcnt lgkmcnt(0)")
        a("s_mov_b64 exec, 1")
        a(f"ds_add_u32 v{vaddr}, v{vone} offset:{off}")
        a("s_mov_b64 exec, -1")
    def attn_decode():
        a(f"s_and_b32 s{sX}, s2, 7")
        a(f"s_lshr_b32 s{sSLOT}, s2, 3")
        a(f"s_and_b32 s{sB}, s{sSLOT}, 7")
        a(f"s_lshr_b32 s{sGRP}, s{sSLOT}, 3")
        a(f"s_cmp_lg_u32 s{sGRP}, 0")
        a(f"s_cselect_b32 s{sISB}, 1, 0")
        a(f"s_lshr_b32 s{sT1}, s{sGRP}, 1")
        a(f"s_lshl_b32 s{sT1}, s{sT1}, 3")
        a(f"s_add_u32 s{sH}, s{sX}, s{sT1}")
        a(f"s_add_u32 s{sT1}, s{sISB}, 3")
        a(f"s_lshl_b32 s{sPAIR}, s{sB}, s{sT1}")
        a(f"s_add_u32 s{sPAIR}, s{sPAIR}, s{sH}")
    def zero_flags(vz,va):
        a(f"v_mov_b32 v{vz}, 0")
        a(f"v_lshlrev_b32 v{va}, 2, v0")
        a(f"v_add_u32 v{va}, {MISC}, v{va}")
        a(f"ds_write_b32 v{va}, v{vz}")

    a.lab(KN)
    a("s_cmp_ge_u32 s2, 256")
    a("s_cbranch_scc1 L_end")
    a("v_lshrrev_b32 v1, 6, v0")
    a("v_and_b32 v0, 63, v0")
    a(f"s_mov_b32 s{sSP}, 0")
    a(f"v_readfirstlane_b32 s{sWAVE}, v1")
    a(f"s_cmp_lg_u32 s{sWAVE}, 0")
    a("s_cbranch_scc1 L_qw")
    a("s_cmp_ge_u32 s2, 192")
    a("s_cbranch_scc1 L_h0")
    a.c("---------------- loader wave ----------------")
    a(f"s_cmp_ge_u32 s2, 64")
    a(f"s_cselect_b32 s{sT0}, 40, 0")
    a(f"s_add_u32 s{sKA}, s0, s{sT0}")
    a(f"s_addc_u32 s{sKA+1}, s1, 0")
    a(f"s_load_dwordx4 s[{sP0}:{sP0+3}], s[{sKA}:{sKA+1}], 8")
    a("s_setprio 3")
    attn_decode()
    vZ=2; vA=3; vFA=4; vFV=5; vKO=8; vVO=16; vD=20
    zero_flags(vZ,vA)
    a(f"v_mov_b32 v{vFA}, {MISC}")
    a("v_lshrrev_b32 v6, 5, v0      ; hi")
    a("v_and_b32 v7, 31, v0        ; lo")
    for i in range(8):
        a(f"v_add_u32 v{vKO+i}, {2*i}, v6")
        a(f"v_xor_b32 v{vKO+i}, v{vKO+i}, v7")
        a(f"v_lshlrev_b32 v{vKO+i}, 4, v{vKO+i}")
        a(f"v_lshl_add_u32 v{vKO+i}, v6, 9, v{vKO+i}")
        if i>=4: a(f"v_add_u32 v{vKO+i}, 4096, v{vKO+i}")
    a(f"v_lshlrev_b32 v{vVO}, 4, v0")
    a(f"v_add_u32 v{vVO+1}, 4096, v{vVO}")
    a(f"s_lshl_b32 s{sT0}, s{sPAIR}, 21")
    a("s_waitcnt lgkmcnt(0)")
    a("s_barrier")
    a(f"s_add_u32 s{sSRD0}, s{sP0}, s{sT0}")
    a(f"s_addc_u32 s{sSRD0+1}, s{sP0+1}, 0")
    a(f"s_mov_b32 s{sSRD0+2}, 0x200000")
    a(f"s_mov_b32 s{sSRD0+3}, 0x20000")
    a(f"s_add_u32 s{sSRD1}, s{sP0+2}, s{sT0}")
    a(f"s_addc_u32 s{sSRD1+1}, s{sP0+3}, 0")
    a(f"s_mov_b32 s{sSRD1+2}, 0x200000")
    a(f"s_mov_b32 s{sSRD1+3}, 0x20000")
    sT=48; sAL=49; sSL=50; sOFF=51; sPUB=52
    a(f"s_mov_b32 s{sT}, 0")
    a(f"s_mov_b32 s{sAL}, {NS-4}")
    a(f"s_mov_b32 s{sSL}, {RING}")
    a(f"s_mov_b32 s{sPUB}, {1-(D+7)//8}")
    ts(0)
    for ph,(srd,vo,tend) in enumerate(((sSRD0,[vKO+i for i in range(8)],256),(sSRD1,[vVO]*4+[vVO+1]*4,512))):
        LT=f"L_ld_tile{ph}"; LG=f"L_ld_go{ph}"; LR=f"L_ld_ref{ph}"
        a(f"s_mov_b32 s{sOFF}, 0")
        a.lab(LT)
        a(f"s_cmp_lt_u32 s{sT}, s{sAL}")
        a(f"s_cbranch_scc1 {LG}")
        a.lab(LR)
        a(f"ds_read_b128 v[{vD}:{vD+3}], v{vFA} offset:{DONE}")
        a("s_waitcnt lgkmcnt(0)")
        a(f"v_min_u32 v{vD}, v{vD}, v{vD+1}")
        a(f"v_min3_u32 v{vD}, v{vD}, v{vD+2}, v{vD+3}")
        a("s_nop 0")
        a(f"v_readfirstlane_b32 s{sAL}, v{vD}")
        a(f"s_lshl_b32 s{sAL}, s{sAL}, 2")
        a(f"s_add_u32 s{sAL}, s{sAL}, {NS-4}")
        a(f"s_cmp_lt_u32 s{sT}, s{sAL}")
        a(f"s_cbranch_scc1 {LG}")
        bound()
        a("s_sleep 1")
        a(f"s_branch {LR}")
        a.lab(LG)
        a(f"s_mov_b32 m0, s{sSL}")
        a(f"s_waitcnt vmcnt({D-4})")
        for i in range(4):
            a(f"buffer_load_dwordx4 v{vo[i]}, s[{srd}:{srd+3}], s{sOFF} offen offset:{i*1024} {pol} lds")
        a(f"s_add_u32 m0, s{sSL}, 4096")
        a(f"v_mov_b32 v{vFV}, s{sPUB}")
        a(f"s_waitcnt vmcnt({D-4})")
        a(f"ds_write_b32 v{vFA}, v{vFV} offset:{FULL}")
        for i in range(4,8):
            a(f"buffer_load_dwordx4 v{vo[i]}, s[{srd}:{srd+3}], s{sOFF} offen offset:{(i-4)*1024} {pol} lds")
        a(f"s_add_u32 s{sOFF}, s{sOFF}, 8192")
        a(f"s_add_u32 s{sSL}, s{sSL}, 8192")
        a(f"s_cmp_eq_u32 s{sSL}, {RING+RINGB}")
        a(f"s_cselect_b32 s{sSL}, {RING}, s{sSL}")
        a(f"s_add_u32 s{sPUB}, s{sPUB}, 1")
        a(f"s_add_u32 s{sT}, s{sT}, 1")
        a(f"s_cmp_lt_u32 s{sT}, {tend}")
        a(f"s_cbranch_scc1 {LT}")
        if ph==0: ts(1)
    for k in range((D+7)//8*8-8,-1,-8):
        a(f"v_mov_b32 v{vFV}, {512-k//8}")
        a(f"s_waitcnt vmcnt({k})")
        a(f"ds_write_b32 v{vFA}, v{vFV} offset:{FULL}")
    ts(2)
    ts_dump([0,1,2])
    a("s_endpgm")
    a.lab("L_qw")
    a.c("---------------- distributed q projection ----------------")
    a(f"s_lshr_b32 s{sT0}, s2, 7")
    a(f"s_mul_i32 s{sT0}, s{sT0}, 40")
    a(f"s_add_u32 s{sKA}, s0, s{sT0}")
    a(f"s_addc_u32 s{sKA+1}, s1, 0")
    a(f"s_load_dwordx2 s[{sP0}:{sP0+1}], s[{sKA}:{sKA+1}], 0    ; x")
    a(f"s_load_dwordx2 s[{sP0+2}:{sP0+3}], s[{sKA}:{sKA+1}], 24   ; wq")
    a(f"s_load_dwordx4 s[{sDBG}:{sDBG+3}], s[0:1], 88")
    a(f"s_sub_u32 s{sW1}, s{sWAVE}, 1")
    vN=2; vG=3; vS16=4; vXO=8; vWO=9; vX=10; vFL=14; vONE=15; vAO=16; vAC=24; vWq=40
    a(f"v_and_b32 v{vN}, 15, v0")
    a(f"v_lshrrev_b32 v{vG}, 4, v0")
    a(f"s_and_b32 s{sT0}, s2, 3")
    a(f"s_mul_i32 s{sT0}, s{sT0}, 112")
    a(f"s_lshl_b32 s{sT1}, s{sW1}, 4")
    a(f"s_add_u32 s{sT0}, s{sT0}, s{sT1}       ; row0")
    a(f"v_lshl_add_u32 v16, v{vG}, 2, s{sT0}    ; row0+4g")
    a(f"v_lshrrev_b32 v{vXO}, 2, v{vN}")
    a(f"v_mul_u32_u24 v{vXO}, 896, v{vXO}")
    a(f"v_lshl_add_u32 v{vXO}, v16, 1, v{vXO}")
    a(f"s_lshr_b32 s{sT1}, s2, 2")
    a(f"s_and_b32 s{sT1}, s{sT1}, 31")
    a(f"s_lshl_b32 s{sT1}, s{sT1}, 8")
    a(f"v_lshlrev_b32 v{vWO}, 13, v16")
    a(f"v_lshl_add_u32 v{vWO}, v{vN}, 4, v{vWO}")
    a(f"v_add_u32 v{vWO}, s{sT1}, v{vWO}")
    a(f"s_mov_b32 s56, 8192")
    a(f"s_mov_b32 s57, 16384")
    a(f"s_mov_b32 s58, 24576")
    a(f"v_mov_b32 v{vFL}, {MISC}")
    a(f"v_mov_b32 v{vONE}, 1")
    a("s_waitcnt lgkmcnt(0)")
    a(f"s_load_dword s{sTAG}, s[{sWS}:{sWS+1}], {E_OFF}")
    a(f"s_mov_b32 s{sSRD1}, s{sP0+2}")
    a(f"s_mov_b32 s{sSRD1+1}, s{sP0+3}")
    a(f"s_mov_b32 s{sSRD1+2}, 3670016")
    a(f"s_mov_b32 s{sSRD1+3}, 0x20000")
    a(f"s_mov_b32 s{sSRD0}, s{sP0}")
    a(f"s_mov_b32 s{sSRD0+1}, s{sP0+1}")
    a(f"s_mov_b32 s{sSRD0+2}, 7168")
    a(f"s_mov_b32 s{sSRD0+3}, 0x20000")
    so=["0","s56","s57","s58"]
    for j in range(4):
        a(f"buffer_load_dwordx4 v[{vWq+4*j}:{vWq+4*j+3}], v{vWO}, s[{sSRD1}:{sSRD1+3}], {so[j]} offen {wqpol}")
    for u in range(2):
        a(f"buffer_load_dwordx2 v[{vX+2*u}:{vX+2*u+1}], v{vXO}, s[{sSRD0}:{sSRD0+3}], 0 offen offset:{u*3584}")
    a("s_barrier")
    a(f"v_and_b32 v16, 1, v{vN}")
    a(f"v_cmp_eq_u32 vcc, 1, v16")
    a(f"v_mov_b32 v17, 0x0c0c0100")
    a(f"v_mov_b32 v18, 0x01000c0c")
    a(f"v_cndmask_b32 v17, v17, v18, vcc")
    a(f"v_mov_b32 v18, 0x0c0c0302")
    a(f"v_mov_b32 v19, 0x03020c0c")
    a(f"v_cndmask_b32 v18, v18, v19, vcc")
    a(f"v_bfe_u32 v16, v{vN}, 1, 1")
    a(f"v_mov_b32 v19, 0x0c0c0c0c")
    for t in range(2):
        a(f"v_cmp_eq_u32 vcc, {t}, v16")
        a("s_nop 1")
        a(f"v_cndmask_b32 v{vS16+t}, v19, v17, vcc")
        a(f"v_cndmask_b32 v{vS16+2+t}, v19, v18, vcc")
    a(f"s_lshl_b32 s{sT0}, s{sW1}, 12")
    a(f"s_add_u32 s{sT0}, s{sT0}, {QPART}")
    a(f"v_lshlrev_b32 v56, 9, v{vG}")
    a(f"v_lshl_add_u32 v56, v{vN}, 5, v56")
    a(f"v_add_u32 v56, s{sT0}, v56")
    a("s_waitcnt vmcnt(0)")
    for j in range(4):
        for u in range(2):
            ao=vAO+4*(j&1)+2*u
            for t in range(2):
                a(f"v_perm_b32 v{ao+t}, v{vX+2*u+(j>>1)}, v{vX+2*u+(j>>1)}, v{vS16+2*(j&1)+t}")
        a("s_nop 0")
        for u in range(2):
            ao=vAO+4*(j&1)+2*u
            for hf in range(2):
                acc=vAC+8*u+4*hf
                cin="0" if j==0 else f"v[{acc}:{acc+3}]"
                a(f"v_mfma_f32_16x16x16_bf16 v[{acc}:{acc+3}], v[{ao}:{ao+1}], v[{vWq+4*j+2*hf}:{vWq+4*j+2*hf+1}], {cin}")
    ts(8)
    a("s_nop 7")
    a("s_nop 0")
    for u in range(2):
        for hf in range(2):
            acc=vAC+8*u+4*hf
            a(f"ds_write_b128 v56, v[{acc}:{acc+3}] offset:{u*2048+hf*16}")
    signal(vFL,CQ1,vONE)
    a(f"s_cmp_gt_u32 s{sWAVE}, 4")
    a("s_cbranch_scc0 L_qred")
    a("s_cmp_ge_u32 s2, 192")
    a("s_cbranch_scc1 L_hout")
    a("s_endpgm")
    a.lab("L_qred")
    vT=24
    a("v_lshrrev_b32 v16, 5, v0")
    a("v_and_b32 v17, 31, v0")
    a(f"s_lshl_b32 s{sT0}, s{sW1}, 1")
    a(f"v_add_u32 v16, s{sT0}, v16           ; batch")
    a(f"v_lshlrev_b32 v18, 9, v16")
    a(f"v_lshl_add_u32 v18, v17, 4, v18")
    a(f"v_add_u32 v18, {QPART}, v18")
    a(f"s_lshl_b32 s{sT0}, s2, 13")
    a(f"s_add_u32 s{sT0}, s{sT0}, {QP_OFF}")
    a(f"v_lshlrev_b32 v19, 10, v16")
    a(f"v_lshl_add_u32 v19, v17, 4, v19")
    a(f"v_add_u32 v19, s{sT0}, v19")
    spin_ge(vFL,CQ1,7,vT)
    for w in range(7):
        a(f"ds_read_b128 v[{40+4*w}:{43+4*w}], v18 offset:{w*4096}")
    a(f"s_add_u32 s{sTAG}, s{sTAG}, 0x9e3779b1")
    a(f"s_lshl_b32 s{sT0}, s{sW1}, 2")
    a(f"s_add_u32 s{sT0}, s{sT0}, {MISC+DONE}")
    a(f"v_mov_b32 v20, s{sT0}")
    a("s_waitcnt lgkmcnt(0)")
    a(f"ds_write_b32 v20, v{vONE}")
    for k in range(4):
        a(f"v_add_f32 v{40+k}, v{40+k}, v{44+k}")
        a(f"v_add_f32 v{48+k}, v{48+k}, v{52+k}")
        a(f"v_add_f32 v{56+k}, v{56+k}, v{60+k}")
    for k in range(4):
        a(f"v_add_f32 v{40+k}, v{40+k}, v{48+k}")
        a(f"v_add_f32 v{56+k}, v{56+k}, v{64+k}")
    for k in range(4):
        a(f"v_add_f32 v{68+2*k}, v{40+k}, v{56+k}")
        a(f"v_mov_b32 v{69+2*k}, s{sTAG}")
    a(f"global_store_dwordx4 v19, v[68:71], s[{sWS}:{sWS+1}] sc1")
    a(f"global_store_dwordx4 v19, v[72:75], s[{sWS}:{sWS+1}] offset:512 sc1")
    ts(9)
    a("s_cmp_ge_u32 s2, 192")
    a("s_cbranch_scc1 L_hout")
    a.c("---------------- consumers ----------------")
    attn_decode()
    vSEL=4
    a(f"v_and_b32 v16, 7, v{vN}")
    a(f"v_lshrrev_b32 v17, 1, v16      ; te")
    a(f"v_and_b32 v16, 1, v16          ; par")
    a(f"v_cmp_eq_u32 vcc, 1, v16")
    a(f"v_mov_b32 v18, 0x0c0c0100")
    a(f"v_mov_b32 v19, 0x01000c0c")
    a(f"v_cndmask_b32 v18, v18, v19, vcc")
    a(f"v_mov_b32 v19, 0x0c0c0302")
    a(f"v_mov_b32 v20, 0x03020c0c")
    a(f"v_cndmask_b32 v19, v19, v20, vcc")
    a(f"v_mov_b32 v20, 0x0c0c0c0c")
    for t in range(4):
        a(f"v_cmp_eq_u32 vcc, {t}, v17")
        a("s_nop 1")
        a(f"v_cndmask_b32 v{vSEL+t}, v20, v18, vcc")
        a(f"v_cndmask_b32 v{vSEL+4+t}, v20, v19, vcc")
    a(f"s_cmp_eq_u32 s{sISB}, 1")
    a("s_cbranch_scc0 L_qg")
    a(f"s_cmp_ge_u32 s{sW1}, 2")
    a("s_cbranch_scc1 L_qg_done")
    a.lab("L_qg")
    a(f"s_sub_u32 s{sT1}, 2, s{sISB}")
    a(f"s_lshl_b32 s{sT0}, s{sH}, s{sT1}")
    a(f"s_add_u32 s{sT0}, s{sT0}, s{sW1}      ; c")
    a(f"s_lshl_b32 s{sT1}, s{sISB}, 5")
    a(f"s_add_u32 s{sT0}, s{sT0}, s{sT1}      ; m*32+c")
    a(f"s_lshl_b32 s{sT0}, s{sT0}, 15         ; *4*8192")
    a(f"s_lshl_b32 s{sT1}, s{sB}, 10")
    a(f"s_add_u32 s{sT0}, s{sT0}, s{sT1}")
    a(f"s_add_u32 s{sT0}, s{sT0}, {QP_OFF}")
    a(f"v_lshlrev_b32 v16, 4, v0")
    a(f"v_add_u32 v16, s{sT0}, v16")
    for kq in range(1,4): a(f"v_add_u32 v{16+kq}, {kq*8192}, v16")
    PA=160; PB=176
    def issue(base):
        for kq in range(4):
            a(f"global_load_dwordx4 v[{base+4*kq}:{base+4*kq+3}], v{16+kq}, s[{sWS}:{sWS+1}] sc1")
    def check(base,lab):
        a(f"v_xor_b32 v20, s{sTAG}, v{base+1}")
        for r in (3,5,7,9,11,13,15):
            a(f"v_xor_b32 v21, s{sTAG}, v{base+r}")
            a(f"v_or_b32 v20, v20, v21")
        a("v_cmp_eq_u32 vcc, 0, v20")
        a("s_nop 1")
        a("s_cmp_eq_u64 vcc, -1")
        a(f"s_cbranch_scc1 {lab}")
    def qsum(base):
        a(f"v_add_f32 v32, v{base}, v{base+4}")
        a(f"v_add_f32 v34, v{base+2}, v{base+6}")
        a(f"v_add_f32 v40, v{base+8}, v{base+12}")
        a(f"v_add_f32 v42, v{base+10}, v{base+14}")
    issue(PA)
    if qsleep: a(f"s_sleep {qsleep}")
    a.lab("L_qg_poll")
    issue(PB)
    a("s_waitcnt vmcnt(4)")
    check(PA,"L_qg_gotA")
    issue(PA)
    a("s_waitcnt vmcnt(4)")
    check(PB,"L_qg_gotB")
    bound()
    a("s_branch L_qg_poll")
    a.lab("L_qg_gotB")
    qsum(PB)
    a("s_branch L_qg_got")
    a.lab("L_qg_gotA")
    qsum(PA)
    a.lab("L_qg_got")
    a("v_add_f32 v32, v32, v40")
    a("v_add_f32 v34, v34, v42")
    a("v_cvt_pk_bf16_f32 v32, v32, v34")
    a("v_and_b32 v20, 31, v0")
    a("v_lshrrev_b32 v21, 5, v0")
    a("v_lshlrev_b32 v20, 3, v20")
    a("v_lshl_add_u32 v20, v21, 2, v20")
    a(f"s_lshl_b32 s{sT0}, s{sW1}, 8")
    a(f"s_add_u32 s{sT0}, s{sT0}, {MISC+QL}")
    a(f"v_add_u32 v20, s{sT0}, v20")
    a("ds_write_b32 v20, v32")
    a.lab("L_qg_done")
    ts(7)
    signal(vFL,CQ2,vONE)
    vKA=64; vKF=72; vS=104
    vMAX=108; vSA=109; vDN=110; vDV=111; vQH=112
    a(f"v_lshrrev_b32 v{vQH}, 3, v{vN}       ; qh")
    for s in range(4):
        a(f"v_and_b32 v26, 12, v{vN}")
        a(f"v_xor_b32 v26, {4*s}, v26")
        a(f"v_and_b32 v27, 3, v{vN}")
        a(f"v_xor_b32 v27, v27, v{vG}")
        a(f"v_add_u32 v26, v26, v27")
        a(f"v_lshlrev_b32 v26, 4, v26")
        a(f"v_lshl_add_u32 v{vKA+s}, v{vN}, 9, v26")
    a(f"s_lshl_b32 s{sT0}, s{sW1}, 12")
    a(f"s_add_u32 s{sT0}, s{sT0}, {SBUF}")
    a(f"v_lshlrev_b32 v{vSA}, 5, v{vQH}")
    a(f"v_lshl_add_u32 v{vSA}, v{vG}, 3, v{vSA}")
    a(f"v_add_u32 v{vSA}, s{sT0}, v{vSA}")
    a(f"v_mov_b32 v{vMAX}, 0xff800000")
    a(f"s_lshl_b32 s{sT0}, s{sW1}, 2")
    a(f"s_add_u32 s{sT0}, s{sT0}, {MISC+DONE}")
    a(f"v_mov_b32 v{vDN}, s{sT0}")
    sTT=48; sFU=49; sSLO=50; sJ1=51; sMASK=52; sC=55
    a(f"s_mov_b32 s{sTT}, s{sW1}")
    a(f"s_mov_b32 s{sFU}, 0")
    a(f"s_lshl_b32 s{sSLO}, s{sW1}, 13")
    a(f"s_mov_b32 s{sJ1}, 2")
    a(f"s_mov_b32 s{sMASK}, 0x01010101")
    a(f"s_mov_b32 s{sMASK+1}, 0x01010101")
    vQF=32
    a(f"s_cmp_eq_u32 s{sISB}, 1")
    a(f"s_cselect_b32 s{sT0}, 0, 512")
    a(f"v_mul_lo_u32 v26, v{vQH}, s{sT0}")
    a(f"v_lshl_add_u32 v26, v{vG}, 4, v26")
    a(f"v_add_u32 v26, {MISC+QL}, v26")
    spin_ge(vFL,CQ2,4,vT)
    for s in range(8):
        a(f"ds_read_b128 v[{vQF+4*s}:{vQF+4*s+3}], v26 offset:{s*64}")
    a("s_waitcnt lgkmcnt(0)")
    ts(3)
    def wait_full(tag):
        Lg=f"L_{tag}_go"; Ls=f"L_{tag}_spin"
        a(f"s_cmp_gt_i32 s{sFU}, s{sTT}")
        a(f"s_cbranch_scc1 {Lg}")
        a.lab(Ls)
        a(f"ds_read_b32 v{vT}, v{vFL} offset:{FULL}")
        a("s_waitcnt lgkmcnt(0)")
        a(f"v_readfirstlane_b32 s{sFU}, v{vT}")
        a(f"s_cmp_gt_i32 s{sFU}, s{sTT}")
        a(f"s_cbranch_scc1 {Lg}")
        bound()
        if spin_sleep: a(f"s_sleep {spin_sleep}")
        a(f"s_branch {Ls}")
        a.lab(Lg)
    def advance():
        a(f"s_add_u32 s{sTT}, s{sTT}, 4")
        a(f"s_add_u32 s{sSLO}, s{sSLO}, {4*8192}")
        a(f"s_cmp_ge_u32 s{sSLO}, {RINGB}")
        a(f"s_cselect_b32 s{sT0}, {RINGB}, 0")
        a(f"s_sub_u32 s{sSLO}, s{sSLO}, s{sT0}")
        a(f"s_add_u32 s{sJ1}, s{sJ1}, 1")
    a.lab("L_K")
    for s in range(4): a(f"v_add_u32 v{vKA+4+s}, s{sSLO}, v{vKA+s}")
    a(f"v_mov_b32 v{vDV}, s{sJ1}")
    wait_full("K")
    for s in range(8):
        a(f"ds_read_b128 v[{vKF+4*s}:{vKF+4*s+3}], v{vKA+4+(s&3)} offset:{RING+(s>>2)*256}")
    for s in range(8):
        a(f"s_waitcnt lgkmcnt({7-s})")
        if s==7: a(f"ds_write_b32 v{vDN}, v{vDV}")
        cin="0" if s==0 else f"v[{vS}:{vS+3}]"
        a(f"v_mfma_f32_16x16x32_bf16 v[{vS}:{vS+3}], v[{vKF+4*s}:{vKF+4*s+3}], v[{vQF+4*s}:{vQF+4*s+3}], {cin}")
    advance()
    a("s_nop 3")
    a(f"v_max3_f32 v{vMAX}, v{vMAX}, v{vS}, v{vS+1}")
    a(f"v_max3_f32 v{vMAX}, v{vMAX}, v{vS+2}, v{vS+3}")
    a(f"v_cvt_pk_bf16_f32 v{vS}, v{vS}, v{vS+1}")
    a(f"v_cvt_pk_bf16_f32 v{vS+1}, v{vS+2}, v{vS+3}")
    a(f"s_mov_b64 exec, s[{sMASK}:{sMASK+1}]")
    a(f"ds_write_b64 v{vSA}, v[{vS}:{vS+1}]")
    a("s_mov_b64 exec, -1")
    a(f"v_add_u32 v{vSA}, 64, v{vSA}")
    a(f"s_cmp_lt_u32 s{sTT}, 256")
    a("s_cbranch_scc1 L_K")
    ts(4)
    a(f"s_lshl_b32 s{sT0}, s{sW1}, 4")
    a(f"s_add_u32 s{sT0}, s{sT0}, {MISC+MX}")
    a(f"v_lshlrev_b32 v26, 6, v{vQH}")
    a(f"v_lshl_add_u32 v27, v{vG}, 2, v26")
    a(f"v_add_u32 v27, s{sT0}, v27")
    a(f"s_mov_b64 exec, s[{sMASK}:{sMASK+1}]")
    a(f"ds_write_b32 v27, v{vMAX}")
    a("s_mov_b64 exec, -1")
    signal(vFL,CMX,vONE)
    spin_ge(vFL,CMX,4,vT)
    a(f"v_add_u32 v26, {MISC+MX}, v26")
    for k in range(4): a(f"ds_read_b128 v[{72+4*k}:{75+4*k}], v26 offset:{k*16}")
    a(f"v_subrev_u32 v{vSA}, {64*64}, v{vSA}")
    a("s_waitcnt lgkmcnt(0)")
    a("v_max3_f32 v72, v72, v73, v74")
    for k in range(75,87,2): a(f"v_max3_f32 v72, v72, v{k}, v{k+1}")
    a("v_max_f32 v72, v72, v87")
    vNM=113; vL=114; vVA=115; vVC=116; vW=118
    a(f"s_mov_b32 s{sC}, {CEXP:#x}")
    a(f"v_mul_f32 v{vNM}, s{sC}, v72")
    a(f"v_sub_f32 v{vNM}, 0, v{vNM}")
    a(f"v_mov_b32 v{vL}, 0")
    a(f"v_lshlrev_b32 v{vVA}, 11, v{vG}")
    a(f"v_lshl_add_u32 v{vVA}, v{vN}, 4, v{vVA}")
    vO=120
    for k in range(8): a(f"v_mov_b32 v{vO+k}, 0")
    vVF=72; vP=104; vAP=128
    sTR=56; vTRA=117
    if trig:
        a(f"s_cmp_eq_u32 s{sW1}, 0")
        a(f"s_cselect_b32 s{sTR}, {trig}, 0")
        a(f"v_mov_b32 v{vTRA}, 64")
    a.lab("L_V")
    a(f"ds_read_b64 v[{vW}:{vW+1}], v{vSA}")
    a(f"v_add_u32 v{vVC}, s{sSLO}, v{vVA}")
    a(f"v_add_u32 v{vSA}, 64, v{vSA}")
    a(f"v_mov_b32 v{vDV}, s{sJ1}")
    a("s_waitcnt lgkmcnt(0)")
    a(f"v_lshlrev_b32 v{vP}, 16, v{vW}")
    a(f"v_and_b32 v{vP+1}, 0xffff0000, v{vW}")
    a(f"v_lshlrev_b32 v{vP+2}, 16, v{vW+1}")
    a(f"v_and_b32 v{vP+3}, 0xffff0000, v{vW+1}")
    for r in range(4): a(f"v_fma_f32 v{vP+r}, v{vP+r}, s{sC}, v{vNM}")
    for r in range(4): a(f"v_exp_f32 v{vP+r}, v{vP+r}")
    a("s_nop 0")
    a(f"v_cvt_pk_bf16_f32 v{vW}, v{vP}, v{vP+1}")
    a(f"v_cvt_pk_bf16_f32 v{vW+1}, v{vP+2}, v{vP+3}")
    a(f"v_add_f32 v{vP}, v{vP}, v{vP+1}")
    a(f"v_add_f32 v{vP+2}, v{vP+2}, v{vP+3}")
    a(f"v_add_f32 v{vL}, v{vL}, v{vP}")
    a(f"v_add_f32 v{vL}, v{vL}, v{vP+2}")
    for r in range(4):
        for t in range(4):
            a(f"v_perm_b32 v{vAP+4*r+t}, v{vW+(r>>1)}, v{vW+(r>>1)}, v{vSEL+4*(r&1)+t}")
    wait_full("V")
    for r in range(4):
        for h in range(2):
            b=vVF+4*(2*r+h)
            a(f"ds_read_b128 v[{b}:{b+3}], v{vVC} offset:{RING+r*512+h*256}")
    k=0
    for r in range(4):
        for h in range(2):
            b=vVF+4*(2*r+h)
            a(f"s_waitcnt lgkmcnt({7-k})")
            if k==7: a(f"ds_write_b32 v{vDN}, v{vDV}")
            a(f"v_mfma_f32_16x16x32_bf16 v[{vO+4*h}:{vO+4*h+3}], v[{vAP+4*r}:{vAP+4*r+3}], v[{b}:{b+3}], v[{vO+4*h}:{vO+4*h+3}]")
            k+=1
    advance()
    if trig:
        a(f"s_cmp_lg_u32 s{sTR}, s{sTT}")
        a("s_cbranch_scc1 L_notrig")
        a("s_mov_b64 exec, 1")
        a(f"global_atomic_add v{vTRA}, v{vONE}, s[{sDBG}:{sDBG+1}] sc1")
        a("s_mov_b64 exec, -1")
        a.lab("L_notrig")
    a(f"s_cmp_lt_u32 s{sTT}, 512")
    a("s_cbranch_scc1 L_V")
    ts(5)
    a(f"s_lshl_b32 s{sT0}, s{sW1}, 12")
    a(f"s_add_u32 s{sT0}, s{sT0}, {SBUF}")
    a(f"v_lshrrev_b32 v26, 1, v{vG}")
    a(f"v_lshlrev_b32 v26, 10, v26")
    a(f"v_and_b32 v27, 1, v{vG}")
    a(f"v_lshl_add_u32 v26, v27, 4, v26")
    a(f"v_lshl_add_u32 v26, v{vN}, 5, v26")
    a(f"v_add_u32 v26, s{sT0}, v26")
    a(f"s_lshl_b32 s{sT0}, s{sW1}, 4")
    a(f"s_add_u32 s{sT0}, s{sT0}, {MISC+LS}")
    a(f"v_lshlrev_b32 v27, 6, v{vQH}")
    a(f"v_lshl_add_u32 v27, v{vG}, 2, v27")
    a(f"v_add_u32 v27, s{sT0}, v27")
    a("s_nop 1")
    a(f"ds_write_b128 v26, v[{vO}:{vO+3}]")
    a(f"ds_write_b128 v26, v[{vO+4}:{vO+7}] offset:512")
    a(f"s_mov_b64 exec, s[{sMASK}:{sMASK+1}]")
    a(f"ds_write_b32 v27, v{vL}")
    a("s_mov_b64 exec, -1")
    a("s_waitcnt lgkmcnt(0)")
    a("s_mov_b64 exec, 1")
    a(f"ds_add_rtn_u32 v{vT}, v{vFL}, v{vONE} offset:{CFIN}")
    a("s_mov_b64 exec, -1")
    a("v_lshrrev_b32 v25, 5, v0")
    a("v_and_b32 v28, 31, v0")
    a("v_lshlrev_b32 v26, 10, v25")
    a("v_lshl_add_u32 v26, v28, 5, v26")
    a(f"v_add_u32 v26, {SBUF}, v26")
    a("v_lshlrev_b32 v27, 6, v25")
    a(f"v_add_u32 v27, {MISC+LS}, v27")
    a(f"s_lshl_b32 s{sT0}, s{sISB}, 16")
    a(f"s_lshl_b32 s{sT1}, s{sB}, 13")
    a(f"s_add_u32 s{sT0}, s{sT0}, s{sT1}")
    a(f"s_sub_u32 s{sT1}, 10, s{sISB}")
    a(f"s_lshl_b32 s{sT1}, s{sH}, s{sT1}")
    a(f"s_add_u32 s{sT0}, s{sT0}, s{sT1}")
    a(f"s_add_u32 s{sT0}, s{sT0}, {O_OFF}")
    a(f"v_lshlrev_b32 v29, 4, v0")
    a(f"v_add_u32 v29, s{sT0}, v29")
    a("s_waitcnt lgkmcnt(0)")
    a(f"v_readfirstlane_b32 s{sT0}, v{vT}")
    a(f"s_cmp_eq_u32 s{sT0}, 3")
    a("s_cbranch_scc0 L_end")
    for w in range(4):
        a(f"ds_read_b128 v[{32+8*w}:{35+8*w}], v26 offset:{w*4096}")
        a(f"ds_read_b128 v[{36+8*w}:{39+8*w}], v26 offset:{w*4096+16}")
    for k in range(4): a(f"ds_read_b128 v[{64+4*k}:{67+4*k}], v27 offset:{k*16}")
    a(f"s_lshl_b32 s{sT0}, s{sISB}, 7")
    a(f"s_lshl_b32 s{sT1}, s{sH}, 2")
    a(f"s_add_u32 s{sT0}, s{sT0}, s{sT1}")
    a(f"v_mov_b32 v30, s{sT0}")
    a("s_waitcnt lgkmcnt(0)")
    for k in range(8): a(f"v_add_f32 v{64+k}, v{64+k}, v{72+k}")
    for k in range(4): a(f"v_add_f32 v{64+k}, v{64+k}, v{68+k}")
    a("v_add_f32 v64, v64, v65")
    a("v_add_f32 v66, v66, v67")
    a("v_add_f32 v64, v64, v66")
    a("v_rcp_f32 v64, v64")
    for k in range(8):
        a(f"v_add_f32 v{32+k}, v{32+k}, v{40+k}")
        a(f"v_add_f32 v{48+k}, v{48+k}, v{56+k}")
    for k in range(8): a(f"v_add_f32 v{32+k}, v{32+k}, v{48+k}")
    for k in range(8): a(f"v_mul_f32 v{32+k}, v{32+k}, v64")
    for k in range(4): a(f"v_cvt_pk_bf16_f32 v{32+k}, v{32+2*k}, v{33+2*k}")
    a(f"s_cmp_eq_u32 s{sISB}, 1")
    a(f"s_cselect_b32 exec_hi, 0, -1")
    a(f"global_store_dwordx4 v29, v[32:35], s[{sWS}:{sWS+1}] sc1")
    a("s_waitcnt vmcnt(0)")
    a("s_mov_b64 exec, 1")
    a(f"global_atomic_add v30, v{vONE}, s[{sDBG}:{sDBG+1}] sc1")
    ts(6)
    ts_dump([3,4,5,6,7,8,9])
    a("s_endpgm")
    a.lab("L_h0")
    a.c("helper wave 0: flag init, pointers")
    a(f"s_load_dwordx4 s[{sDBG}:{sDBG+3}], s[0:1], 88")
    zero_flags(2,3)
    a("s_waitcnt lgkmcnt(0)")
    a("s_barrier")
    a.lab("L_hout")
    a.c("---------------- helpers: out projection ----------------")
    sHJ=54
    vN=2; vG=3
    a(f"s_sub_u32 s{sHJ}, s2, 192")
    a(f"s_and_b32 s{sX}, s{sHJ}, 7")
    a(f"s_lshr_b32 s{sT1}, s{sHJ}, 3")
    a(f"s_and_b32 s{sSLOT}, s{sT1}, 3     ; sub")
    a(f"s_lshr_b32 s{sT1}, s{sHJ}, 5      ; hi")
    a(f"s_lshl_b32 s{sT1}, s{sT1}, 3")
    a(f"s_add_u32 s{sGRP}, s{sT1}, s{sX}   ; gamma")
    a(f"s_cmp_ge_u32 s{sGRP}, 14")
    a("s_cbranch_scc1 L_h_idle")
    a(f"s_cmp_ge_u32 s{sGRP}, 7")
    a(f"s_cselect_b32 s{sISB}, 1, 0")
    a(f"s_cselect_b32 s{sT0}, 40, 0")
    a(f"s_cselect_b32 s{sT1}, 7, 0")
    a(f"s_add_u32 s{sKA}, s0, s{sT0}")
    a(f"s_addc_u32 s{sKA+1}, s1, 0")
    a(f"s_sub_u32 s{sGRP}, s{sGRP}, s{sT1}")
    a(f"s_lshl_b32 s{sH}, s{sGRP}, 2")
    a(f"s_add_u32 s{sH}, s{sH}, s{sSLOT}")
    a(f"s_load_dwordx2 s[{sP0}:{sP0+1}], s[{sKA}:{sKA+1}], 32   ; wo")
    a(f"s_load_dwordx2 s[{sOUT}:{sOUT+1}], s[0:1], 80")
    a(f"v_and_b32 v{vN}, 15, v0")
    a(f"v_lshrrev_b32 v{vG}, 4, v0")
    a(f"s_mul_i32 s{sT0}, s{sWAVE}, {512*896}")
    a(f"s_lshl_b32 s{sT1}, s{sH}, 5")
    a(f"s_add_u32 s{sT0}, s{sT0}, s{sT1}")
    a(f"v_lshrrev_b32 v4, 1, v0")
    a(f"v_mul_u32_u24 v4, 896, v4")
    a(f"v_and_b32 v5, 1, v0")
    a(f"v_lshl_add_u32 v4, v5, 4, v4")
    a(f"v_add_u32 v4, s{sT0}, v4")
    sWR=55
    a(f"s_lshl_b32 s{sWR}, s{sWAVE}, 14")
    a(f"v_and_b32 v5, 3, v0")
    a(f"v_bfe_u32 v6, v0, 2, 2")
    a(f"v_lshlrev_b32 v5, 3, v5")
    a(f"v_lshl_add_u32 v5, v6, 5, v5")
    a(f"v_lshl_add_u32 v5, v{vG}, 8, v5")
    a(f"v_add_u32 v5, s{sWR}, v5")
    sJ=58
    a(f"s_lshl_b32 s{sT0}, s{sWAVE}, 10")
    a(f"v_lshlrev_b32 v6, 4, v0")
    a(f"v_add_u32 v9, s{sWR}, v6")
    a(f"v_add_u32 v6, s{sT0}, v6")
    for b in range(8): a(f"s_mov_b32 s{sJ+b}, {b*8192}")
    a(f"v_and_b32 v10, 7, v{vN}")
    a(f"v_mul_u32_u24 v10, 1056, v10")
    a(f"v_lshl_add_u32 v10, v{vG}, 4, v10")
    a(f"v_add_u32 v10, s{sWR}, v10")
    a(f"s_lshl_b32 s{sT0}, s{sISB}, 3")
    a(f"s_add_u32 s{sT0}, s{sT0}, 7")
    a(f"v_and_b32 v7, s{sT0}, v0")
    a(f"v_lshlrev_b32 v7, 2, v7")
    a(f"s_lshl_b32 s{sT0}, s{sISB}, 7")
    a(f"v_add_u32 v7, s{sT0}, v7")
    a("s_waitcnt lgkmcnt(0)")
    a(f"s_mov_b32 s{sSRD0}, s{sP0}")
    a(f"s_mov_b32 s{sSRD0+1}, s{sP0+1}")
    a(f"s_mov_b32 s{sSRD0+2}, 3670016")
    a(f"s_mov_b32 s{sSRD0+3}, 0x20000")
    a(f"s_lshl_b32 s{sT0}, s{sISB}, 16")
    a(f"s_add_u32 s{sT0}, s{sT0}, {O_OFF}")
    a(f"s_add_u32 s{sSRD1}, s{sWS}, s{sT0}")
    a(f"s_addc_u32 s{sSRD1+1}, s{sWS+1}, 0")
    a(f"s_mov_b32 s{sSRD1+2}, 65536")
    a(f"s_mov_b32 s{sSRD1+3}, 0x20000")
    if wolate:
        a(f"s_cmp_lg_u32 s{sWAVE}, 0")
        a("s_cbranch_scc1 L_h_w1")
        if trig: a("v_mov_b32 v11, 64")
        a.lab("L_h_poll1")
        a(f"global_load_dword v8, v{11 if trig else 7}, s[{sDBG}:{sDBG+1}] sc1")
        a("s_waitcnt vmcnt(0)")
        a("v_cmp_lt_u32 vcc, 0, v8")
        a("s_nop 1")
        a("s_cmp_lg_u64 vcc, 0")
        a("s_cbranch_scc1 L_h_w1")
        bound()
        a(f"s_sleep {hslow}")
        a("s_branch L_h_poll1")
        a.lab("L_h_w1")
        a("s_barrier")
    ts(5)
    for s_ in range(16):
        a(f"s_add_u32 m0, s{sWR}, {s_*1024}")
        a(f"s_mov_b32 s{sT0}, {s_*32*896}")
        a(f"buffer_load_dwordx4 v4, s[{sSRD0}:{sSRD0+3}], s{sT0} offen {wopol} lds")
    vWT=64
    for s_ in range(16):
        a(f"s_waitcnt vmcnt({15-s_})")
        a(f"ds_read_b64_tr_b16 v[{vWT+4*s_}:{vWT+4*s_+1}], v5 offset:{s_*1024}")
        a(f"ds_read_b64_tr_b16 v[{vWT+4*s_+2}:{vWT+4*s_+3}], v5 offset:{s_*1024+128}")
    a("s_waitcnt lgkmcnt(0)")
    ts(0)
    a(f"s_cmp_lg_u32 s{sWAVE}, 0")
    a("s_cbranch_scc1 L_h_wait")
    if not wolate:
        a.lab("L_h_poll1")
        a(f"global_load_dword v8, v7, s[{sDBG}:{sDBG+1}] sc1")
        a("s_waitcnt vmcnt(0)")
        a("v_cmp_lt_u32 vcc, 0, v8")
        a("s_nop 1")
        a("s_cmp_lg_u64 vcc, 0")
        a("s_cbranch_scc1 L_h_poll")
        bound()
        a(f"s_sleep {hslow}")
        a("s_branch L_h_poll1")
    a.lab("L_h_poll")
    a(f"global_load_dword v8, v7, s[{sDBG}:{sDBG+1}] sc1")
    a("s_waitcnt vmcnt(0)")
    a("v_cmp_le_u32 vcc, 8, v8")
    a("s_nop 1")
    a("s_cmp_eq_u64 vcc, -1")
    a("s_cbranch_scc1 L_h_wait")
    bound()
    if hsleep: a(f"s_sleep {hsleep}")
    a("s_branch L_h_poll")
    a.lab("L_h_wait")
    a("s_barrier")
    ts(1)
    vOF=128
    for b in range(8):
        a(f"buffer_load_dwordx4 v[{vOF+4*b}:{vOF+4*b+3}], v6, s[{sSRD1}:{sSRD1+3}], s{sJ+b} offen sc1")
    for b in range(8):
        a(f"s_waitcnt vmcnt({7-b})")
        a(f"ds_write_b128 v9, v[{vOF+4*b}:{vOF+4*b+3}] offset:{b*1056}")
    vFR=160
    a("s_waitcnt lgkmcnt(0)")
    for s_ in range(16):
        a(f"ds_read_b128 v[{vFR+4*s_}:{vFR+4*s_+3}], v10 offset:{s_*64}")
    vAC=12
    PART=131072
    a(f"s_lshl_b32 s{sT0}, s{sWAVE}, 9")
    a(f"s_add_u32 s{sT0}, s{sT0}, {PART}")
    a(f"v_lshlrev_b32 v11, 8, v{vG}")
    a(f"v_lshl_add_u32 v11, v{vN}, 2, v11")
    a(f"v_add_u32 v11, s{sT0}, v11")
    for s_ in range(16):
        a(f"s_waitcnt lgkmcnt({15-s_})")
        acc=vAC+4*(s_&1)
        cin="0" if s_<2 else f"v[{acc}:{acc+3}]"
        a(f"v_mfma_f32_16x16x32_bf16 v[{acc}:{acc+3}], v[{vFR+4*s_}:{vFR+4*s_+3}], v[{vWT+4*s_}:{vWT+4*s_+3}], {cin}")
    ts(2)
    a("s_nop 7")
    for r in range(4): a(f"v_add_f32 v{vAC+r}, v{vAC+r}, v{vAC+4+r}")
    a("s_mov_b32 exec_hi, 0")
    for r in range(4): a(f"ds_write_b32 v11, v{vAC+r} offset:{r*64}")
    a("s_mov_b64 exec, -1")
    a("v_lshrrev_b32 v20, 3, v0")
    a("v_and_b32 v21, 7, v0")
    a("v_lshlrev_b32 v22, 6, v20")
    a("v_lshl_add_u32 v22, v21, 3, v22")
    a(f"v_add_u32 v22, {PART}, v22")
    a(f"s_mul_i32 s{sT0}, s{sISB}, 896")
    a(f"s_lshl_b32 s{sT1}, s{sH}, 5")
    a(f"s_add_u32 s{sT0}, s{sT0}, s{sT1}")
    a(f"v_mul_u32_u24 v23, 1792, v20")
    a(f"v_lshl_add_u32 v23, v21, 2, v23")
    a(f"v_add_u32 v23, s{sT0}, v23")
    a(f"s_mov_b32 s{sSRD0}, s{sOUT}")
    a(f"s_mov_b32 s{sSRD0+1}, s{sOUT+1}")
    a(f"s_mov_b32 s{sSRD0+2}, 14336")
    a(f"s_mov_b32 s{sSRD0+3}, 0x20000")
    a("s_waitcnt lgkmcnt(0)")
    a("s_barrier")
    a(f"s_cmp_lg_u32 s{sWAVE}, 0")
    a("s_cbranch_scc1 L_end")
    ts(3)
    for w in range(8): a(f"ds_read_b64 v[{24+2*w}:{25+2*w}], v22 offset:{w*512}")
    a("s_waitcnt lgkmcnt(0)")
    for w in (1,3,5,7):
        a(f"v_add_f32 v{24+2*(w-1)}, v{24+2*(w-1)}, v{24+2*w}")
        a(f"v_add_f32 v{25+2*(w-1)}, v{25+2*(w-1)}, v{25+2*w}")
    for w in (2,6):
        a(f"v_add_f32 v{24+2*(w-2)}, v{24+2*(w-2)}, v{24+2*w}")
        a(f"v_add_f32 v{25+2*(w-2)}, v{25+2*(w-2)}, v{25+2*w}")
    a("v_add_f32 v24, v24, v32")
    a("v_add_f32 v25, v25, v33")
    a("v_cvt_pk_bf16_f32 v24, v24, v25")
    a(f"buffer_store_dword v24, v23, s[{sSRD0}:{sSRD0+3}], 0 offen")
    ts(4)
    ts_dump([0,1,2,3,4,5])
    a("s_endpgm")
    a.lab("L_h_idle")
    a(f"s_cmp_lg_u32 s2, 230")
    a("s_cbranch_scc1 L_end")
    a(f"s_cmp_lg_u32 s{sWAVE}, 0")
    a("s_cbranch_scc1 L_end")
    a(f"s_load_dword s{sTAG}, s[{sWS}:{sWS+1}], {E_OFF}")
    if probe==-2: a("s_memrealtime s[60:61]")
    a("v_cmp_gt_u32 vcc, 8, v0")
    a("v_lshlrev_b32 v4, 2, v0")
    a("v_add_u32 v5, 96, v4          ; 128 + (lane-8)*4")
    a("v_cndmask_b32 v4, v5, v4, vcc")
    a("v_cmp_gt_u32 vcc, 24, v0")
    a("v_mov_b32 v5, 0")
    a("s_nop 0")
    a("v_cndmask_b32 v4, v5, v4, vcc")
    a("s_waitcnt lgkmcnt(0)")
    a(f"s_add_u32 s{sTAG}, s{sTAG}, 0x9e3779b1")
    a.lab("L_e_poll")
    a(f"global_load_dword v8, v4, s[{sDBG}:{sDBG+1}] sc1")
    a("s_waitcnt vmcnt(0)")
    a("v_cmp_le_u32 vcc, 8, v8")
    a("s_nop 1")
    a("s_cmp_eq_u64 vcc, -1")
    a("s_cbranch_scc1 L_e_done")
    bound()
    a("s_sleep 32")
    a("s_branch L_e_poll")
    a.lab("L_e_done")
    a(f"v_mov_b32 v4, {E_OFF}")
    a(f"v_mov_b32 v5, s{sTAG}")
    a("s_mov_b64 exec, 1")
    a(f"global_store_dword v4, v5, s[{sWS}:{sWS+1}]")
    a.lab("L_end")
    a("s_endpgm")
    body=a.text()
    hdr=open("cdna_kernels/"+NAME+".s.ref").read().split("\n")
    head=[l for l in hdr if l.startswith(";") and "@launch" not in l and "Override launch" not in l and "grid=ceil" not in l]
    out="\n".join(head)+"\n"
    out+=f"; @launch grid=(256,1,1) block=(512,1,1) lds={LDS}\n"
    out+=f""".amdgcn_target "amdgcn-amd-amdhsa--gfx950"
.text
.globl {KN}
.p2align 8
.type {KN},@function
"""
    out+=body
    out+=f""".section .rodata,"a"
.p2align 6
.amdhsa_kernel {KN}
  .amdhsa_next_free_vgpr 256
  .amdhsa_next_free_sgpr 96
  .amdhsa_accum_offset 256
  .amdhsa_group_segment_fixed_size 0
  .amdhsa_kernarg_size 104
  .amdhsa_user_sgpr_count 2
  .amdhsa_user_sgpr_kernarg_segment_ptr 1
  .amdhsa_system_sgpr_workgroup_id_x 1
.end_amdhsa_kernel
"""
    return out, LDS

META=""".amdgpu_metadata
---
amdhsa.version: [1, 2]
amdhsa.kernels:
  - .name: {KN}
    .symbol: {KN}.kd
    .kernarg_segment_size: 104
    .kernarg_segment_align: 8
    .group_segment_fixed_size: 0
    .private_segment_fixed_size: 0
    .wavefront_size: 64
    .sgpr_count: 102
    .vgpr_count: 256
    .max_flat_workgroup_size: 512
    .args:
      - {{.name: kernargs, .size: 104, .offset: 0, .value_kind: by_value}}
...
.end_amdgpu_metadata
"""
if __name__=="__main__":
    import argparse
    ap=argparse.ArgumentParser()
    ap.add_argument("-o",default="cdna_kernels/"+NAME+".s")
    ap.add_argument("--diag",action="store_true")
    ap.add_argument("--meta",action="store_true")
    ap.add_argument("--D",type=int,default=40)
    ap.add_argument("--NS",type=int,default=17)
    ap.add_argument("--pol",default="nt")
    ap.add_argument("--wqpol",default="nt")
    ap.add_argument("--wopol",default="nt")
    ap.add_argument("--hsleep",type=int,default=2)
    ap.add_argument("--hslow",type=int,default=16)
    ap.add_argument("--qsleep",type=int,default=16)
    ap.add_argument("--spin",type=int,default=0)
    ap.add_argument("--wolate",type=int,default=1)
    ap.add_argument("--trig",type=int,default=480)
    args=ap.parse_args()
    s,lds=gen(D=args.D,NS=args.NS,diag=args.diag,pol=args.pol,wqpol=args.wqpol,wopol=args.wopol,hsleep=args.hsleep,hslow=args.hslow,
              qsleep=args.qsleep,spin_sleep=args.spin,wolate=bool(args.wolate),trig=args.trig)
    if args.meta: s+=META.format(KN=KN)
    open(args.o,"w").write(s)
    print("wrote",args.o,"lds",lds)
```

```python
import sys, struct
NAME="concat_heads__gqa_block_cached__mha_block_cached__decode"
KN=NAME+"_kernel"

class Asm:
    def __init__(s): s.L=[]; s.uid=0
    def __call__(s,x): s.L.append("  "+x)
    def lab(s,x): s.L.append(x+":")
    def c(s,x): s.L.append("  ; "+x)
    def new(s,p): s.uid+=1; return f"L_{p}_{s.uid}"
    def text(s): return "\n".join(s.L)+"\n"

def gen(D=40, NS=17, diag=False, pol="nt", spin_sleep=0, wqpol="nt", wopol="nt", hsleep=2, hslow=32, qsleep=16,
        wolate=True, probe=-1, trig=0, DB=0, worot=0):
    a=Asm()
    RING=0; RINGB=NS*8192
    SBUF=RINGB
    MISC=SBUF+16384
    QPART=(NS-4)*8192
    FULL=0; DONE=16; CQ1=32; CQ2=36; CMX=40; CFIN=44
    QL=256; MX=1280; LS=1408
    LDS=MISC+2048
    assert LDS<=163840
    CEXP=struct.unpack("<I",struct.pack("<f",1.4426950408889634/16.0))[0]
    O_OFF=0
    E_OFF=0x30004
    QP_OFF=0x100000
    TS_OFF=0x20000000
    sWAVE=3; sX=4; sSLOT=5; sB=6; sGRP=7; sKA=8
    sPAIR=10; sH=11; sISB=12; sT0=13; sT1=14; sT2=15
    sP0=16
    sDBG=20
    sWS=22
    sOUT=24
    sTAG=26
    sSRD0=28; sSRD1=32
    sTS1=42
    sW1=54
    sSP=27
    sKG=64
    sWOA=36; sWOB=38
    sTSB=76
    def ts(slot):
        if not diag: return
        a(f"s_memrealtime s[{sTSB+2*slot}:{sTSB+2*slot+1}]")
        a("s_waitcnt lgkmcnt(0)")
    def ts_dump(slots):
        if not diag: return
        a(f"s_load_dwordx2 s[{sTS1}:{sTS1+1}], s[0:1], 96")
        a("s_waitcnt lgkmcnt(0)")
        a(f"s_add_u32 s{sTS1}, s{sTS1}, {TS_OFF}")
        a(f"s_addc_u32 s{sTS1+1}, s{sTS1+1}, 0")
        a(f"s_lshl_b32 s44, s2, 7")
        a(f"v_mov_b32 v250, s44")
        a(f"s_mov_b64 exec, 1")
        for slot in slots:
            a(f"v_mov_b32 v252, s{sTSB+2*slot}")
            a(f"v_mov_b32 v253, s{sTSB+2*slot+1}")
            a(f"global_store_dwordx2 v250, v[252:253], s[{sTS1}:{sTS1+1}] offset:{slot*8}")
            a("s_nop 1")
    def bound():
        a(f"s_add_u32 s{sSP}, s{sSP}, 1")
        a(f"s_cmp_gt_u32 s{sSP}, 0x400000")
        a("s_cbranch_scc1 L_end")
    def spin_ge(vaddr, off, target, vt, st=sT0):
        L=a.new("spin"); E=a.new("spun")
        a.lab(L)
        a(f"ds_read_b32 v{vt}, v{vaddr} offset:{off}")
        a("s_waitcnt lgkmcnt(0)")
        a(f"v_readfirstlane_b32 s{st}, v{vt}")
        a(f"s_cmp_ge_u32 s{st}, {target}")
        a(f"s_cbranch_scc1 {E}")
        bound()
        if spin_sleep: a(f"s_sleep {spin_sleep}")
        a(f"s_branch {L}")
        a.lab(E)
    def signal(vaddr, off, vone):
        a("s_waitcnt lgkmcnt(0)")
        a("s_mov_b64 exec, 1")
        a(f"ds_add_u32 v{vaddr}, v{vone} offset:{off}")
        a("s_mov_b64 exec, -1")
    def attn_decode():
        a(f"s_and_b32 s{sX}, s2, 7")
        a(f"s_lshr_b32 s{sSLOT}, s2, 3")
        a(f"s_and_b32 s{sB}, s{sSLOT}, 7")
        a(f"s_lshr_b32 s{sGRP}, s{sSLOT}, 3")
        a(f"s_cmp_lg_u32 s{sGRP}, 0")
        a(f"s_cselect_b32 s{sISB}, 1, 0")
        a(f"s_lshr_b32 s{sT1}, s{sGRP}, 1")
        a(f"s_lshl_b32 s{sT1}, s{sT1}, 3")
        a(f"s_add_u32 s{sH}, s{sX}, s{sT1}")
        a(f"s_add_u32 s{sT1}, s{sISB}, 3")
        a(f"s_lshl_b32 s{sPAIR}, s{sB}, s{sT1}")
        a(f"s_add_u32 s{sPAIR}, s{sPAIR}, s{sH}")
    def zero_flags(vz,va):
        a(f"v_mov_b32 v{vz}, 0")
        a(f"v_lshlrev_b32 v{va}, 2, v0")
        a(f"v_add_u32 v{va}, {MISC}, v{va}")
        a(f"ds_write_b32 v{va}, v{vz}")

    a.lab(KN)
    a(f"s_load_dwordx16 s[{sKG}:{sKG+15}], s[0:1], 0")
    a(f"s_load_dwordx8 s[{sKG+16}:{sKG+23}], s[0:1], 64")
    a(f"s_load_dwordx2 s[{sKG+24}:{sKG+25}], s[0:1], 96")
    a("s_cmp_ge_u32 s2, 256")
    a("s_cbranch_scc1 L_end")
    a("v_lshrrev_b32 v1, 6, v0")
    a("v_and_b32 v0, 63, v0")
    a(f"s_mov_b32 s{sSP}, 0")
    a(f"v_readfirstlane_b32 s{sWAVE}, v1")
    a(f"s_cmp_eq_u32 s{sWAVE}, 0")
    a("s_cbranch_scc1 L_w0")
    a.c("---------------- distributed q projection ----------------")
    a(f"s_sub_u32 s{sW1}, s{sWAVE}, 1")
    vN=2; vG=3; vS16=4; vXO=8; vWO=9; vX=10; vFL=14; vONE=15; vAO=16; vAC=24; vWq=40
    a(f"v_and_b32 v{vN}, 15, v0")
    a(f"v_lshrrev_b32 v{vG}, 4, v0")
    a(f"s_and_b32 s{sT0}, s2, 3")
    a(f"s_mul_i32 s{sT0}, s{sT0}, 112")
    a(f"s_lshl_b32 s{sT1}, s{sW1}, 4")
    a(f"s_add_u32 s{sT0}, s{sT0}, s{sT1}       ; row0")
    a(f"v_lshl_add_u32 v16, v{vG}, 2, s{sT0}    ; row0+4g")
    a(f"v_lshrrev_b32 v{vXO}, 2, v{vN}")
    a(f"v_mul_u32_u24 v{vXO}, 896, v{vXO}")
    a(f"v_lshl_add_u32 v{vXO}, v16, 1, v{vXO}")
    a(f"s_lshr_b32 s{sT1}, s2, 2")
    a(f"s_and_b32 s{sT1}, s{sT1}, 31")
    a(f"s_lshl_b32 s{sT1}, s{sT1}, 8")
    a(f"v_lshlrev_b32 v{vWO}, 13, v16")
    a(f"v_lshl_add_u32 v{vWO}, v{vN}, 4, v{vWO}")
    a(f"v_add_u32 v{vWO}, s{sT1}, v{vWO}")
    a(f"s_mov_b32 s56, 8192")
    a(f"s_mov_b32 s57, 16384")
    a(f"s_mov_b32 s58, 24576")
    a(f"v_mov_b32 v{vFL}, {MISC}")
    a(f"v_mov_b32 v{vONE}, 1")
    a("s_waitcnt lgkmcnt(0)")
    a("s_cmp_ge_u32 s2, 128")
    a(f"s_cselect_b32 s{sSRD1}, s{sKG+16}, s{sKG+6}       ; wq")
    a(f"s_cselect_b32 s{sSRD1+1}, s{sKG+17}, s{sKG+7}")
    a(f"s_cselect_b32 s{sSRD0}, s{sKG+10}, s{sKG+0}       ; x")
    a(f"s_cselect_b32 s{sSRD0+1}, s{sKG+11}, s{sKG+1}")
    a(f"s_mov_b32 s{sSRD1+2}, 3670016")
    a(f"s_mov_b32 s{sSRD1+3}, 0x20000")
    a(f"s_mov_b32 s{sSRD0+2}, 7168")
    a(f"s_mov_b32 s{sSRD0+3}, 0x20000")
    so=["0","s56","s57","s58"]
    for j in range(4):
        a(f"buffer_load_dwordx4 v[{vWq+4*j}:{vWq+4*j+3}], v{vWO}, s[{sSRD1}:{sSRD1+3}], {so[j]} offen {wqpol}")
    for u in range(2):
        a(f"buffer_load_dwordx2 v[{vX+2*u}:{vX+2*u+1}], v{vXO}, s[{sSRD0}:{sSRD0+3}], 0 offen offset:{u*3584}")
    a(f"s_load_dword s{sTAG}, s[{sKG+24}:{sKG+25}], {E_OFF}")
    a("s_barrier")
    a(f"s_mov_b64 s[{sDBG}:{sDBG+1}], s[{sKG+22}:{sKG+23}]")
    a(f"s_mov_b64 s[{sWS}:{sWS+1}], s[{sKG+24}:{sKG+25}]")
    a(f"s_mov_b64 s[{sOUT}:{sOUT+1}], s[{sKG+20}:{sKG+21}]")
    a(f"s_mov_b64 s[{sWOA}:{sWOA+1}], s[{sKG+8}:{sKG+9}]")
    a(f"s_mov_b64 s[{sWOB}:{sWOB+1}], s[{sKG+18}:{sKG+19}]")
    a(f"v_and_b32 v16, 1, v{vN}")
    a(f"v_cmp_eq_u32 vcc, 1, v16")
    a(f"v_mov_b32 v17, 0x0c0c0100")
    a(f"v_mov_b32 v18, 0x01000c0c")
    a(f"v_cndmask_b32 v17, v17, v18, vcc")
    a(f"v_mov_b32 v18, 0x0c0c0302")
    a(f"v_mov_b32 v19, 0x03020c0c")
    a(f"v_cndmask_b32 v18, v18, v19, vcc")
    a(f"v_bfe_u32 v16, v{vN}, 1, 1")
    a(f"v_mov_b32 v19, 0x0c0c0c0c")
    for t in range(2):
        a(f"v_cmp_eq_u32 vcc, {t}, v16")
        a("s_nop 1")
        a(f"v_cndmask_b32 v{vS16+t}, v19, v17, vcc")
        a(f"v_cndmask_b32 v{vS16+2+t}, v19, v18, vcc")
    a(f"s_lshl_b32 s{sT0}, s{sW1}, 12")
    a(f"s_add_u32 s{sT0}, s{sT0}, {QPART}")
    a(f"v_lshlrev_b32 v56, 9, v{vG}")
    a(f"v_lshl_add_u32 v56, v{vN}, 5, v56")
    a(f"v_add_u32 v56, s{sT0}, v56")
    a("s_waitcnt vmcnt(0)")
    for j in range(4):
        for u in range(2):
            ao=vAO+4*(j&1)+2*u
            for t in range(2):
                a(f"v_perm_b32 v{ao+t}, v{vX+2*u+(j>>1)}, v{vX+2*u+(j>>1)}, v{vS16+2*(j&1)+t}")
        a("s_nop 0")
        for u in range(2):
            ao=vAO+4*(j&1)+2*u
            for hf in range(2):
                acc=vAC+8*u+4*hf
                cin="0" if j==0 else f"v[{acc}:{acc+3}]"
                a(f"v_mfma_f32_16x16x16_bf16 v[{acc}:{acc+3}], v[{ao}:{ao+1}], v[{vWq+4*j+2*hf}:{vWq+4*j+2*hf+1}], {cin}")
    ts(8)
    a("s_nop 7")
    a("s_nop 0")
    for u in range(2):
        for hf in range(2):
            acc=vAC+8*u+4*hf
            a(f"ds_write_b128 v56, v[{acc}:{acc+3}] offset:{u*2048+hf*16}")
    signal(vFL,CQ1,vONE)
    a(f"s_cmp_gt_u32 s{sWAVE}, 4")
    a("s_cbranch_scc0 L_qred")
    a("s_cmp_ge_u32 s2, 192")
    a("s_cbranch_scc1 L_hout")
    a("s_endpgm")
    a.lab("L_qred")
    vT=24
    a("v_lshrrev_b32 v16, 5, v0")
    a("v_and_b32 v17, 31, v0")
    a(f"s_lshl_b32 s{sT0}, s{sW1}, 1")
    a(f"v_add_u32 v16, s{sT0}, v16           ; batch")
    a(f"v_lshlrev_b32 v18, 9, v16")
    a(f"v_lshl_add_u32 v18, v17, 4, v18")
    a(f"v_add_u32 v18, {QPART}, v18")
    a(f"s_lshl_b32 s{sT0}, s2, 13")
    a(f"s_add_u32 s{sT0}, s{sT0}, {QP_OFF}")
    a(f"v_lshlrev_b32 v19, 10, v16")
    a(f"v_lshl_add_u32 v19, v17, 4, v19")
    a(f"v_add_u32 v19, s{sT0}, v19")
    spin_ge(vFL,CQ1,7,vT)
    for w in range(7):
        a(f"ds_read_b128 v[{40+4*w}:{43+4*w}], v18 offset:{w*4096}")
    a(f"s_add_u32 s{sTAG}, s{sTAG}, 0x9e3779b1")
    a(f"s_lshl_b32 s{sT0}, s{sW1}, 2")
    a(f"s_add_u32 s{sT0}, s{sT0}, {MISC+DONE}")
    a(f"v_mov_b32 v20, s{sT0}")
    a("s_waitcnt lgkmcnt(0)")
    a(f"ds_write_b32 v20, v{vONE}")
    for k in range(4):
        a(f"v_add_f32 v{40+k}, v{40+k}, v{44+k}")
        a(f"v_add_f32 v{48+k}, v{48+k}, v{52+k}")
        a(f"v_add_f32 v{56+k}, v{56+k}, v{60+k}")
    for k in range(4):
        a(f"v_add_f32 v{40+k}, v{40+k}, v{48+k}")
        a(f"v_add_f32 v{56+k}, v{56+k}, v{64+k}")
    for k in range(4):
        a(f"v_add_f32 v{68+2*k}, v{40+k}, v{56+k}")
        a(f"v_mov_b32 v{69+2*k}, s{sTAG}")
    a(f"global_store_dwordx4 v19, v[68:71], s[{sWS}:{sWS+1}] sc1")
    a(f"global_store_dwordx4 v19, v[72:75], s[{sWS}:{sWS+1}] offset:512 sc1")
    ts(9)
    a("s_cmp_ge_u32 s2, 192")
    a("s_cbranch_scc1 L_hout")
    a.c("---------------- consumers ----------------")
    attn_decode()
    vSEL=4
    a(f"v_and_b32 v16, 7, v{vN}")
    a(f"v_lshrrev_b32 v17, 1, v16      ; te")
    a(f"v_and_b32 v16, 1, v16          ; par")
    a(f"v_cmp_eq_u32 vcc, 1, v16")
    a(f"v_mov_b32 v18, 0x0c0c0100")
    a(f"v_mov_b32 v19, 0x01000c0c")
    a(f"v_cndmask_b32 v18, v18, v19, vcc")
    a(f"v_mov_b32 v19, 0x0c0c0302")
    a(f"v_mov_b32 v20, 0x03020c0c")
    a(f"v_cndmask_b32 v19, v19, v20, vcc")
    a(f"v_mov_b32 v20, 0x0c0c0c0c")
    for t in range(4):
        a(f"v_cmp_eq_u32 vcc, {t}, v17")
        a("s_nop 1")
        a(f"v_cndmask_b32 v{vSEL+t}, v20, v18, vcc")
        a(f"v_cndmask_b32 v{vSEL+4+t}, v20, v19, vcc")
    a(f"s_cmp_eq_u32 s{sISB}, 1")
    a("s_cbranch_scc0 L_qg")
    a(f"s_cmp_ge_u32 s{sW1}, 2")
    a("s_cbranch_scc1 L_qg_done")
    a.lab("L_qg")
    a(f"s_sub_u32 s{sT1}, 2, s{sISB}")
    a(f"s_lshl_b32 s{sT0}, s{sH}, s{sT1}")
    a(f"s_add_u32 s{sT0}, s{sT0}, s{sW1}      ; c")
    a(f"s_lshl_b32 s{sT1}, s{sISB}, 5")
    a(f"s_add_u32 s{sT0}, s{sT0}, s{sT1}      ; m*32+c")
    a(f"s_lshl_b32 s{sT0}, s{sT0}, 15         ; *4*8192")
    a(f"s_lshl_b32 s{sT1}, s{sB}, 10")
    a(f"s_add_u32 s{sT0}, s{sT0}, s{sT1}")
    a(f"s_add_u32 s{sT0}, s{sT0}, {QP_OFF}")
    a(f"v_lshlrev_b32 v16, 4, v0")
    a(f"v_add_u32 v16, s{sT0}, v16")
    for kq in range(1,4): a(f"v_add_u32 v{16+kq}, {kq*8192}, v16")
    PA=160; PB=176
    def issue(base):
        for kq in range(4):
            a(f"global_load_dwordx4 v[{base+4*kq}:{base+4*kq+3}], v{16+kq}, s[{sWS}:{sWS+1}] sc1")
    def check(base,lab):
        a(f"v_xor_b32 v20, s{sTAG}, v{base+1}")
        for r in (3,5,7,9,11,13,15):
            a(f"v_xor_b32 v21, s{sTAG}, v{base+r}")
            a(f"v_or_b32 v20, v20, v21")
        a("v_cmp_eq_u32 vcc, 0, v20")
        a("s_nop 1")
        a("s_cmp_eq_u64 vcc, -1")
        a(f"s_cbranch_scc1 {lab}")
    def qsum(base):
        a(f"v_add_f32 v32, v{base}, v{base+4}")
        a(f"v_add_f32 v34, v{base+2}, v{base+6}")
        a(f"v_add_f32 v40, v{base+8}, v{base+12}")
        a(f"v_add_f32 v42, v{base+10}, v{base+14}")
    issue(PA)
    if qsleep: a(f"s_sleep {qsleep}")
    a.lab("L_qg_poll")
    issue(PB)
    a("s_waitcnt vmcnt(4)")
    check(PA,"L_qg_gotA")
    issue(PA)
    a("s_waitcnt vmcnt(4)")
    check(PB,"L_qg_gotB")
    bound()
    a("s_branch L_qg_poll")
    a.lab("L_qg_gotB")
    qsum(PB)
    a("s_branch L_qg_got")
    a.lab("L_qg_gotA")
    qsum(PA)
    a.lab("L_qg_got")
    a("v_add_f32 v32, v32, v40")
    a("v_add_f32 v34, v34, v42")
    a("v_cvt_pk_bf16_f32 v32, v32, v34")
    a("v_and_b32 v20, 31, v0")
    a("v_lshrrev_b32 v21, 5, v0")
    a("v_lshlrev_b32 v20, 3, v20")
    a("v_lshl_add_u32 v20, v21, 2, v20")
    a(f"s_lshl_b32 s{sT0}, s{sW1}, 8")
    a(f"s_add_u32 s{sT0}, s{sT0}, {MISC+QL}")
    a(f"v_add_u32 v20, s{sT0}, v20")
    a("ds_write_b32 v20, v32")
    a.lab("L_qg_done")
    ts(7)
    signal(vFL,CQ2,vONE)
    vKA=64; vKF=72; vS=104
    vMAX=108; vSA=109; vDN=110; vDV=111; vQH=112
    a(f"v_lshrrev_b32 v{vQH}, 3, v{vN}       ; qh")
    for s in range(4):
        a(f"v_and_b32 v26, 12, v{vN}")
        a(f"v_xor_b32 v26, {4*s}, v26")
        a(f"v_and_b32 v27, 3, v{vN}")
        a(f"v_xor_b32 v27, v27, v{vG}")
        a(f"v_add_u32 v26, v26, v27")
        a(f"v_lshlrev_b32 v26, 4, v26")
        a(f"v_lshl_add_u32 v{vKA+s}, v{vN}, 9, v26")
    a(f"s_lshl_b32 s{sT0}, s{sW1}, 12")
    a(f"s_add_u32 s{sT0}, s{sT0}, {SBUF}")
    a(f"v_lshlrev_b32 v{vSA}, 5, v{vQH}")
    a(f"v_lshl_add_u32 v{vSA}, v{vG}, 3, v{vSA}")
    a(f"v_add_u32 v{vSA}, s{sT0}, v{vSA}")
    a(f"v_mov_b32 v{vMAX}, 0xff800000")
    a(f"s_lshl_b32 s{sT0}, s{sW1}, 2")
    a(f"s_add_u32 s{sT0}, s{sT0}, {MISC+DONE}")
    a(f"v_mov_b32 v{vDN}, s{sT0}")
    sTT=48; sFU=49; sSLO=50; sJ1=51; sMASK=52; sC=55
    a(f"s_mov_b32 s{sTT}, s{sW1}")
    a(f"s_mov_b32 s{sFU}, 0")
    a(f"s_lshl_b32 s{sSLO}, s{sW1}, 13")
    a(f"s_mov_b32 s{sJ1}, 2")
    a(f"s_mov_b32 s{sMASK}, 0x01010101")
    a(f"s_mov_b32 s{sMASK+1}, 0x01010101")
    vQF=32
    a(f"s_cmp_eq_u32 s{sISB}, 1")
    a(f"s_cselect_b32 s{sT0}, 0, 512")
    a(f"v_mul_lo_u32 v26, v{vQH}, s{sT0}")
    a(f"v_lshl_add_u32 v26, v{vG}, 4, v26")
    a(f"v_add_u32 v26, {MISC+QL}, v26")
    spin_ge(vFL,CQ2,4,vT)
    for s in range(8):
        a(f"ds_read_b128 v[{vQF+4*s}:{vQF+4*s+3}], v26 offset:{s*64}")
    a("s_waitcnt lgkmcnt(0)")
    ts(3)
    def wait_full(tag):
        Lg=f"L_{tag}_go"; Ls=f"L_{tag}_spin"
        a(f"s_cmp_gt_i32 s{sFU}, s{sTT}")
        a(f"s_cbranch_scc1 {Lg}")
        a.lab(Ls)
        a(f"ds_read_b32 v{vT}, v{vFL} offset:{FULL}")
        a("s_waitcnt lgkmcnt(0)")
        a(f"v_readfirstlane_b32 s{sFU}, v{vT}")
        a(f"s_cmp_gt_i32 s{sFU}, s{sTT}")
        a(f"s_cbranch_scc1 {Lg}")
        bound()
        if spin_sleep: a(f"s_sleep {spin_sleep}")
        a(f"s_branch {Ls}")
        a.lab(Lg)
    def advance():
        a(f"s_add_u32 s{sTT}, s{sTT}, 4")
        a(f"s_add_u32 s{sSLO}, s{sSLO}, {4*8192}")
        a(f"s_cmp_ge_u32 s{sSLO}, {RINGB}")
        a(f"s_cselect_b32 s{sT0}, {RINGB}, 0")
        a(f"s_sub_u32 s{sSLO}, s{sSLO}, s{sT0}")
        a(f"s_add_u32 s{sJ1}, s{sJ1}, 1")
    a.lab("L_K")
    for s in range(4): a(f"v_add_u32 v{vKA+4+s}, s{sSLO}, v{vKA+s}")
    a(f"v_mov_b32 v{vDV}, s{sJ1}")
    wait_full("K")
    for s in range(8):
        a(f"ds_read_b128 v[{vKF+4*s}:{vKF+4*s+3}], v{vKA+4+(s&3)} offset:{RING+(s>>2)*256}")
    for s in range(8):
        a(f"s_waitcnt lgkmcnt({7-s})")
        if s==7: a(f"ds_write_b32 v{vDN}, v{vDV}")
        cin="0" if s==0 else f"v[{vS}:{vS+3}]"
        a(f"v_mfma_f32_16x16x32_bf16 v[{vS}:{vS+3}], v[{vKF+4*s}:{vKF+4*s+3}], v[{vQF+4*s}:{vQF+4*s+3}], {cin}")
    advance()
    a("s_nop 3")
    a(f"v_max3_f32 v{vMAX}, v{vMAX}, v{vS}, v{vS+1}")
    a(f"v_max3_f32 v{vMAX}, v{vMAX}, v{vS+2}, v{vS+3}")
    a(f"v_cvt_pk_bf16_f32 v{vS}, v{vS}, v{vS+1}")
    a(f"v_cvt_pk_bf16_f32 v{vS+1}, v{vS+2}, v{vS+3}")
    a(f"s_mov_b64 exec, s[{sMASK}:{sMASK+1}]")
    a(f"ds_write_b64 v{vSA}, v[{vS}:{vS+1}]")
    a("s_mov_b64 exec, -1")
    a(f"v_add_u32 v{vSA}, 64, v{vSA}")
    a(f"s_cmp_lt_u32 s{sTT}, 256")
    a("s_cbranch_scc1 L_K")
    ts(4)
    a(f"s_lshl_b32 s{sT0}, s{sW1}, 4")
    a(f"s_add_u32 s{sT0}, s{sT0}, {MISC+MX}")
    a(f"v_lshlrev_b32 v26, 6, v{vQH}")
    a(f"v_lshl_add_u32 v27, v{vG}, 2, v26")
    a(f"v_add_u32 v27, s{sT0}, v27")
    a(f"s_mov_b64 exec, s[{sMASK}:{sMASK+1}]")
    a(f"ds_write_b32 v27, v{vMAX}")
    a("s_mov_b64 exec, -1")
    signal(vFL,CMX,vONE)
    spin_ge(vFL,CMX,4,vT)
    a(f"v_add_u32 v26, {MISC+MX}, v26")
    for k in range(4): a(f"ds_read_b128 v[{72+4*k}:{75+4*k}], v26 offset:{k*16}")
    a(f"v_subrev_u32 v{vSA}, {64*64}, v{vSA}")
    a("s_waitcnt lgkmcnt(0)")
    a("v_max3_f32 v72, v72, v73, v74")
    for k in range(75,87,2): a(f"v_max3_f32 v72, v72, v{k}, v{k+1}")
    a("v_max_f32 v72, v72, v87")
    vNM=113; vL=114; vVA=115; vVC=116; vW=118
    a(f"s_mov_b32 s{sC}, {CEXP:#x}")
    a(f"v_mul_f32 v{vNM}, s{sC}, v72")
    a(f"v_sub_f32 v{vNM}, 0, v{vNM}")
    a(f"v_mov_b32 v{vL}, 0")
    a(f"v_lshlrev_b32 v{vVA}, 11, v{vG}")
    a(f"v_lshl_add_u32 v{vVA}, v{vN}, 4, v{vVA}")
    vO=120
    for k in range(8): a(f"v_mov_b32 v{vO+k}, 0")
    vVF=72; vP=104; vAP=128
    sTR=56; vTRA=117
    if trig:
        a(f"s_cmp_eq_u32 s{sW1}, 0")
        a(f"s_cselect_b32 s{sTR}, {trig}, 0")
        a(f"v_mov_b32 v{vTRA}, 64")
    a.lab("L_V")
    a(f"ds_read_b64 v[{vW}:{vW+1}], v{vSA}")
    a(f"v_add_u32 v{vVC}, s{sSLO}, v{vVA}")
    a(f"v_add_u32 v{vSA}, 64, v{vSA}")
    a(f"v_mov_b32 v{vDV}, s{sJ1}")
    a("s_waitcnt lgkmcnt(0)")
    a(f"v_lshlrev_b32 v{vP}, 16, v{vW}")
    a(f"v_and_b32 v{vP+1}, 0xffff0000, v{vW}")
    a(f"v_lshlrev_b32 v{vP+2}, 16, v{vW+1}")
    a(f"v_and_b32 v{vP+3}, 0xffff0000, v{vW+1}")
    for r in range(4): a(f"v_fma_f32 v{vP+r}, v{vP+r}, s{sC}, v{vNM}")
    for r in range(4): a(f"v_exp_f32 v{vP+r}, v{vP+r}")
    a("s_nop 0")
    a(f"v_cvt_pk_bf16_f32 v{vW}, v{vP}, v{vP+1}")
    a(f"v_cvt_pk_bf16_f32 v{vW+1}, v{vP+2}, v{vP+3}")
    a(f"v_add_f32 v{vP}, v{vP}, v{vP+1}")
    a(f"v_add_f32 v{vP+2}, v{vP+2}, v{vP+3}")
    a(f"v_add_f32 v{vL}, v{vL}, v{vP}")
    a(f"v_add_f32 v{vL}, v{vL}, v{vP+2}")
    for r in range(4):
        for t in range(4):
            a(f"v_perm_b32 v{vAP+4*r+t}, v{vW+(r>>1)}, v{vW+(r>>1)}, v{vSEL+4*(r&1)+t}")
    wait_full("V")
    for r in range(4):
        for h in range(2):
            b=vVF+4*(2*r+h)
            a(f"ds_read_b128 v[{b}:{b+3}], v{vVC} offset:{RING+r*512+h*256}")
    k=0
    for r in range(4):
        for h in range(2):
            b=vVF+4*(2*r+h)
            a(f"s_waitcnt lgkmcnt({7-k})")
            if k==7: a(f"ds_write_b32 v{vDN}, v{vDV}")
            a(f"v_mfma_f32_16x16x32_bf16 v[{vO+4*h}:{vO+4*h+3}], v[{vAP+4*r}:{vAP+4*r+3}], v[{b}:{b+3}], v[{vO+4*h}:{vO+4*h+3}]")
            k+=1
    advance()
    if trig:
        a(f"s_cmp_lg_u32 s{sTR}, s{sTT}")
        a("s_cbranch_scc1 L_notrig")
        a("s_mov_b64 exec, 1")
        a(f"global_atomic_add v{vTRA}, v{vONE}, s[{sDBG}:{sDBG+1}] sc1")
        a("s_mov_b64 exec, -1")
        a.lab("L_notrig")
    a(f"s_cmp_lt_u32 s{sTT}, 512")
    a("s_cbranch_scc1 L_V")
    ts(5)
    a(f"s_lshl_b32 s{sT0}, s{sW1}, 12")
    a(f"s_add_u32 s{sT0}, s{sT0}, {SBUF}")
    a(f"v_lshrrev_b32 v26, 1, v{vG}")
    a(f"v_lshlrev_b32 v26, 10, v26")
    a(f"v_and_b32 v27, 1, v{vG}")
    a(f"v_lshl_add_u32 v26, v27, 4, v26")
    a(f"v_lshl_add_u32 v26, v{vN}, 5, v26")
    a(f"v_add_u32 v26, s{sT0}, v26")
    a(f"s_lshl_b32 s{sT0}, s{sW1}, 4")
    a(f"s_add_u32 s{sT0}, s{sT0}, {MISC+LS}")
    a(f"v_lshlrev_b32 v27, 6, v{vQH}")
    a(f"v_lshl_add_u32 v27, v{vG}, 2, v27")
    a(f"v_add_u32 v27, s{sT0}, v27")
    a("s_nop 1")
    a(f"ds_write_b128 v26, v[{vO}:{vO+3}]")
    a(f"ds_write_b128 v26, v[{vO+4}:{vO+7}] offset:512")
    a(f"s_mov_b64 exec, s[{sMASK}:{sMASK+1}]")
    a(f"ds_write_b32 v27, v{vL}")
    a("s_mov_b64 exec, -1")
    a("s_waitcnt lgkmcnt(0)")
    a("s_mov_b64 exec, 1")
    a(f"ds_add_rtn_u32 v{vT}, v{vFL}, v{vONE} offset:{CFIN}")
    a("s_mov_b64 exec, -1")
    a("v_lshrrev_b32 v25, 5, v0")
    a("v_and_b32 v28, 31, v0")
    a("v_lshlrev_b32 v26, 10, v25")
    a("v_lshl_add_u32 v26, v28, 5, v26")
    a(f"v_add_u32 v26, {SBUF}, v26")
    a("v_lshlrev_b32 v27, 6, v25")
    a(f"v_add_u32 v27, {MISC+LS}, v27")
    a(f"s_lshl_b32 s{sT0}, s{sISB}, 16")
    a(f"s_lshl_b32 s{sT1}, s{sB}, 13")
    a(f"s_add_u32 s{sT0}, s{sT0}, s{sT1}")
    a(f"s_sub_u32 s{sT1}, 10, s{sISB}")
    a(f"s_lshl_b32 s{sT1}, s{sH}, s{sT1}")
    a(f"s_add_u32 s{sT0}, s{sT0}, s{sT1}")
    a(f"s_add_u32 s{sT0}, s{sT0}, {O_OFF}")
    a(f"v_lshlrev_b32 v29, 4, v0")
    a(f"v_add_u32 v29, s{sT0}, v29")
    a("s_waitcnt lgkmcnt(0)")
    a(f"v_readfirstlane_b32 s{sT0}, v{vT}")
    a(f"s_cmp_eq_u32 s{sT0}, 3")
    a("s_cbranch_scc0 L_end")
    for w in range(4):
        a(f"ds_read_b128 v[{32+8*w}:{35+8*w}], v26 offset:{w*4096}")
        a(f"ds_read_b128 v[{36+8*w}:{39+8*w}], v26 offset:{w*4096+16}")
    for k in range(4): a(f"ds_read_b128 v[{64+4*k}:{67+4*k}], v27 offset:{k*16}")
    a(f"s_lshl_b32 s{sT0}, s{sISB}, 7")
    a(f"s_lshl_b32 s{sT1}, s{sH}, 2")
    a(f"s_add_u32 s{sT0}, s{sT0}, s{sT1}")
    a(f"v_mov_b32 v30, s{sT0}")
    a("s_waitcnt lgkmcnt(0)")
    for k in range(8): a(f"v_add_f32 v{64+k}, v{64+k}, v{72+k}")
    for k in range(4): a(f"v_add_f32 v{64+k}, v{64+k}, v{68+k}")
    a("v_add_f32 v64, v64, v65")
    a("v_add_f32 v66, v66, v67")
    a("v_add_f32 v64, v64, v66")
    a("v_rcp_f32 v64, v64")
    for k in range(8):
        a(f"v_add_f32 v{32+k}, v{32+k}, v{40+k}")
        a(f"v_add_f32 v{48+k}, v{48+k}, v{56+k}")
    for k in range(8): a(f"v_add_f32 v{32+k}, v{32+k}, v{48+k}")
    for k in range(8): a(f"v_mul_f32 v{32+k}, v{32+k}, v64")
    for k in range(4): a(f"v_cvt_pk_bf16_f32 v{32+k}, v{32+2*k}, v{33+2*k}")
    a(f"s_cmp_eq_u32 s{sISB}, 1")
    a(f"s_cselect_b32 exec_hi, 0, -1")
    a(f"global_store_dwordx4 v29, v[32:35], s[{sWS}:{sWS+1}] sc1")
    a("s_waitcnt vmcnt(0)")
    a("s_mov_b64 exec, 1")
    a(f"global_atomic_add v30, v{vONE}, s[{sDBG}:{sDBG+1}] sc1")
    ts(6)
    ts_dump([3,4,5,6,7,8,9])
    a("s_endpgm")
    a.lab("L_w0")
    a("s_cmp_ge_u32 s2, 192")
    a("s_cbranch_scc1 L_h0")
    a.c("---------------- loader wave ----------------")
    a("s_setprio 3")
    attn_decode()
    vZ=2; vA=3; vFA=4; vFV=5; vKO=8; vVO=16; vD=20
    zero_flags(vZ,vA)
    a(f"v_mov_b32 v{vFA}, {MISC}")
    a("v_lshrrev_b32 v6, 5, v0      ; hi")
    a("v_and_b32 v7, 31, v0        ; lo")
    for i in range(8):
        a(f"v_add_u32 v{vKO+i}, {2*i}, v6")
        a(f"v_xor_b32 v{vKO+i}, v{vKO+i}, v7")
        a(f"v_lshlrev_b32 v{vKO+i}, 4, v{vKO+i}")
        a(f"v_lshl_add_u32 v{vKO+i}, v6, 9, v{vKO+i}")
        if i>=4: a(f"v_add_u32 v{vKO+i}, 4096, v{vKO+i}")
    a(f"v_lshlrev_b32 v{vVO}, 4, v0")
    a(f"v_add_u32 v{vVO+1}, 4096, v{vVO}")
    a(f"s_lshl_b32 s{sT0}, s{sPAIR}, 21")
    a("s_waitcnt lgkmcnt(0)")
    a(f"s_cmp_ge_u32 s2, 64")
    a(f"s_cselect_b32 s{sP0}, s{sKG+12}, s{sKG+2}         ; K")
    a(f"s_cselect_b32 s{sP0+1}, s{sKG+13}, s{sKG+3}")
    a(f"s_cselect_b32 s{sP0+2}, s{sKG+14}, s{sKG+4}       ; V")
    a(f"s_cselect_b32 s{sP0+3}, s{sKG+15}, s{sKG+5}")
    a("s_barrier")
    a(f"s_add_u32 s{sSRD0}, s{sP0}, s{sT0}")
    a(f"s_addc_u32 s{sSRD0+1}, s{sP0+1}, 0")
    a(f"s_mov_b32 s{sSRD0+2}, 0x200000")
    a(f"s_mov_b32 s{sSRD0+3}, 0x20000")
    a(f"s_add_u32 s{sSRD1}, s{sP0+2}, s{sT0}")
    a(f"s_addc_u32 s{sSRD1+1}, s{sP0+3}, 0")
    a(f"s_mov_b32 s{sSRD1+2}, 0x200000")
    a(f"s_mov_b32 s{sSRD1+3}, 0x20000")
    sT=48; sAL=49; sSL=50; sOFF=51; sPUB=52
    a(f"s_mov_b32 s{sT}, 0")
    a(f"s_mov_b32 s{sAL}, {NS-4}")
    a(f"s_mov_b32 s{sSL}, {RING}")
    if DB and DB!=D:
        a(f"s_cmp_eq_u32 s{sISB}, 1")
        a(f"s_cselect_b32 s{sPUB}, {1-(DB+7)//8}, {1-(D+7)//8}")
    else:
        a(f"s_mov_b32 s{sPUB}, {1-(D+7)//8}")
    ts(0)
    for ph,(srd,vo,tend) in enumerate(((sSRD0,[vKO+i for i in range(8)],256),(sSRD1,[vVO]*4+[vVO+1]*4,512))):
        LT=f"L_ld_tile{ph}"; LG=f"L_ld_go{ph}"; LR=f"L_ld_ref{ph}"
        a(f"s_mov_b32 s{sOFF}, 0")
        a.lab(LT)
        a(f"s_cmp_lt_u32 s{sT}, s{sAL}")
        a(f"s_cbranch_scc1 {LG}")
        a.lab(LR)
        a(f"ds_read_b128 v[{vD}:{vD+3}], v{vFA} offset:{DONE}")
        a("s_waitcnt lgkmcnt(0)")
        a(f"v_min_u32 v{vD}, v{vD}, v{vD+1}")
        a(f"v_min3_u32 v{vD}, v{vD}, v{vD+2}, v{vD+3}")
        a("s_nop 0")
        a(f"v_readfirstlane_b32 s{sAL}, v{vD}")
        a(f"s_lshl_b32 s{sAL}, s{sAL}, 2")
        a(f"s_add_u32 s{sAL}, s{sAL}, {NS-4}")
        a(f"s_cmp_lt_u32 s{sT}, s{sAL}")
        a(f"s_cbranch_scc1 {LG}")
        bound()
        a("s_sleep 1")
        a(f"s_branch {LR}")
        a.lab(LG)
        def lwait(tag):
            a(f"s_waitcnt vmcnt({D-4})")
            if DB and DB!=D:
                assert DB<D
                a(f"s_cmp_eq_u32 s{sISB}, 0")
                a(f"s_cbranch_scc1 L_lw{ph}{tag}")
                a(f"s_waitcnt vmcnt({DB-4})")
                a.lab(f"L_lw{ph}{tag}")
        a(f"s_mov_b32 m0, s{sSL}")
        lwait("a")
        for i in range(4):
            a(f"buffer_load_dwordx4 v{vo[i]}, s[{srd}:{srd+3}], s{sOFF} offen offset:{i*1024} {pol} lds")
        a(f"s_add_u32 m0, s{sSL}, 4096")
        a(f"v_mov_b32 v{vFV}, s{sPUB}")
        lwait("b")
        a(f"ds_write_b32 v{vFA}, v{vFV} offset:{FULL}")
        for i in range(4,8):
            a(f"buffer_load_dwordx4 v{vo[i]}, s[{srd}:{srd+3}], s{sOFF} offen offset:{(i-4)*1024} {pol} lds")
        a(f"s_add_u32 s{sOFF}, s{sOFF}, 8192")
        a(f"s_add_u32 s{sSL}, s{sSL}, 8192")
        a(f"s_cmp_eq_u32 s{sSL}, {RING+RINGB}")
        a(f"s_cselect_b32 s{sSL}, {RING}, s{sSL}")
        a(f"s_add_u32 s{sPUB}, s{sPUB}, 1")
        a(f"s_add_u32 s{sT}, s{sT}, 1")
        a(f"s_cmp_lt_u32 s{sT}, {tend}")
        a(f"s_cbranch_scc1 {LT}")
        if ph==0: ts(1)
    for k in range((D+7)//8*8-8,-1,-8):
        a(f"v_mov_b32 v{vFV}, {512-k//8}")
        a(f"s_waitcnt vmcnt({k})")
        a(f"ds_write_b32 v{vFA}, v{vFV} offset:{FULL}")
    ts(2)
    ts_dump([0,1,2])
    a("s_endpgm")
    a.lab("L_h0")
    a.c("helper wave 0: flag init, pointers")
    zero_flags(2,3)
    a("s_waitcnt lgkmcnt(0)")
    a(f"s_mov_b64 s[{sDBG}:{sDBG+1}], s[{sKG+22}:{sKG+23}]")
    a(f"s_mov_b64 s[{sWS}:{sWS+1}], s[{sKG+24}:{sKG+25}]")
    a(f"s_mov_b64 s[{sOUT}:{sOUT+1}], s[{sKG+20}:{sKG+21}]")
    a(f"s_mov_b64 s[{sWOA}:{sWOA+1}], s[{sKG+8}:{sKG+9}]")
    a(f"s_mov_b64 s[{sWOB}:{sWOB+1}], s[{sKG+18}:{sKG+19}]")
    a("s_barrier")
    a.lab("L_hout")
    a.c("---------------- helpers: out projection ----------------")
    sHJ=54
    vN=2; vG=3
    a(f"s_sub_u32 s{sHJ}, s2, 192")
    a(f"s_and_b32 s{sX}, s{sHJ}, 7")
    a(f"s_lshr_b32 s{sT1}, s{sHJ}, 3")
    a(f"s_and_b32 s{sSLOT}, s{sT1}, 3     ; sub")
    a(f"s_lshr_b32 s{sT1}, s{sHJ}, 5      ; hi")
    a(f"s_lshl_b32 s{sT1}, s{sT1}, 3")
    a(f"s_add_u32 s{sGRP}, s{sT1}, s{sX}   ; gamma")
    a(f"s_cmp_ge_u32 s{sGRP}, 14")
    a("s_cbranch_scc1 L_h_idle")
    a(f"s_cmp_ge_u32 s{sGRP}, 7")
    a(f"s_cselect_b32 s{sISB}, 1, 0")
    a(f"s_cselect_b32 s{sT1}, 7, 0")
    a(f"s_cselect_b32 s{sP0}, s{sWOB}, s{sWOA}          ; wo")
    a(f"s_cselect_b32 s{sP0+1}, s{sWOB+1}, s{sWOA+1}")
    a(f"s_sub_u32 s{sGRP}, s{sGRP}, s{sT1}")
    a(f"s_lshl_b32 s{sH}, s{sGRP}, 2")
    a(f"s_add_u32 s{sH}, s{sH}, s{sSLOT}")
    a(f"v_and_b32 v{vN}, 15, v0")
    a(f"v_lshrrev_b32 v{vG}, 4, v0")
    a(f"s_mul_i32 s{sT0}, s{sWAVE}, {512*896}")
    a(f"s_lshl_b32 s{sT1}, s{sH}, 5")
    a(f"s_add_u32 s{sT0}, s{sT0}, s{sT1}")
    a(f"v_lshrrev_b32 v4, 1, v0")
    a(f"v_mul_u32_u24 v4, 896, v4")
    a(f"v_and_b32 v5, 1, v0")
    a(f"v_lshl_add_u32 v4, v5, 4, v4")
    a(f"v_add_u32 v4, s{sT0}, v4")
    sWR=55
    a(f"s_lshl_b32 s{sWR}, s{sWAVE}, 14")
    a(f"v_and_b32 v5, 3, v0")
    a(f"v_bfe_u32 v6, v0, 2, 2")
    a(f"v_lshlrev_b32 v5, 3, v5")
    a(f"v_lshl_add_u32 v5, v6, 5, v5")
    a(f"v_lshl_add_u32 v5, v{vG}, 8, v5")
    a(f"v_add_u32 v5, s{sWR}, v5")
    sJ=58
    a(f"s_lshl_b32 s{sT0}, s{sWAVE}, 10")
    a(f"v_lshlrev_b32 v6, 4, v0")
    a(f"v_add_u32 v9, s{sWR}, v6")
    a(f"v_add_u32 v6, s{sT0}, v6")
    for b in range(8): a(f"s_mov_b32 s{sJ+b}, {b*8192}")
    a(f"v_and_b32 v10, 7, v{vN}")
    a(f"v_mul_u32_u24 v10, 1056, v10")
    a(f"v_lshl_add_u32 v10, v{vG}, 4, v10")
    a(f"v_add_u32 v10, s{sWR}, v10")
    a(f"s_lshl_b32 s{sT0}, s{sISB}, 3")
    a(f"s_add_u32 s{sT0}, s{sT0}, 7")
    a(f"v_and_b32 v7, s{sT0}, v0")
    a(f"v_lshlrev_b32 v7, 2, v7")
    a(f"s_lshl_b32 s{sT0}, s{sISB}, 7")
    a(f"v_add_u32 v7, s{sT0}, v7")
    a(f"s_mov_b32 s{sSRD0}, s{sP0}")
    a(f"s_mov_b32 s{sSRD0+1}, s{sP0+1}")
    a(f"s_mov_b32 s{sSRD0+2}, 3670016")
    a(f"s_mov_b32 s{sSRD0+3}, 0x20000")
    a(f"s_lshl_b32 s{sT0}, s{sISB}, 16")
    a(f"s_add_u32 s{sT0}, s{sT0}, {O_OFF}")
    a(f"s_add_u32 s{sSRD1}, s{sWS}, s{sT0}")
    a(f"s_addc_u32 s{sSRD1+1}, s{sWS+1}, 0")
    a(f"s_mov_b32 s{sSRD1+2}, 65536")
    a(f"s_mov_b32 s{sSRD1+3}, 0x20000")
    if wolate:
        a(f"s_cmp_lg_u32 s{sWAVE}, 0")
        a("s_cbranch_scc1 L_h_w1")
        if trig: a("v_mov_b32 v11, 64")
        a.lab("L_h_poll1")
        a(f"global_load_dword v8, v{11 if trig else 7}, s[{sDBG}:{sDBG+1}] sc1")
        a("s_waitcnt vmcnt(0)")
        a("v_cmp_lt_u32 vcc, 0, v8")
        a("s_nop 1")
        a("s_cmp_lg_u64 vcc, 0")
        a("s_cbranch_scc1 L_h_w1")
        bound()
        a(f"s_sleep {hslow}")
        a("s_branch L_h_poll1")
        a.lab("L_h_w1")
        a("s_barrier")
    ts(5)
    vWT=64
    if worot:
        a(f"s_mul_i32 s{sT2}, s{sSLOT}, {worot}")
        for s_ in range(16):
            a(f"s_add_u32 s{sT1}, s{sT2}, {s_}")
            a(f"s_and_b32 s{sT1}, s{sT1}, 15")
            a(f"s_lshl_b32 s{sT0}, s{sT1}, 10")
            a(f"s_add_u32 m0, s{sWR}, s{sT0}")
            a(f"s_mul_i32 s{sT0}, s{sT1}, {32*896}")
            a(f"buffer_load_dwordx4 v4, s[{sSRD0}:{sSRD0+3}], s{sT0} offen {wopol} lds")
        a("s_waitcnt vmcnt(0)")
        for s_ in range(16):
            a(f"ds_read_b64_tr_b16 v[{vWT+4*s_}:{vWT+4*s_+1}], v5 offset:{s_*1024}")
            a(f"ds_read_b64_tr_b16 v[{vWT+4*s_+2}:{vWT+4*s_+3}], v5 offset:{s_*1024+128}")
    else:
        for s_ in range(16):
            a(f"s_add_u32 m0, s{sWR}, {s_*1024}")
            a(f"s_mov_b32 s{sT0}, {s_*32*896}")
            a(f"buffer_load_dwordx4 v4, s[{sSRD0}:{sSRD0+3}], s{sT0} offen {wopol} lds")
        for s_ in range(16):
            a(f"s_waitcnt vmcnt({15-s_})")
            a(f"ds_read_b64_tr_b16 v[{vWT+4*s_}:{vWT+4*s_+1}], v5 offset:{s_*1024}")
            a(f"ds_read_b64_tr_b16 v[{vWT+4*s_+2}:{vWT+4*s_+3}], v5 offset:{s_*1024+128}")
    a("s_waitcnt lgkmcnt(0)")
    ts(0)
    a(f"s_cmp_lg_u32 s{sWAVE}, 0")
    a("s_cbranch_scc1 L_h_wait")
    if not wolate:
        a.lab("L_h_poll1")
        a(f"global_load_dword v8, v7, s[{sDBG}:{sDBG+1}] sc1")
        a("s_waitcnt vmcnt(0)")
        a("v_cmp_lt_u32 vcc, 0, v8")
        a("s_nop 1")
        a("s_cmp_lg_u64 vcc, 0")
        a("s_cbranch_scc1 L_h_poll")
        bound()
        a(f"s_sleep {hslow}")
        a("s_branch L_h_poll1")
    a.lab("L_h_poll")
    a(f"global_load_dword v8, v7, s[{sDBG}:{sDBG+1}] sc1")
    a("s_waitcnt vmcnt(0)")
    a("v_cmp_le_u32 vcc, 8, v8")
    a("s_nop 1")
    a("s_cmp_eq_u64 vcc, -1")
    a("s_cbranch_scc1 L_h_wait")
    bound()
    if hsleep: a(f"s_sleep {hsleep}")
    a("s_branch L_h_poll")
    a.lab("L_h_wait")
    a("s_barrier")
    ts(1)
    vOF=128
    for b in range(8):
        a(f"buffer_load_dwordx4 v[{vOF+4*b}:{vOF+4*b+3}], v6, s[{sSRD1}:{sSRD1+3}], s{sJ+b} offen sc1")
    for b in range(8):
        a(f"s_waitcnt vmcnt({7-b})")
        a(f"ds_write_b128 v9, v[{vOF+4*b}:{vOF+4*b+3}] offset:{b*1056}")
    vFR=160
    a("s_waitcnt lgkmcnt(0)")
    for s_ in range(16):
        a(f"ds_read_b128 v[{vFR+4*s_}:{vFR+4*s_+3}], v10 offset:{s_*64}")
    vAC=12
    PART=131072
    a(f"s_lshl_b32 s{sT0}, s{sWAVE}, 9")
    a(f"s_add_u32 s{sT0}, s{sT0}, {PART}")
    a(f"v_lshlrev_b32 v11, 8, v{vG}")
    a(f"v_lshl_add_u32 v11, v{vN}, 2, v11")
    a(f"v_add_u32 v11, s{sT0}, v11")
    for s_ in range(16):
        a(f"s_waitcnt lgkmcnt({15-s_})")
        acc=vAC+4*(s_&1)
        cin="0" if s_<2 else f"v[{acc}:{acc+3}]"
        a(f"v_mfma_f32_16x16x32_bf16 v[{acc}:{acc+3}], v[{vFR+4*s_}:{vFR+4*s_+3}], v[{vWT+4*s_}:{vWT+4*s_+3}], {cin}")
    ts(2)
    a("s_nop 7")
    for r in range(4): a(f"v_add_f32 v{vAC+r}, v{vAC+r}, v{vAC+4+r}")
    a("s_mov_b32 exec_hi, 0")
    for r in range(4): a(f"ds_write_b32 v11, v{vAC+r} offset:{r*64}")
    a("s_mov_b64 exec, -1")
    a("v_lshrrev_b32 v20, 3, v0")
    a("v_and_b32 v21, 7, v0")
    a("v_lshlrev_b32 v22, 6, v20")
    a("v_lshl_add_u32 v22, v21, 3, v22")
    a(f"v_add_u32 v22, {PART}, v22")
    a(f"s_mul_i32 s{sT0}, s{sISB}, 896")
    a(f"s_lshl_b32 s{sT1}, s{sH}, 5")
    a(f"s_add_u32 s{sT0}, s{sT0}, s{sT1}")
    a(f"v_mul_u32_u24 v23, 1792, v20")
    a(f"v_lshl_add_u32 v23, v21, 2, v23")
    a(f"v_add_u32 v23, s{sT0}, v23")
    a(f"s_mov_b32 s{sSRD0}, s{sOUT}")
    a(f"s_mov_b32 s{sSRD0+1}, s{sOUT+1}")
    a(f"s_mov_b32 s{sSRD0+2}, 14336")
    a(f"s_mov_b32 s{sSRD0+3}, 0x20000")
    a("s_waitcnt lgkmcnt(0)")
    a("s_barrier")
    a(f"s_cmp_lg_u32 s{sWAVE}, 0")
    a("s_cbranch_scc1 L_end")
    ts(3)
    for w in range(8): a(f"ds_read_b64 v[{24+2*w}:{25+2*w}], v22 offset:{w*512}")
    a("s_waitcnt lgkmcnt(0)")
    for w in (1,3,5,7):
        a(f"v_add_f32 v{24+2*(w-1)}, v{24+2*(w-1)}, v{24+2*w}")
        a(f"v_add_f32 v{25+2*(w-1)}, v{25+2*(w-1)}, v{25+2*w}")
    for w in (2,6):
        a(f"v_add_f32 v{24+2*(w-2)}, v{24+2*(w-2)}, v{24+2*w}")
        a(f"v_add_f32 v{25+2*(w-2)}, v{25+2*(w-2)}, v{25+2*w}")
    a("v_add_f32 v24, v24, v32")
    a("v_add_f32 v25, v25, v33")
    a("v_cvt_pk_bf16_f32 v24, v24, v25")
    a(f"buffer_store_dword v24, v23, s[{sSRD0}:{sSRD0+3}], 0 offen")
    ts(4)
    ts_dump([0,1,2,3,4,5])
    a("s_endpgm")
    a.lab("L_h_idle")
    a(f"s_cmp_lg_u32 s2, 230")
    a("s_cbranch_scc1 L_end")
    a(f"s_cmp_lg_u32 s{sWAVE}, 0")
    a("s_cbranch_scc1 L_end")
    a(f"s_load_dword s{sTAG}, s[{sWS}:{sWS+1}], {E_OFF}")
    if probe==-2: a("s_memrealtime s[60:61]")
    a("v_cmp_gt_u32 vcc, 8, v0")
    a("v_lshlrev_b32 v4, 2, v0")
    a("v_add_u32 v5, 96, v4          ; 128 + (lane-8)*4")
    a("v_cndmask_b32 v4, v5, v4, vcc")
    a("v_cmp_gt_u32 vcc, 24, v0")
    a("v_mov_b32 v5, 0")
    a("s_nop 0")
    a("v_cndmask_b32 v4, v5, v4, vcc")
    a("s_waitcnt lgkmcnt(0)")
    a(f"s_add_u32 s{sTAG}, s{sTAG}, 0x9e3779b1")
    a.lab("L_e_poll")
    a(f"global_load_dword v8, v4, s[{sDBG}:{sDBG+1}] sc1")
    a("s_waitcnt vmcnt(0)")
    a("v_cmp_le_u32 vcc, 8, v8")
    a("s_nop 1")
    a("s_cmp_eq_u64 vcc, -1")
    a("s_cbranch_scc1 L_e_done")
    bound()
    a("v_cmp_lt_u32 vcc, 0, v8")
    a("s_nop 1")
    a("s_cmp_lg_u64 vcc, 0")
    a("s_cbranch_scc1 L_e_poll")
    a("s_sleep 32")
    a("s_branch L_e_poll")
    a.lab("L_e_done")
    a(f"v_mov_b32 v4, {E_OFF}")
    a(f"v_mov_b32 v5, s{sTAG}")
    a("s_mov_b64 exec, 1")
    a(f"global_store_dword v4, v5, s[{sWS}:{sWS+1}]")
    a.lab("L_end")
    a("s_endpgm")
    body=a.text()
    hdr=open("cdna_kernels/"+NAME+".s.ref").read().split("\n")
    head=[l for l in hdr if l.startswith(";") and "@launch" not in l and "Override launch" not in l and "grid=ceil" not in l]
    out="\n".join(head)+"\n"
    out+=f"; @launch grid=(256,1,1) block=(512,1,1) lds={LDS}\n"
    out+=f""".amdgcn_target "amdgcn-amd-amdhsa--gfx950"
.text
.globl {KN}
.p2align 8
.type {KN},@function
"""
    out+=body
    out+=f""".section .rodata,"a"
.p2align 6
.amdhsa_kernel {KN}
  .amdhsa_next_free_vgpr 256
  .amdhsa_next_free_sgpr 96
  .amdhsa_accum_offset 256
  .amdhsa_group_segment_fixed_size 0
  .amdhsa_kernarg_size 104
  .amdhsa_user_sgpr_count 2
  .amdhsa_user_sgpr_kernarg_segment_ptr 1
  .amdhsa_system_sgpr_workgroup_id_x 1
.end_amdhsa_kernel
"""
    return out, LDS

META=""".amdgpu_metadata
---
amdhsa.version: [1, 2]
amdhsa.kernels:
  - .name: {KN}
    .symbol: {KN}.kd
    .kernarg_segment_size: 104
    .kernarg_segment_align: 8
    .group_segment_fixed_size: 0
    .private_segment_fixed_size: 0
    .wavefront_size: 64
    .sgpr_count: 102
    .vgpr_count: 256
    .max_flat_workgroup_size: 512
    .args:
      - {{.name: kernargs, .size: 104, .offset: 0, .value_kind: by_value}}
...
.end_amdgpu_metadata
"""
if __name__=="__main__":
    import argparse
    ap=argparse.ArgumentParser()
    ap.add_argument("-o",default="cdna_kernels/"+NAME+".s")
    ap.add_argument("--diag",action="store_true")
    ap.add_argument("--meta",action="store_true")
    ap.add_argument("--D",type=int,default=40)
    ap.add_argument("--NS",type=int,default=17)
    ap.add_argument("--pol",default="nt")
    ap.add_argument("--wqpol",default="nt")
    ap.add_argument("--wopol",default="nt")
    ap.add_argument("--hsleep",type=int,default=2)
    ap.add_argument("--hslow",type=int,default=16)
    ap.add_argument("--qsleep",type=int,default=16)
    ap.add_argument("--spin",type=int,default=0)
    ap.add_argument("--wolate",type=int,default=1)
    ap.add_argument("--DB",type=int,default=0)
    ap.add_argument("--worot",type=int,default=0)
    ap.add_argument("--trig",type=int,default=480)
    args=ap.parse_args()
    s,lds=gen(D=args.D,NS=args.NS,diag=args.diag,pol=args.pol,wqpol=args.wqpol,wopol=args.wopol,hsleep=args.hsleep,hslow=args.hslow,
              qsleep=args.qsleep,spin_sleep=args.spin,wolate=bool(args.wolate),trig=args.trig,DB=args.DB,worot=args.worot)
    if args.meta: s+=META.format(KN=KN)
    open(args.o,"w").write(s)
    print("wrote",args.o,"lds",lds)
```

```python
import sys, struct
NAME="concat_heads__gqa_block_cached__mha_block_cached__decode"
KN=NAME+"_kernel"

class Asm:
    def __init__(s): s.L=[]; s.uid=0
    def __call__(s,x): s.L.append("  "+x)
    def lab(s,x): s.L.append(x+":")
    def c(s,x): s.L.append("  ; "+x)
    def new(s,p): s.uid+=1; return f"L_{p}_{s.uid}"
    def text(s): return "\n".join(s.L)+"\n"

def gen(D=40, NS=17, diag=False, pol="nt", spin_sleep=0, wqpol="nt", wopol="nt", hsleep=2, hslow=32, qsleep=16,
        wolate=True, probe=-1, trig=0, DB=0, worot=0, pst=(24,64,128,192), hpipe=0, hstag=5, hmid=0, hthr=40):
    a=Asm()
    RING=0; RINGB=NS*8192
    SBUF=RINGB
    MISC=SBUF+16384
    QPART=(NS-4)*8192
    FULL=0; DONE=16; CQ1=32; CQ2=36; CMX=40; CFIN=44
    QL=256; MX=1280; LS=1408
    LDS=MISC+2048
    assert LDS<=163840
    CEXP=struct.unpack("<I",struct.pack("<f",1.4426950408889634/16.0))[0]
    O_OFF=0
    E_OFF=0x30004
    QP_OFF=0x100000
    TS_OFF=0x20000000
    sWAVE=3; sX=4; sSLOT=5; sB=6; sGRP=7; sKA=8
    sPAIR=10; sH=11; sISB=12; sT0=13; sT1=14; sT2=15
    sP0=16
    sDBG=20
    sWS=22
    sOUT=24
    sTAG=26
    sSRD0=28; sSRD1=32
    sTS1=42
    sW1=54
    sSP=27
    sKG=64
    sWOA=36; sWOB=38
    sTSB=76
    def ts(slot):
        if not diag: return
        a(f"s_memrealtime s[{sTSB+2*slot}:{sTSB+2*slot+1}]")
        a("s_waitcnt lgkmcnt(0)")
    def ts_dump(slots):
        if not diag: return
        a(f"s_load_dwordx2 s[{sTS1}:{sTS1+1}], s[0:1], 96")
        a("s_waitcnt lgkmcnt(0)")
        a(f"s_add_u32 s{sTS1}, s{sTS1}, {TS_OFF}")
        a(f"s_addc_u32 s{sTS1+1}, s{sTS1+1}, 0")
        a(f"s_lshl_b32 s44, s2, 7")
        a(f"v_mov_b32 v250, s44")
        a(f"s_mov_b64 exec, 1")
        for slot in slots:
            a(f"v_mov_b32 v252, s{sTSB+2*slot}")
            a(f"v_mov_b32 v253, s{sTSB+2*slot+1}")
            a(f"global_store_dwordx2 v250, v[252:253], s[{sTS1}:{sTS1+1}] offset:{slot*8}")
            a("s_nop 1")
    def bound():
        a(f"s_add_u32 s{sSP}, s{sSP}, 1")
        a(f"s_cmp_gt_u32 s{sSP}, 0x400000")
        a("s_cbranch_scc1 L_end")
    def spin_ge(vaddr, off, target, vt, st=sT0):
        L=a.new("spin"); E=a.new("spun")
        a.lab(L)
        a(f"ds_read_b32 v{vt}, v{vaddr} offset:{off}")
        a("s_waitcnt lgkmcnt(0)")
        a(f"v_readfirstlane_b32 s{st}, v{vt}")
        a(f"s_cmp_ge_u32 s{st}, {target}")
        a(f"s_cbranch_scc1 {E}")
        bound()
        if spin_sleep: a(f"s_sleep {spin_sleep}")
        a(f"s_branch {L}")
        a.lab(E)
    def signal(vaddr, off, vone):
        a("s_waitcnt lgkmcnt(0)")
        a("s_mov_b64 exec, 1")
        a(f"ds_add_u32 v{vaddr}, v{vone} offset:{off}")
        a("s_mov_b64 exec, -1")
    def attn_decode():
        a(f"s_and_b32 s{sX}, s2, 7")
        a(f"s_lshr_b32 s{sSLOT}, s2, 3")
        a(f"s_and_b32 s{sB}, s{sSLOT}, 7")
        a(f"s_lshr_b32 s{sGRP}, s{sSLOT}, 3")
        a(f"s_cmp_lg_u32 s{sGRP}, 0")
        a(f"s_cselect_b32 s{sISB}, 1, 0")
        a(f"s_lshr_b32 s{sT1}, s{sGRP}, 1")
        a(f"s_lshl_b32 s{sT1}, s{sT1}, 3")
        a(f"s_add_u32 s{sH}, s{sX}, s{sT1}")
        a(f"s_add_u32 s{sT1}, s{sISB}, 3")
        a(f"s_lshl_b32 s{sPAIR}, s{sB}, s{sT1}")
        a(f"s_add_u32 s{sPAIR}, s{sPAIR}, s{sH}")
    def zero_flags(vz,va):
        a(f"v_mov_b32 v{vz}, 0")
        a(f"v_lshlrev_b32 v{va}, 2, v0")
        a(f"v_add_u32 v{va}, {MISC}, v{va}")
        a(f"ds_write_b32 v{va}, v{vz}")

    a.lab(KN)
    a(f"s_load_dwordx16 s[{sKG}:{sKG+15}], s[0:1], 0")
    a(f"s_load_dwordx8 s[{sKG+16}:{sKG+23}], s[0:1], 64")
    a(f"s_load_dwordx2 s[{sKG+24}:{sKG+25}], s[0:1], 96")
    a("s_cmp_ge_u32 s2, 256")
    a("s_cbranch_scc1 L_end")
    a("v_lshrrev_b32 v1, 6, v0")
    a("v_and_b32 v0, 63, v0")
    a(f"s_mov_b32 s{sSP}, 0")
    a(f"v_readfirstlane_b32 s{sWAVE}, v1")
    a(f"s_cmp_eq_u32 s{sWAVE}, 0")
    a("s_cbranch_scc1 L_w0")
    a.c("---------------- distributed q projection ----------------")
    a(f"s_sub_u32 s{sW1}, s{sWAVE}, 1")
    vN=2; vG=3; vS16=4; vXO=8; vWO=9; vX=10; vFL=14; vONE=15; vAO=16; vAC=24; vWq=40
    a(f"v_and_b32 v{vN}, 15, v0")
    a(f"v_lshrrev_b32 v{vG}, 4, v0")
    a(f"s_and_b32 s{sT0}, s2, 3")
    a(f"s_mul_i32 s{sT0}, s{sT0}, 112")
    a(f"s_lshl_b32 s{sT1}, s{sW1}, 4")
    a(f"s_add_u32 s{sT0}, s{sT0}, s{sT1}       ; row0")
    a(f"v_lshl_add_u32 v16, v{vG}, 2, s{sT0}    ; row0+4g")
    a(f"v_lshrrev_b32 v{vXO}, 2, v{vN}")
    a(f"v_mul_u32_u24 v{vXO}, 896, v{vXO}")
    a(f"v_lshl_add_u32 v{vXO}, v16, 1, v{vXO}")
    a(f"s_lshr_b32 s{sT1}, s2, 2")
    a(f"s_and_b32 s{sT1}, s{sT1}, 31")
    a(f"s_lshl_b32 s{sT1}, s{sT1}, 8")
    a(f"v_lshlrev_b32 v{vWO}, 13, v16")
    a(f"v_lshl_add_u32 v{vWO}, v{vN}, 4, v{vWO}")
    a(f"v_add_u32 v{vWO}, s{sT1}, v{vWO}")
    a(f"s_mov_b32 s56, 8192")
    a(f"s_mov_b32 s57, 16384")
    a(f"s_mov_b32 s58, 24576")
    a(f"v_mov_b32 v{vFL}, {MISC}")
    a(f"v_mov_b32 v{vONE}, 1")
    a("s_waitcnt lgkmcnt(0)")
    a("s_cmp_ge_u32 s2, 128")
    a(f"s_cselect_b32 s{sSRD1}, s{sKG+16}, s{sKG+6}       ; wq")
    a(f"s_cselect_b32 s{sSRD1+1}, s{sKG+17}, s{sKG+7}")
    a(f"s_cselect_b32 s{sSRD0}, s{sKG+10}, s{sKG+0}       ; x")
    a(f"s_cselect_b32 s{sSRD0+1}, s{sKG+11}, s{sKG+1}")
    a(f"s_mov_b32 s{sSRD1+2}, 3670016")
    a(f"s_mov_b32 s{sSRD1+3}, 0x20000")
    a(f"s_mov_b32 s{sSRD0+2}, 7168")
    a(f"s_mov_b32 s{sSRD0+3}, 0x20000")
    so=["0","s56","s57","s58"]
    for j in range(4):
        a(f"buffer_load_dwordx4 v[{vWq+4*j}:{vWq+4*j+3}], v{vWO}, s[{sSRD1}:{sSRD1+3}], {so[j]} offen {wqpol}")
    for u in range(2):
        a(f"buffer_load_dwordx2 v[{vX+2*u}:{vX+2*u+1}], v{vXO}, s[{sSRD0}:{sSRD0+3}], 0 offen offset:{u*3584}")
    a(f"s_load_dword s{sTAG}, s[{sKG+24}:{sKG+25}], {E_OFF}")
    a("s_barrier")
    a(f"s_mov_b64 s[{sDBG}:{sDBG+1}], s[{sKG+22}:{sKG+23}]")
    a(f"s_mov_b64 s[{sWS}:{sWS+1}], s[{sKG+24}:{sKG+25}]")
    a(f"s_mov_b64 s[{sOUT}:{sOUT+1}], s[{sKG+20}:{sKG+21}]")
    a(f"s_mov_b64 s[{sWOA}:{sWOA+1}], s[{sKG+8}:{sKG+9}]")
    a(f"s_mov_b64 s[{sWOB}:{sWOB+1}], s[{sKG+18}:{sKG+19}]")
    a(f"v_and_b32 v16, 1, v{vN}")
    a(f"v_cmp_eq_u32 vcc, 1, v16")
    a(f"v_mov_b32 v17, 0x0c0c0100")
    a(f"v_mov_b32 v18, 0x01000c0c")
    a(f"v_cndmask_b32 v17, v17, v18, vcc")
    a(f"v_mov_b32 v18, 0x0c0c0302")
    a(f"v_mov_b32 v19, 0x03020c0c")
    a(f"v_cndmask_b32 v18, v18, v19, vcc")
    a(f"v_bfe_u32 v16, v{vN}, 1, 1")
    a(f"v_mov_b32 v19, 0x0c0c0c0c")
    for t in range(2):
        a(f"v_cmp_eq_u32 vcc, {t}, v16")
        a("s_nop 1")
        a(f"v_cndmask_b32 v{vS16+t}, v19, v17, vcc")
        a(f"v_cndmask_b32 v{vS16+2+t}, v19, v18, vcc")
    a(f"s_lshl_b32 s{sT0}, s{sW1}, 12")
    a(f"s_add_u32 s{sT0}, s{sT0}, {QPART}")
    a(f"v_lshlrev_b32 v56, 9, v{vG}")
    a(f"v_lshl_add_u32 v56, v{vN}, 5, v56")
    a(f"v_add_u32 v56, s{sT0}, v56")
    a("s_waitcnt vmcnt(0)")
    for j in range(4):
        for u in range(2):
            ao=vAO+4*(j&1)+2*u
            for t in range(2):
                a(f"v_perm_b32 v{ao+t}, v{vX+2*u+(j>>1)}, v{vX+2*u+(j>>1)}, v{vS16+2*(j&1)+t}")
        a("s_nop 0")
        for u in range(2):
            ao=vAO+4*(j&1)+2*u
            for hf in range(2):
                acc=vAC+8*u+4*hf
                cin="0" if j==0 else f"v[{acc}:{acc+3}]"
                a(f"v_mfma_f32_16x16x16_bf16 v[{acc}:{acc+3}], v[{ao}:{ao+1}], v[{vWq+4*j+2*hf}:{vWq+4*j+2*hf+1}], {cin}")
    ts(8)
    a("s_nop 7")
    a("s_nop 0")
    for u in range(2):
        for hf in range(2):
            acc=vAC+8*u+4*hf
            a(f"ds_write_b128 v56, v[{acc}:{acc+3}] offset:{u*2048+hf*16}")
    signal(vFL,CQ1,vONE)
    a(f"s_cmp_gt_u32 s{sWAVE}, 4")
    a("s_cbranch_scc0 L_qred")
    a("s_cmp_ge_u32 s2, 192")
    a("s_cbranch_scc1 L_hout")
    a("s_endpgm")
    a.lab("L_qred")
    vT=24
    a("v_lshrrev_b32 v16, 5, v0")
    a("v_and_b32 v17, 31, v0")
    a(f"s_lshl_b32 s{sT0}, s{sW1}, 1")
    a(f"v_add_u32 v16, s{sT0}, v16           ; batch")
    a(f"v_lshlrev_b32 v18, 9, v16")
    a(f"v_lshl_add_u32 v18, v17, 4, v18")
    a(f"v_add_u32 v18, {QPART}, v18")
    a(f"s_lshl_b32 s{sT0}, s2, 13")
    a(f"s_add_u32 s{sT0}, s{sT0}, {QP_OFF}")
    a(f"v_lshlrev_b32 v19, 10, v16")
    a(f"v_lshl_add_u32 v19, v17, 4, v19")
    a(f"v_add_u32 v19, s{sT0}, v19")
    spin_ge(vFL,CQ1,7,vT)
    for w in range(7):
        a(f"ds_read_b128 v[{40+4*w}:{43+4*w}], v18 offset:{w*4096}")
    a(f"s_add_u32 s{sTAG}, s{sTAG}, 0x9e3779b1")
    a(f"s_lshl_b32 s{sT0}, s{sW1}, 2")
    a(f"s_add_u32 s{sT0}, s{sT0}, {MISC+DONE}")
    a(f"v_mov_b32 v20, s{sT0}")
    a("s_waitcnt lgkmcnt(0)")
    a(f"ds_write_b32 v20, v{vONE}")
    for k in range(4):
        a(f"v_add_f32 v{40+k}, v{40+k}, v{44+k}")
        a(f"v_add_f32 v{48+k}, v{48+k}, v{52+k}")
        a(f"v_add_f32 v{56+k}, v{56+k}, v{60+k}")
    for k in range(4):
        a(f"v_add_f32 v{40+k}, v{40+k}, v{48+k}")
        a(f"v_add_f32 v{56+k}, v{56+k}, v{64+k}")
    for k in range(4):
        a(f"v_add_f32 v{68+2*k}, v{40+k}, v{56+k}")
        a(f"v_mov_b32 v{69+2*k}, s{sTAG}")
    a(f"global_store_dwordx4 v19, v[68:71], s[{sWS}:{sWS+1}] sc1")
    a(f"global_store_dwordx4 v19, v[72:75], s[{sWS}:{sWS+1}] offset:512 sc1")
    ts(9)
    a("s_cmp_ge_u32 s2, 192")
    a("s_cbranch_scc1 L_hout")
    a.c("---------------- consumers ----------------")
    attn_decode()
    vSEL=4
    a(f"v_and_b32 v16, 7, v{vN}")
    a(f"v_lshrrev_b32 v17, 1, v16      ; te")
    a(f"v_and_b32 v16, 1, v16          ; par")
    a(f"v_cmp_eq_u32 vcc, 1, v16")
    a(f"v_mov_b32 v18, 0x0c0c0100")
    a(f"v_mov_b32 v19, 0x01000c0c")
    a(f"v_cndmask_b32 v18, v18, v19, vcc")
    a(f"v_mov_b32 v19, 0x0c0c0302")
    a(f"v_mov_b32 v20, 0x03020c0c")
    a(f"v_cndmask_b32 v19, v19, v20, vcc")
    a(f"v_mov_b32 v20, 0x0c0c0c0c")
    for t in range(4):
        a(f"v_cmp_eq_u32 vcc, {t}, v17")
        a("s_nop 1")
        a(f"v_cndmask_b32 v{vSEL+t}, v20, v18, vcc")
        a(f"v_cndmask_b32 v{vSEL+4+t}, v20, v19, vcc")
    a(f"s_cmp_eq_u32 s{sISB}, 1")
    a("s_cbranch_scc0 L_qg")
    a(f"s_cmp_ge_u32 s{sW1}, 2")
    a("s_cbranch_scc1 L_qg_done")
    a.lab("L_qg")
    a(f"s_sub_u32 s{sT1}, 2, s{sISB}")
    a(f"s_lshl_b32 s{sT0}, s{sH}, s{sT1}")
    a(f"s_add_u32 s{sT0}, s{sT0}, s{sW1}      ; c")
    a(f"s_lshl_b32 s{sT1}, s{sISB}, 5")
    a(f"s_add_u32 s{sT0}, s{sT0}, s{sT1}      ; m*32+c")
    a(f"s_lshl_b32 s{sT0}, s{sT0}, 15         ; *4*8192")
    a(f"s_lshl_b32 s{sT1}, s{sB}, 10")
    a(f"s_add_u32 s{sT0}, s{sT0}, s{sT1}")
    a(f"s_add_u32 s{sT0}, s{sT0}, {QP_OFF}")
    a(f"v_lshlrev_b32 v16, 4, v0")
    a(f"v_add_u32 v16, s{sT0}, v16")
    for kq in range(1,4): a(f"v_add_u32 v{16+kq}, {kq*8192}, v16")
    PA=160; PB=176
    def issue(base):
        for kq in range(4):
            a(f"global_load_dwordx4 v[{base+4*kq}:{base+4*kq+3}], v{16+kq}, s[{sWS}:{sWS+1}] sc1")
    def check(base,lab):
        a(f"v_xor_b32 v20, s{sTAG}, v{base+1}")
        for r in (3,5,7,9,11,13,15):
            a(f"v_xor_b32 v21, s{sTAG}, v{base+r}")
            a(f"v_or_b32 v20, v20, v21")
        a("v_cmp_eq_u32 vcc, 0, v20")
        a("s_nop 1")
        a("s_cmp_eq_u64 vcc, -1")
        a(f"s_cbranch_scc1 {lab}")
    def qsum(base):
        a(f"v_add_f32 v32, v{base}, v{base+4}")
        a(f"v_add_f32 v34, v{base+2}, v{base+6}")
        a(f"v_add_f32 v40, v{base+8}, v{base+12}")
        a(f"v_add_f32 v42, v{base+10}, v{base+14}")
    issue(PA)
    if qsleep: a(f"s_sleep {qsleep}")
    a.lab("L_qg_poll")
    issue(PB)
    a("s_waitcnt vmcnt(4)")
    check(PA,"L_qg_gotA")
    issue(PA)
    a("s_waitcnt vmcnt(4)")
    check(PB,"L_qg_gotB")
    bound()
    a("s_branch L_qg_poll")
    a.lab("L_qg_gotB")
    qsum(PB)
    a("s_branch L_qg_got")
    a.lab("L_qg_gotA")
    qsum(PA)
    a.lab("L_qg_got")
    a("v_add_f32 v32, v32, v40")
    a("v_add_f32 v34, v34, v42")
    a("v_cvt_pk_bf16_f32 v32, v32, v34")
    a("v_and_b32 v20, 31, v0")
    a("v_lshrrev_b32 v21, 5, v0")
    a("v_lshlrev_b32 v20, 3, v20")
    a("v_lshl_add_u32 v20, v21, 2, v20")
    a(f"s_lshl_b32 s{sT0}, s{sW1}, 8")
    a(f"s_add_u32 s{sT0}, s{sT0}, {MISC+QL}")
    a(f"v_add_u32 v20, s{sT0}, v20")
    a("ds_write_b32 v20, v32")
    a.lab("L_qg_done")
    ts(7)
    signal(vFL,CQ2,vONE)
    vKA=64; vKF=72; vS=104
    vMAX=108; vSA=109; vDN=110; vDV=111; vQH=112
    a(f"v_lshrrev_b32 v{vQH}, 3, v{vN}       ; qh")
    for s in range(4):
        a(f"v_and_b32 v26, 12, v{vN}")
        a(f"v_xor_b32 v26, {4*s}, v26")
        a(f"v_and_b32 v27, 3, v{vN}")
        a(f"v_xor_b32 v27, v27, v{vG}")
        a(f"v_add_u32 v26, v26, v27")
        a(f"v_lshlrev_b32 v26, 4, v26")
        a(f"v_lshl_add_u32 v{vKA+s}, v{vN}, 9, v26")
    a(f"s_lshl_b32 s{sT0}, s{sW1}, 12")
    a(f"s_add_u32 s{sT0}, s{sT0}, {SBUF}")
    a(f"v_lshlrev_b32 v{vSA}, 5, v{vQH}")
    a(f"v_lshl_add_u32 v{vSA}, v{vG}, 3, v{vSA}")
    a(f"v_add_u32 v{vSA}, s{sT0}, v{vSA}")
    a(f"v_mov_b32 v{vMAX}, 0xff800000")
    a(f"s_lshl_b32 s{sT0}, s{sW1}, 2")
    a(f"s_add_u32 s{sT0}, s{sT0}, {MISC+DONE}")
    a(f"v_mov_b32 v{vDN}, s{sT0}")
    sTT=48; sFU=49; sSLO=50; sJ1=51; sMASK=52; sC=55
    a(f"s_mov_b32 s{sTT}, s{sW1}")
    a(f"s_mov_b32 s{sFU}, 0")
    a(f"s_lshl_b32 s{sSLO}, s{sW1}, 13")
    a(f"s_mov_b32 s{sJ1}, 2")
    a(f"s_mov_b32 s{sMASK}, 0x01010101")
    a(f"s_mov_b32 s{sMASK+1}, 0x01010101")
    vQF=32
    a(f"s_cmp_eq_u32 s{sISB}, 1")
    a(f"s_cselect_b32 s{sT0}, 0, 512")
    a(f"v_mul_lo_u32 v26, v{vQH}, s{sT0}")
    a(f"v_lshl_add_u32 v26, v{vG}, 4, v26")
    a(f"v_add_u32 v26, {MISC+QL}, v26")
    spin_ge(vFL,CQ2,4,vT)
    for s in range(8):
        a(f"ds_read_b128 v[{vQF+4*s}:{vQF+4*s+3}], v26 offset:{s*64}")
    a("s_waitcnt lgkmcnt(0)")
    ts(3)
    def wait_full(tag):
        Lg=f"L_{tag}_go"; Ls=f"L_{tag}_spin"
        a(f"s_cmp_gt_i32 s{sFU}, s{sTT}")
        a(f"s_cbranch_scc1 {Lg}")
        a.lab(Ls)
        a(f"ds_read_b32 v{vT}, v{vFL} offset:{FULL}")
        a("s_waitcnt lgkmcnt(0)")
        a(f"v_readfirstlane_b32 s{sFU}, v{vT}")
        a(f"s_cmp_gt_i32 s{sFU}, s{sTT}")
        a(f"s_cbranch_scc1 {Lg}")
        bound()
        if spin_sleep: a(f"s_sleep {spin_sleep}")
        a(f"s_branch {Ls}")
        a.lab(Lg)
    def advance():
        a(f"s_add_u32 s{sTT}, s{sTT}, 4")
        a(f"s_add_u32 s{sSLO}, s{sSLO}, {4*8192}")
        a(f"s_cmp_ge_u32 s{sSLO}, {RINGB}")
        a(f"s_cselect_b32 s{sT0}, {RINGB}, 0")
        a(f"s_sub_u32 s{sSLO}, s{sSLO}, s{sT0}")
        a(f"s_add_u32 s{sJ1}, s{sJ1}, 1")
    a.lab("L_K")
    for s in range(4): a(f"v_add_u32 v{vKA+4+s}, s{sSLO}, v{vKA+s}")
    a(f"v_mov_b32 v{vDV}, s{sJ1}")
    wait_full("K")
    for s in range(8):
        a(f"ds_read_b128 v[{vKF+4*s}:{vKF+4*s+3}], v{vKA+4+(s&3)} offset:{RING+(s>>2)*256}")
    for s in range(8):
        a(f"s_waitcnt lgkmcnt({7-s})")
        if s==7: a(f"ds_write_b32 v{vDN}, v{vDV}")
        cin="0" if s==0 else f"v[{vS}:{vS+3}]"
        a(f"v_mfma_f32_16x16x32_bf16 v[{vS}:{vS+3}], v[{vKF+4*s}:{vKF+4*s+3}], v[{vQF+4*s}:{vQF+4*s+3}], {cin}")
    advance()
    a("s_nop 3")
    a(f"v_max3_f32 v{vMAX}, v{vMAX}, v{vS}, v{vS+1}")
    a(f"v_max3_f32 v{vMAX}, v{vMAX}, v{vS+2}, v{vS+3}")
    a(f"v_cvt_pk_bf16_f32 v{vS}, v{vS}, v{vS+1}")
    a(f"v_cvt_pk_bf16_f32 v{vS+1}, v{vS+2}, v{vS+3}")
    a(f"s_mov_b64 exec, s[{sMASK}:{sMASK+1}]")
    a(f"ds_write_b64 v{vSA}, v[{vS}:{vS+1}]")
    a("s_mov_b64 exec, -1")
    a(f"v_add_u32 v{vSA}, 64, v{vSA}")
    a(f"s_cmp_lt_u32 s{sTT}, 256")
    a("s_cbranch_scc1 L_K")
    ts(4)
    a(f"s_lshl_b32 s{sT0}, s{sW1}, 4")
    a(f"s_add_u32 s{sT0}, s{sT0}, {MISC+MX}")
    a(f"v_lshlrev_b32 v26, 6, v{vQH}")
    a(f"v_lshl_add_u32 v27, v{vG}, 2, v26")
    a(f"v_add_u32 v27, s{sT0}, v27")
    a(f"s_mov_b64 exec, s[{sMASK}:{sMASK+1}]")
    a(f"ds_write_b32 v27, v{vMAX}")
    a("s_mov_b64 exec, -1")
    signal(vFL,CMX,vONE)
    spin_ge(vFL,CMX,4,vT)
    a(f"v_add_u32 v26, {MISC+MX}, v26")
    for k in range(4): a(f"ds_read_b128 v[{72+4*k}:{75+4*k}], v26 offset:{k*16}")
    a(f"v_subrev_u32 v{vSA}, {64*64}, v{vSA}")
    a("s_waitcnt lgkmcnt(0)")
    a("v_max3_f32 v72, v72, v73, v74")
    for k in range(75,87,2): a(f"v_max3_f32 v72, v72, v{k}, v{k+1}")
    a("v_max_f32 v72, v72, v87")
    vNM=113; vL=114; vVA=115; vVC=116; vW=118
    a(f"s_mov_b32 s{sC}, {CEXP:#x}")
    a(f"v_mul_f32 v{vNM}, s{sC}, v72")
    a(f"v_sub_f32 v{vNM}, 0, v{vNM}")
    a(f"v_mov_b32 v{vL}, 0")
    a(f"v_lshlrev_b32 v{vVA}, 11, v{vG}")
    a(f"v_lshl_add_u32 v{vVA}, v{vN}, 4, v{vVA}")
    vO=120
    for k in range(8): a(f"v_mov_b32 v{vO+k}, 0")
    vVF=72; vP=104; vAP=128
    sTR=56; vTRA=117
    if trig:
        a(f"s_cmp_eq_u32 s{sW1}, 0")
        a(f"s_cselect_b32 s{sTR}, {trig}, 0")
        a(f"v_mov_b32 v{vTRA}, 64")
    a.lab("L_V")
    a(f"ds_read_b64 v[{vW}:{vW+1}], v{vSA}")
    a(f"v_add_u32 v{vVC}, s{sSLO}, v{vVA}")
    a(f"v_add_u32 v{vSA}, 64, v{vSA}")
    a(f"v_mov_b32 v{vDV}, s{sJ1}")
    a("s_waitcnt lgkmcnt(0)")
    a(f"v_lshlrev_b32 v{vP}, 16, v{vW}")
    a(f"v_and_b32 v{vP+1}, 0xffff0000, v{vW}")
    a(f"v_lshlrev_b32 v{vP+2}, 16, v{vW+1}")
    a(f"v_and_b32 v{vP+3}, 0xffff0000, v{vW+1}")
    for r in range(4): a(f"v_fma_f32 v{vP+r}, v{vP+r}, s{sC}, v{vNM}")
    for r in range(4): a(f"v_exp_f32 v{vP+r}, v{vP+r}")
    a("s_nop 0")
    a(f"v_cvt_pk_bf16_f32 v{vW}, v{vP}, v{vP+1}")
    a(f"v_cvt_pk_bf16_f32 v{vW+1}, v{vP+2}, v{vP+3}")
    a(f"v_add_f32 v{vP}, v{vP}, v{vP+1}")
    a(f"v_add_f32 v{vP+2}, v{vP+2}, v{vP+3}")
    a(f"v_add_f32 v{vL}, v{vL}, v{vP}")
    a(f"v_add_f32 v{vL}, v{vL}, v{vP+2}")
    for r in range(4):
        for t in range(4):
            a(f"v_perm_b32 v{vAP+4*r+t}, v{vW+(r>>1)}, v{vW+(r>>1)}, v{vSEL+4*(r&1)+t}")
    wait_full("V")
    for r in range(4):
        for h in range(2):
            b=vVF+4*(2*r+h)
            a(f"ds_read_b128 v[{b}:{b+3}], v{vVC} offset:{RING+r*512+h*256}")
    k=0
    for r in range(4):
        for h in range(2):
            b=vVF+4*(2*r+h)
            a(f"s_waitcnt lgkmcnt({7-k})")
            if k==7: a(f"ds_write_b32 v{vDN}, v{vDV}")
            a(f"v_mfma_f32_16x16x32_bf16 v[{vO+4*h}:{vO+4*h+3}], v[{vAP+4*r}:{vAP+4*r+3}], v[{b}:{b+3}], v[{vO+4*h}:{vO+4*h+3}]")
            k+=1
    advance()
    if trig:
        a(f"s_cmp_lg_u32 s{sTR}, s{sTT}")
        a("s_cbranch_scc1 L_notrig")
        a("s_mov_b64 exec, 1")
        a(f"global_atomic_add v{vTRA}, v{vONE}, s[{sDBG}:{sDBG+1}] sc1")
        a("s_mov_b64 exec, -1")
        a.lab("L_notrig")
    a(f"s_cmp_lt_u32 s{sTT}, 512")
    a("s_cbranch_scc1 L_V")
    ts(5)
    a(f"s_lshl_b32 s{sT0}, s{sW1}, 12")
    a(f"s_add_u32 s{sT0}, s{sT0}, {SBUF}")
    a(f"v_lshrrev_b32 v26, 1, v{vG}")
    a(f"v_lshlrev_b32 v26, 10, v26")
    a(f"v_and_b32 v27, 1, v{vG}")
    a(f"v_lshl_add_u32 v26, v27, 4, v26")
    a(f"v_lshl_add_u32 v26, v{vN}, 5, v26")
    a(f"v_add_u32 v26, s{sT0}, v26")
    a(f"s_lshl_b32 s{sT0}, s{sW1}, 4")
    a(f"s_add_u32 s{sT0}, s{sT0}, {MISC+LS}")
    a(f"v_lshlrev_b32 v27, 6, v{vQH}")
    a(f"v_lshl_add_u32 v27, v{vG}, 2, v27")
    a(f"v_add_u32 v27, s{sT0}, v27")
    a("s_nop 1")
    a(f"ds_write_b128 v26, v[{vO}:{vO+3}]")
    a(f"ds_write_b128 v26, v[{vO+4}:{vO+7}] offset:512")
    a(f"s_mov_b64 exec, s[{sMASK}:{sMASK+1}]")
    a(f"ds_write_b32 v27, v{vL}")
    a("s_mov_b64 exec, -1")
    a("s_waitcnt lgkmcnt(0)")
    a("s_mov_b64 exec, 1")
    a(f"ds_add_rtn_u32 v{vT}, v{vFL}, v{vONE} offset:{CFIN}")
    a("s_mov_b64 exec, -1")
    a("v_lshrrev_b32 v25, 5, v0")
    a("v_and_b32 v28, 31, v0")
    a("v_lshlrev_b32 v26, 10, v25")
    a("v_lshl_add_u32 v26, v28, 5, v26")
    a(f"v_add_u32 v26, {SBUF}, v26")
    a("v_lshlrev_b32 v27, 6, v25")
    a(f"v_add_u32 v27, {MISC+LS}, v27")
    a(f"s_lshl_b32 s{sT0}, s{sISB}, 16")
    a(f"s_lshl_b32 s{sT1}, s{sB}, 13")
    a(f"s_add_u32 s{sT0}, s{sT0}, s{sT1}")
    a(f"s_sub_u32 s{sT1}, 10, s{sISB}")
    a(f"s_lshl_b32 s{sT1}, s{sH}, s{sT1}")
    a(f"s_add_u32 s{sT0}, s{sT0}, s{sT1}")
    a(f"s_add_u32 s{sT0}, s{sT0}, {O_OFF}")
    a(f"v_lshlrev_b32 v29, 4, v0")
    a(f"v_add_u32 v29, s{sT0}, v29")
    a("s_waitcnt lgkmcnt(0)")
    a(f"v_readfirstlane_b32 s{sT0}, v{vT}")
    a(f"s_cmp_eq_u32 s{sT0}, 3")
    a("s_cbranch_scc0 L_end")
    for w in range(4):
        a(f"ds_read_b128 v[{32+8*w}:{35+8*w}], v26 offset:{w*4096}")
        a(f"ds_read_b128 v[{36+8*w}:{39+8*w}], v26 offset:{w*4096+16}")
    for k in range(4): a(f"ds_read_b128 v[{64+4*k}:{67+4*k}], v27 offset:{k*16}")
    a(f"s_lshl_b32 s{sT0}, s{sISB}, 7")
    a(f"s_lshl_b32 s{sT1}, s{sH}, 2")
    a(f"s_add_u32 s{sT0}, s{sT0}, s{sT1}")
    a(f"v_mov_b32 v30, s{sT0}")
    a("s_waitcnt lgkmcnt(0)")
    for k in range(8): a(f"v_add_f32 v{64+k}, v{64+k}, v{72+k}")
    for k in range(4): a(f"v_add_f32 v{64+k}, v{64+k}, v{68+k}")
    a("v_add_f32 v64, v64, v65")
    a("v_add_f32 v66, v66, v67")
    a("v_add_f32 v64, v64, v66")
    a("v_rcp_f32 v64, v64")
    for k in range(8):
        a(f"v_add_f32 v{32+k}, v{32+k}, v{40+k}")
        a(f"v_add_f32 v{48+k}, v{48+k}, v{56+k}")
    for k in range(8): a(f"v_add_f32 v{32+k}, v{32+k}, v{48+k}")
    for k in range(8): a(f"v_mul_f32 v{32+k}, v{32+k}, v64")
    for k in range(4): a(f"v_cvt_pk_bf16_f32 v{32+k}, v{32+2*k}, v{33+2*k}")
    a(f"s_cmp_eq_u32 s{sISB}, 1")
    a(f"s_cselect_b32 exec_hi, 0, -1")
    a(f"global_store_dwordx4 v29, v[32:35], s[{sWS}:{sWS+1}] sc1")
    a("s_waitcnt vmcnt(0)")
    a("s_mov_b64 exec, 1")
    a(f"global_atomic_add v30, v{vONE}, s[{sDBG}:{sDBG+1}] sc1")
    ts(6)
    ts_dump([3,4,5,6,7,8,9])
    a("s_endpgm")
    a.lab("L_w0")
    a("s_cmp_ge_u32 s2, 192")
    a("s_cbranch_scc1 L_h0")
    a.c("---------------- loader wave ----------------")
    a("s_setprio 3")
    attn_decode()
    vZ=2; vA=3; vFA=4; vFV=5; vKO=8; vVO=16; vD=20
    zero_flags(vZ,vA)
    a(f"v_mov_b32 v{vFA}, {MISC}")
    a("v_lshrrev_b32 v6, 5, v0      ; hi")
    a("v_and_b32 v7, 31, v0        ; lo")
    for i in range(8):
        a(f"v_add_u32 v{vKO+i}, {2*i}, v6")
        a(f"v_xor_b32 v{vKO+i}, v{vKO+i}, v7")
        a(f"v_lshlrev_b32 v{vKO+i}, 4, v{vKO+i}")
        a(f"v_lshl_add_u32 v{vKO+i}, v6, 9, v{vKO+i}")
        if i>=4: a(f"v_add_u32 v{vKO+i}, 4096, v{vKO+i}")
    a(f"v_lshlrev_b32 v{vVO}, 4, v0")
    a(f"v_add_u32 v{vVO+1}, 4096, v{vVO}")
    a(f"s_lshl_b32 s{sT0}, s{sPAIR}, 21")
    a("s_waitcnt lgkmcnt(0)")
    a(f"s_cmp_ge_u32 s2, 64")
    a(f"s_cselect_b32 s{sP0}, s{sKG+12}, s{sKG+2}         ; K")
    a(f"s_cselect_b32 s{sP0+1}, s{sKG+13}, s{sKG+3}")
    a(f"s_cselect_b32 s{sP0+2}, s{sKG+14}, s{sKG+4}       ; V")
    a(f"s_cselect_b32 s{sP0+3}, s{sKG+15}, s{sKG+5}")
    a("s_barrier")
    a(f"s_add_u32 s{sSRD0}, s{sP0}, s{sT0}")
    a(f"s_addc_u32 s{sSRD0+1}, s{sP0+1}, 0")
    a(f"s_mov_b32 s{sSRD0+2}, 0x200000")
    a(f"s_mov_b32 s{sSRD0+3}, 0x20000")
    a(f"s_add_u32 s{sSRD1}, s{sP0+2}, s{sT0}")
    a(f"s_addc_u32 s{sSRD1+1}, s{sP0+3}, 0")
    a(f"s_mov_b32 s{sSRD1+2}, 0x200000")
    a(f"s_mov_b32 s{sSRD1+3}, 0x20000")
    sT=48; sAL=49; sSL=50; sOFF=51; sPUB=52
    a(f"s_mov_b32 s{sT}, 0")
    a(f"s_mov_b32 s{sAL}, {NS-4}")
    a(f"s_mov_b32 s{sSL}, {RING}")
    if DB and DB!=D:
        a(f"s_cmp_eq_u32 s{sISB}, 1")
        a(f"s_cselect_b32 s{sPUB}, {1-(DB+7)//8}, {1-(D+7)//8}")
    else:
        a(f"s_mov_b32 s{sPUB}, {1-(D+7)//8}")
    ts(0)
    for ph,(srd,vo,tend) in enumerate(((sSRD0,[vKO+i for i in range(8)],256),(sSRD1,[vVO]*4+[vVO+1]*4,512))):
        LT=f"L_ld_tile{ph}"; LG=f"L_ld_go{ph}"; LR=f"L_ld_ref{ph}"
        a(f"s_mov_b32 s{sOFF}, 0")
        a.lab(LT)
        if diag:
            for k,(tt,rg) in enumerate(((pst[0],56),(pst[1],58),(pst[2],60),(pst[3],62))):
                if (tt<256)!=(ph==0): continue
                a(f"s_cmp_lg_u32 s{sT}, {tt}")
                a(f"s_cbranch_scc1 L_pst{k}")
                a(f"s_memrealtime s[{rg}:{rg+1}]")
                a("s_waitcnt lgkmcnt(0)")
                a.lab(f"L_pst{k}")
        a(f"s_cmp_lt_u32 s{sT}, s{sAL}")
        a(f"s_cbranch_scc1 {LG}")
        a.lab(LR)
        a(f"ds_read_b128 v[{vD}:{vD+3}], v{vFA} offset:{DONE}")
        a("s_waitcnt lgkmcnt(0)")
        a(f"v_min_u32 v{vD}, v{vD}, v{vD+1}")
        a(f"v_min3_u32 v{vD}, v{vD}, v{vD+2}, v{vD+3}")
        a("s_nop 0")
        a(f"v_readfirstlane_b32 s{sAL}, v{vD}")
        a(f"s_lshl_b32 s{sAL}, s{sAL}, 2")
        a(f"s_add_u32 s{sAL}, s{sAL}, {NS-4}")
        a(f"s_cmp_lt_u32 s{sT}, s{sAL}")
        a(f"s_cbranch_scc1 {LG}")
        bound()
        a("s_sleep 1")
        a(f"s_branch {LR}")
        a.lab(LG)
        def lwait(tag):
            a(f"s_waitcnt vmcnt({D-4})")
            if DB and DB!=D:
                assert DB<D
                a(f"s_cmp_eq_u32 s{sISB}, 0")
                a(f"s_cbranch_scc1 L_lw{ph}{tag}")
                a(f"s_waitcnt vmcnt({DB-4})")
                a.lab(f"L_lw{ph}{tag}")
        a(f"s_mov_b32 m0, s{sSL}")
        lwait("a")
        for i in range(4):
            a(f"buffer_load_dwordx4 v{vo[i]}, s[{srd}:{srd+3}], s{sOFF} offen offset:{i*1024} {pol} lds")
        a(f"s_add_u32 m0, s{sSL}, 4096")
        a(f"v_mov_b32 v{vFV}, s{sPUB}")
        lwait("b")
        a(f"ds_write_b32 v{vFA}, v{vFV} offset:{FULL}")
        for i in range(4,8):
            a(f"buffer_load_dwordx4 v{vo[i]}, s[{srd}:{srd+3}], s{sOFF} offen offset:{(i-4)*1024} {pol} lds")
        a(f"s_add_u32 s{sOFF}, s{sOFF}, 8192")
        a(f"s_add_u32 s{sSL}, s{sSL}, 8192")
        a(f"s_cmp_eq_u32 s{sSL}, {RING+RINGB}")
        a(f"s_cselect_b32 s{sSL}, {RING}, s{sSL}")
        a(f"s_add_u32 s{sPUB}, s{sPUB}, 1")
        a(f"s_add_u32 s{sT}, s{sT}, 1")
        a(f"s_cmp_lt_u32 s{sT}, {tend}")
        a(f"s_cbranch_scc1 {LT}")
        if ph==0: ts(1)
    for k in range((D+7)//8*8-8,-1,-8):
        a(f"v_mov_b32 v{vFV}, {512-k//8}")
        a(f"s_waitcnt vmcnt({k})")
        a(f"ds_write_b32 v{vFA}, v{vFV} offset:{FULL}")
    ts(2)
    ts_dump([0,1,2])
    if diag:
        for k,rg in enumerate((56,58,60,62)):
            a(f"v_mov_b32 v252, s{rg}")
            a(f"v_mov_b32 v253, s{rg+1}")
            a(f"global_store_dwordx2 v250, v[252:253], s[{sTS1}:{sTS1+1}] offset:{(10+k)*8}")
            a("s_nop 1")
    a("s_endpgm")
    a.lab("L_h0")
    a.c("helper wave 0: flag init, pointers")
    zero_flags(2,3)
    a("s_waitcnt lgkmcnt(0)")
    a(f"s_mov_b64 s[{sDBG}:{sDBG+1}], s[{sKG+22}:{sKG+23}]")
    a(f"s_mov_b64 s[{sWS}:{sWS+1}], s[{sKG+24}:{sKG+25}]")
    a(f"s_mov_b64 s[{sOUT}:{sOUT+1}], s[{sKG+20}:{sKG+21}]")
    a(f"s_mov_b64 s[{sWOA}:{sWOA+1}], s[{sKG+8}:{sKG+9}]")
    a(f"s_mov_b64 s[{sWOB}:{sWOB+1}], s[{sKG+18}:{sKG+19}]")
    a("s_barrier")
    a.lab("L_hout")
    a.c("---------------- helpers: out projection ----------------")
    sHJ=54
    vN=2; vG=3
    a(f"s_sub_u32 s{sHJ}, s2, 192")
    a(f"s_and_b32 s{sX}, s{sHJ}, 7")
    a(f"s_lshr_b32 s{sT1}, s{sHJ}, 3")
    a(f"s_and_b32 s{sSLOT}, s{sT1}, 3     ; sub")
    a(f"s_lshr_b32 s{sT1}, s{sHJ}, 5      ; hi")
    a(f"s_lshl_b32 s{sT1}, s{sT1}, 3")
    a(f"s_add_u32 s{sGRP}, s{sT1}, s{sX}   ; gamma")
    a(f"s_cmp_ge_u32 s{sGRP}, 14")
    a("s_cbranch_scc1 L_h_idle")
    a(f"s_cmp_ge_u32 s{sGRP}, 7")
    a(f"s_cselect_b32 s{sISB}, 1, 0")
    a(f"s_cselect_b32 s{sT1}, 7, 0")
    a(f"s_cselect_b32 s{sP0}, s{sWOB}, s{sWOA}          ; wo")
    a(f"s_cselect_b32 s{sP0+1}, s{sWOB+1}, s{sWOA+1}")
    a(f"s_sub_u32 s{sGRP}, s{sGRP}, s{sT1}")
    a(f"s_lshl_b32 s{sH}, s{sGRP}, 2")
    a(f"s_add_u32 s{sH}, s{sH}, s{sSLOT}")
    a(f"v_and_b32 v{vN}, 15, v0")
    a(f"v_lshrrev_b32 v{vG}, 4, v0")
    a(f"s_mul_i32 s{sT0}, s{sWAVE}, {512*896}")
    a(f"s_lshl_b32 s{sT1}, s{sH}, 5")
    a(f"s_add_u32 s{sT0}, s{sT0}, s{sT1}")
    a(f"v_lshrrev_b32 v4, 1, v0")
    a(f"v_mul_u32_u24 v4, 896, v4")
    a(f"v_and_b32 v5, 1, v0")
    a(f"v_lshl_add_u32 v4, v5, 4, v4")
    a(f"v_add_u32 v4, s{sT0}, v4")
    sWR=55
    a(f"s_lshl_b32 s{sWR}, s{sWAVE}, 14")
    a(f"v_and_b32 v5, 3, v0")
    a(f"v_bfe_u32 v6, v0, 2, 2")
    a(f"v_lshlrev_b32 v5, 3, v5")
    a(f"v_lshl_add_u32 v5, v6, 5, v5")
    a(f"v_lshl_add_u32 v5, v{vG}, 8, v5")
    a(f"v_add_u32 v5, s{sWR}, v5")
    sJ=58
    a(f"s_lshl_b32 s{sT0}, s{sWAVE}, 10")
    a(f"v_lshlrev_b32 v6, 4, v0")
    a(f"v_add_u32 v9, s{sWR}, v6")
    a(f"v_add_u32 v6, s{sT0}, v6")
    for b in range(8): a(f"s_mov_b32 s{sJ+b}, {b*8192}")
    a(f"v_and_b32 v10, 7, v{vN}")
    a(f"v_mul_u32_u24 v10, 1056, v10")
    a(f"v_lshl_add_u32 v10, v{vG}, 4, v10")
    a(f"v_add_u32 v10, s{sWR}, v10")
    a(f"s_lshl_b32 s{sT0}, s{sISB}, 3")
    a(f"s_add_u32 s{sT0}, s{sT0}, 7")
    a(f"v_and_b32 v7, s{sT0}, v0")
    a(f"v_lshlrev_b32 v7, 2, v7")
    a(f"s_lshl_b32 s{sT0}, s{sISB}, 7")
    a(f"v_add_u32 v7, s{sT0}, v7")
    a(f"s_mov_b32 s{sSRD0}, s{sP0}")
    a(f"s_mov_b32 s{sSRD0+1}, s{sP0+1}")
    a(f"s_mov_b32 s{sSRD0+2}, 3670016")
    a(f"s_mov_b32 s{sSRD0+3}, 0x20000")
    a(f"s_lshl_b32 s{sT0}, s{sISB}, 16")
    a(f"s_add_u32 s{sT0}, s{sT0}, {O_OFF}")
    a(f"s_add_u32 s{sSRD1}, s{sWS}, s{sT0}")
    a(f"s_addc_u32 s{sSRD1+1}, s{sWS+1}, 0")
    a(f"s_mov_b32 s{sSRD1+2}, 65536")
    a(f"s_mov_b32 s{sSRD1+3}, 0x20000")
    if wolate:
        a(f"s_cmp_lg_u32 s{sWAVE}, 0")
        a("s_cbranch_scc1 L_h_w1")
        if trig: a("v_mov_b32 v11, 64")
        a.lab("L_h_poll1")
        a(f"global_load_dword v8, v{11 if trig else 7}, s[{sDBG}:{sDBG+1}] sc1")
        a("s_waitcnt vmcnt(0)")
        a("v_cmp_lt_u32 vcc, 0, v8")
        a("s_nop 1")
        a("s_cmp_lg_u64 vcc, 0")
        a("s_cbranch_scc1 L_h_w1")
        bound()
        a(f"s_sleep {hslow}")
        a("s_branch L_h_poll1")
        a.lab("L_h_w1")
        a("s_barrier")
    ts(5)
    vWT=64
    if worot:
        a(f"s_mul_i32 s{sT2}, s{sSLOT}, {worot}")
        for s_ in range(16):
            a(f"s_add_u32 s{sT1}, s{sT2}, {s_}")
            a(f"s_and_b32 s{sT1}, s{sT1}, 15")
            a(f"s_lshl_b32 s{sT0}, s{sT1}, 10")
            a(f"s_add_u32 m0, s{sWR}, s{sT0}")
            a(f"s_mul_i32 s{sT0}, s{sT1}, {32*896}")
            a(f"buffer_load_dwordx4 v4, s[{sSRD0}:{sSRD0+3}], s{sT0} offen {wopol} lds")
        a("s_waitcnt vmcnt(0)")
        for s_ in range(16):
            a(f"ds_read_b64_tr_b16 v[{vWT+4*s_}:{vWT+4*s_+1}], v5 offset:{s_*1024}")
            a(f"ds_read_b64_tr_b16 v[{vWT+4*s_+2}:{vWT+4*s_+3}], v5 offset:{s_*1024+128}")
    else:
        for s_ in range(16):
            a(f"s_add_u32 m0, s{sWR}, {s_*1024}")
            a(f"s_mov_b32 s{sT0}, {s_*32*896}")
            a(f"buffer_load_dwordx4 v4, s[{sSRD0}:{sSRD0+3}], s{sT0} offen {wopol} lds")
        for s_ in range(16):
            a(f"s_waitcnt vmcnt({15-s_})")
            a(f"ds_read_b64_tr_b16 v[{vWT+4*s_}:{vWT+4*s_+1}], v5 offset:{s_*1024}")
            a(f"ds_read_b64_tr_b16 v[{vWT+4*s_+2}:{vWT+4*s_+3}], v5 offset:{s_*1024+128}")
    a("s_waitcnt lgkmcnt(0)")
    ts(0)
    a(f"s_cmp_lg_u32 s{sWAVE}, 0")
    a("s_cbranch_scc1 L_h_wait")
    if not wolate:
        a.lab("L_h_poll1")
        a(f"global_load_dword v8, v7, s[{sDBG}:{sDBG+1}] sc1")
        a("s_waitcnt vmcnt(0)")
        a("v_cmp_lt_u32 vcc, 0, v8")
        a("s_nop 1")
        a("s_cmp_lg_u64 vcc, 0")
        a("s_cbranch_scc1 L_h_poll")
        bound()
        a(f"s_sleep {hslow}")
        a("s_branch L_h_poll1")
    if hpipe:
        regs=[8]+[240+k for k in range(hpipe-1)]
        for k in range(hpipe-1):
            a(f"global_load_dword v{regs[k]}, v7, s[{sDBG}:{sDBG+1}] sc1")
            a(f"s_sleep {hstag}")
        a.lab("L_h_poll")
        for k in range(hpipe):
            a(f"global_load_dword v{regs[(k+hpipe-1)%hpipe]}, v7, s[{sDBG}:{sDBG+1}] sc1")
            a(f"s_waitcnt vmcnt({hpipe-1})")
            a(f"v_cmp_le_u32 vcc, 8, v{regs[k]}")
            a("s_nop 1")
            a("s_cmp_eq_u64 vcc, -1")
            a("s_cbranch_scc1 L_h_got")
        bound()
        a("s_branch L_h_poll")
        a.lab("L_h_got")
    else:
        a.lab("L_h_poll")
        a(f"global_load_dword v8, v7, s[{sDBG}:{sDBG+1}] sc1")
        a("s_waitcnt vmcnt(0)")
        a("v_cmp_le_u32 vcc, 8, v8")
        a("s_nop 1")
        a("s_cmp_eq_u64 vcc, -1")
        a("s_cbranch_scc1 L_h_wait")
        bound()
        if hmid:
            a("s_bcnt1_i32_b64 s56, vcc")
            a(f"s_cmp_ge_u32 s56, {hthr}")
            a("s_cbranch_scc1 L_h_poll")
            a(f"s_sleep {hmid}")
        elif hsleep: a(f"s_sleep {hsleep}")
        a("s_branch L_h_poll")
    a.lab("L_h_wait")
    a("s_barrier")
    ts(1)
    vOF=128
    for b in range(8):
        a(f"buffer_load_dwordx4 v[{vOF+4*b}:{vOF+4*b+3}], v6, s[{sSRD1}:{sSRD1+3}], s{sJ+b} offen sc1")
    for b in range(8):
        a(f"s_waitcnt vmcnt({7-b})")
        a(f"ds_write_b128 v9, v[{vOF+4*b}:{vOF+4*b+3}] offset:{b*1056}")
    vFR=160
    a("s_waitcnt lgkmcnt(0)")
    for s_ in range(16):
        a(f"ds_read_b128 v[{vFR+4*s_}:{vFR+4*s_+3}], v10 offset:{s_*64}")
    vAC=12
    PART=131072
    a(f"s_lshl_b32 s{sT0}, s{sWAVE}, 9")
    a(f"s_add_u32 s{sT0}, s{sT0}, {PART}")
    a(f"v_lshlrev_b32 v11, 8, v{vG}")
    a(f"v_lshl_add_u32 v11, v{vN}, 2, v11")
    a(f"v_add_u32 v11, s{sT0}, v11")
    for s_ in range(16):
        a(f"s_waitcnt lgkmcnt({15-s_})")
        acc=vAC+4*(s_&1)
        cin="0" if s_<2 else f"v[{acc}:{acc+3}]"
        a(f"v_mfma_f32_16x16x32_bf16 v[{acc}:{acc+3}], v[{vFR+4*s_}:{vFR+4*s_+3}], v[{vWT+4*s_}:{vWT+4*s_+3}], {cin}")
    ts(2)
    a("s_nop 7")
    for r in range(4): a(f"v_add_f32 v{vAC+r}, v{vAC+r}, v{vAC+4+r}")
    a("s_mov_b32 exec_hi, 0")
    for r in range(4): a(f"ds_write_b32 v11, v{vAC+r} offset:{r*64}")
    a("s_mov_b64 exec, -1")
    a("v_lshrrev_b32 v20, 3, v0")
    a("v_and_b32 v21, 7, v0")
    a("v_lshlrev_b32 v22, 6, v20")
    a("v_lshl_add_u32 v22, v21, 3, v22")
    a(f"v_add_u32 v22, {PART}, v22")
    a(f"s_mul_i32 s{sT0}, s{sISB}, 896")
    a(f"s_lshl_b32 s{sT1}, s{sH}, 5")
    a(f"s_add_u32 s{sT0}, s{sT0}, s{sT1}")
    a(f"v_mul_u32_u24 v23, 1792, v20")
    a(f"v_lshl_add_u32 v23, v21, 2, v23")
    a(f"v_add_u32 v23, s{sT0}, v23")
    a(f"s_mov_b32 s{sSRD0}, s{sOUT}")
    a(f"s_mov_b32 s{sSRD0+1}, s{sOUT+1}")
    a(f"s_mov_b32 s{sSRD0+2}, 14336")
    a(f"s_mov_b32 s{sSRD0+3}, 0x20000")
    a("s_waitcnt lgkmcnt(0)")
    a("s_barrier")
    a(f"s_cmp_lg_u32 s{sWAVE}, 0")
    a("s_cbranch_scc1 L_end")
    ts(3)
    for w in range(8): a(f"ds_read_b64 v[{24+2*w}:{25+2*w}], v22 offset:{w*512}")
    a("s_waitcnt lgkmcnt(0)")
    for w in (1,3,5,7):
        a(f"v_add_f32 v{24+2*(w-1)}, v{24+2*(w-1)}, v{24+2*w}")
        a(f"v_add_f32 v{25+2*(w-1)}, v{25+2*(w-1)}, v{25+2*w}")
    for w in (2,6):
        a(f"v_add_f32 v{24+2*(w-2)}, v{24+2*(w-2)}, v{24+2*w}")
        a(f"v_add_f32 v{25+2*(w-2)}, v{25+2*(w-2)}, v{25+2*w}")
    a("v_add_f32 v24, v24, v32")
    a("v_add_f32 v25, v25, v33")
    a("v_cvt_pk_bf16_f32 v24, v24, v25")
    a(f"buffer_store_dword v24, v23, s[{sSRD0}:{sSRD0+3}], 0 offen")
    ts(4)
    ts_dump([0,1,2,3,4,5])
    a("s_endpgm")
    a.lab("L_h_idle")
    a(f"s_cmp_lg_u32 s2, 230")
    a("s_cbranch_scc1 L_end")
    a(f"s_cmp_lg_u32 s{sWAVE}, 0")
    a("s_cbranch_scc1 L_end")
    a(f"s_load_dword s{sTAG}, s[{sWS}:{sWS+1}], {E_OFF}")
    if probe==-2: a("s_memrealtime s[60:61]")
    a("v_cmp_gt_u32 vcc, 8, v0")
    a("v_lshlrev_b32 v4, 2, v0")
    a("v_add_u32 v5, 96, v4          ; 128 + (lane-8)*4")
    a("v_cndmask_b32 v4, v5, v4, vcc")
    a("v_cmp_gt_u32 vcc, 24, v0")
    a("v_mov_b32 v5, 0")
    a("s_nop 0")
    a("v_cndmask_b32 v4, v5, v4, vcc")
    a("s_waitcnt lgkmcnt(0)")
    a(f"s_add_u32 s{sTAG}, s{sTAG}, 0x9e3779b1")
    a.lab("L_e_poll")
    a(f"global_load_dword v8, v4, s[{sDBG}:{sDBG+1}] sc1")
    a("s_waitcnt vmcnt(0)")
    a("v_cmp_le_u32 vcc, 8, v8")
    a("s_nop 1")
    a("s_cmp_eq_u64 vcc, -1")
    a("s_cbranch_scc1 L_e_done")
    bound()
    a("v_cmp_lt_u32 vcc, 0, v8")
    a("s_nop 1")
    a("s_cmp_lg_u64 vcc, 0")
    a("s_cbranch_scc1 L_e_fast")
    a("s_sleep 32")
    a.lab("L_e_fast")
    a("s_sleep 4")
    a("s_branch L_e_poll")
    a.lab("L_e_done")
    a(f"v_mov_b32 v4, {E_OFF}")
    a(f"v_mov_b32 v5, s{sTAG}")
    a("s_mov_b64 exec, 1")
    a(f"global_store_dword v4, v5, s[{sWS}:{sWS+1}]")
    a.lab("L_end")
    a("s_endpgm")
    body=a.text()
    hdr=open("cdna_kernels/"+NAME+".s.ref").read().split("\n")
    head=[l for l in hdr if l.startswith(";") and "@launch" not in l and "Override launch" not in l and "grid=ceil" not in l]
    out="\n".join(head)+"\n"
    out+=f"; @launch grid=(256,1,1) block=(512,1,1) lds={LDS}\n"
    out+=f""".amdgcn_target "amdgcn-amd-amdhsa--gfx950"
.text
.globl {KN}
.p2align 8
.type {KN},@function
"""
    out+=body
    out+=f""".section .rodata,"a"
.p2align 6
.amdhsa_kernel {KN}
  .amdhsa_next_free_vgpr 256
  .amdhsa_next_free_sgpr 96
  .amdhsa_accum_offset 256
  .amdhsa_group_segment_fixed_size 0
  .amdhsa_kernarg_size 104
  .amdhsa_user_sgpr_count 2
  .amdhsa_user_sgpr_kernarg_segment_ptr 1
  .amdhsa_system_sgpr_workgroup_id_x 1
.end_amdhsa_kernel
"""
    return out, LDS

META=""".amdgpu_metadata
---
amdhsa.version: [1, 2]
amdhsa.kernels:
  - .name: {KN}
    .symbol: {KN}.kd
    .kernarg_segment_size: 104
    .kernarg_segment_align: 8
    .group_segment_fixed_size: 0
    .private_segment_fixed_size: 0
    .wavefront_size: 64
    .sgpr_count: 102
    .vgpr_count: 256
    .max_flat_workgroup_size: 512
    .args:
      - {{.name: kernargs, .size: 104, .offset: 0, .value_kind: by_value}}
...
.end_amdgpu_metadata
"""
if __name__=="__main__":
    import argparse
    ap=argparse.ArgumentParser()
    ap.add_argument("-o",default="cdna_kernels/"+NAME+".s")
    ap.add_argument("--diag",action="store_true")
    ap.add_argument("--meta",action="store_true")
    ap.add_argument("--D",type=int,default=40)
    ap.add_argument("--NS",type=int,default=17)
    ap.add_argument("--pol",default="nt")
    ap.add_argument("--wqpol",default="nt")
    ap.add_argument("--wopol",default="nt")
    ap.add_argument("--hsleep",type=int,default=2)
    ap.add_argument("--hslow",type=int,default=16)
    ap.add_argument("--qsleep",type=int,default=16)
    ap.add_argument("--spin",type=int,default=0)
    ap.add_argument("--wolate",type=int,default=1)
    ap.add_argument("--DB",type=int,default=0)
    ap.add_argument("--worot",type=int,default=0)
    ap.add_argument("--hpipe",type=int,default=0)
    ap.add_argument("--hmid",type=int,default=32)
    ap.add_argument("--hthr",type=int,default=48)
    ap.add_argument("--hstag",type=int,default=5)
    ap.add_argument("--trig",type=int,default=480)
    args=ap.parse_args()
    s,lds=gen(D=args.D,NS=args.NS,diag=args.diag,pol=args.pol,wqpol=args.wqpol,wopol=args.wopol,hsleep=args.hsleep,hslow=args.hslow,
              qsleep=args.qsleep,spin_sleep=args.spin,wolate=bool(args.wolate),trig=args.trig,DB=args.DB,worot=args.worot,hpipe=args.hpipe,hstag=args.hstag,hmid=args.hmid,hthr=args.hthr)
    if args.meta: s+=META.format(KN=KN)
    open(args.o,"w").write(s)
    print("wrote",args.o,"lds",lds)
```

```python
import sys, struct
NAME="concat_heads__gqa_block_cached__mha_block_cached__decode"
KN=NAME+"_kernel"

class Asm:
    def __init__(s): s.L=[]; s.uid=0
    def __call__(s,x): s.L.append("  "+x)
    def lab(s,x): s.L.append(x+":")
    def c(s,x): s.L.append("  ; "+x)
    def new(s,p): s.uid+=1; return f"L_{p}_{s.uid}"
    def text(s): return "\n".join(s.L)+"\n"

def gen(D=40, NS=17, diag=False, pol="nt", spin_sleep=0, wqpol="nt", wopol="nt", hsleep=2, hslow=32, qsleep=16,
        wolate=True, probe=-1, trig=0, DB=0, worot=0, pst=(24,64,128,192), hpipe=0, hstag=5, hmid=0, hthr=40, wsl=0, wlast=500):
    a=Asm()
    RING=0; RINGB=NS*8192
    SBUF=RINGB
    MISC=SBUF+16384
    QPART=(NS-4)*8192
    FULL=0; DONE=16; CQ1=32; CQ2=36; CMX=40; CFIN=44
    QL=256; MX=1280; LS=1408
    LDS=MISC+2048
    assert LDS<=163840
    CEXP=struct.unpack("<I",struct.pack("<f",1.4426950408889634/16.0))[0]
    O_OFF=0
    E_OFF=0x30004
    QP_OFF=0x100000
    TS_OFF=0x20000000
    sWAVE=3; sX=4; sSLOT=5; sB=6; sGRP=7; sKA=8
    sPAIR=10; sH=11; sISB=12; sT0=13; sT1=14; sT2=15
    sP0=16
    sDBG=20
    sWS=22
    sOUT=24
    sTAG=26
    sSRD0=28; sSRD1=32
    sTS1=42
    sW1=54
    sSP=27
    sKG=64
    sWOA=36; sWOB=38
    sTSB=76
    def ts(slot):
        if not diag: return
        a(f"s_memrealtime s[{sTSB+2*slot}:{sTSB+2*slot+1}]")
        a("s_waitcnt lgkmcnt(0)")
    def ts_dump(slots):
        if not diag: return
        a(f"s_load_dwordx2 s[{sTS1}:{sTS1+1}], s[0:1], 96")
        a("s_waitcnt lgkmcnt(0)")
        a(f"s_add_u32 s{sTS1}, s{sTS1}, {TS_OFF}")
        a(f"s_addc_u32 s{sTS1+1}, s{sTS1+1}, 0")
        a(f"s_lshl_b32 s44, s2, 7")
        a(f"v_mov_b32 v250, s44")
        a(f"s_mov_b64 exec, 1")
        for slot in slots:
            a(f"v_mov_b32 v252, s{sTSB+2*slot}")
            a(f"v_mov_b32 v253, s{sTSB+2*slot+1}")
            a(f"global_store_dwordx2 v250, v[252:253], s[{sTS1}:{sTS1+1}] offset:{slot*8}")
            a("s_nop 1")
    def bound():
        a(f"s_add_u32 s{sSP}, s{sSP}, 1")
        a(f"s_cmp_gt_u32 s{sSP}, 0x400000")
        a("s_cbranch_scc1 L_end")
    def spin_ge(vaddr, off, target, vt, st=sT0):
        L=a.new("spin"); E=a.new("spun")
        a.lab(L)
        a(f"ds_read_b32 v{vt}, v{vaddr} offset:{off}")
        a("s_waitcnt lgkmcnt(0)")
        a(f"v_readfirstlane_b32 s{st}, v{vt}")
        a(f"s_cmp_ge_u32 s{st}, {target}")
        a(f"s_cbranch_scc1 {E}")
        bound()
        if spin_sleep: a(f"s_sleep {spin_sleep}")
        a(f"s_branch {L}")
        a.lab(E)
    def signal(vaddr, off, vone):
        a("s_waitcnt lgkmcnt(0)")
        a("s_mov_b64 exec, 1")
        a(f"ds_add_u32 v{vaddr}, v{vone} offset:{off}")
        a("s_mov_b64 exec, -1")
    def attn_decode():
        a(f"s_and_b32 s{sX}, s2, 7")
        a(f"s_lshr_b32 s{sSLOT}, s2, 3")
        a(f"s_and_b32 s{sB}, s{sSLOT}, 7")
        a(f"s_lshr_b32 s{sGRP}, s{sSLOT}, 3")
        a(f"s_cmp_lg_u32 s{sGRP}, 0")
        a(f"s_cselect_b32 s{sISB}, 1, 0")
        a(f"s_lshr_b32 s{sT1}, s{sGRP}, 1")
        a(f"s_lshl_b32 s{sT1}, s{sT1}, 3")
        a(f"s_add_u32 s{sH}, s{sX}, s{sT1}")
        a(f"s_add_u32 s{sT1}, s{sISB}, 3")
        a(f"s_lshl_b32 s{sPAIR}, s{sB}, s{sT1}")
        a(f"s_add_u32 s{sPAIR}, s{sPAIR}, s{sH}")
    def zero_flags(vz,va):
        a(f"v_mov_b32 v{vz}, 0")
        a(f"v_lshlrev_b32 v{va}, 2, v0")
        a(f"v_add_u32 v{va}, {MISC}, v{va}")
        a(f"ds_write_b32 v{va}, v{vz}")

    a.lab(KN)
    a(f"s_load_dwordx16 s[{sKG}:{sKG+15}], s[0:1], 0")
    a(f"s_load_dwordx8 s[{sKG+16}:{sKG+23}], s[0:1], 64")
    a(f"s_load_dwordx2 s[{sKG+24}:{sKG+25}], s[0:1], 96")
    a("s_cmp_ge_u32 s2, 256")
    a("s_cbranch_scc1 L_end")
    a("v_lshrrev_b32 v1, 6, v0")
    a("v_and_b32 v0, 63, v0")
    a(f"s_mov_b32 s{sSP}, 0")
    a(f"v_readfirstlane_b32 s{sWAVE}, v1")
    a(f"s_cmp_eq_u32 s{sWAVE}, 0")
    a("s_cbranch_scc1 L_w0")
    a.c("---------------- distributed q projection ----------------")
    a(f"s_sub_u32 s{sW1}, s{sWAVE}, 1")
    vN=2; vG=3; vS16=4; vXO=8; vWO=9; vX=10; vFL=14; vONE=15; vAO=16; vAC=24; vWq=40
    a(f"v_and_b32 v{vN}, 15, v0")
    a(f"v_lshrrev_b32 v{vG}, 4, v0")
    a(f"s_and_b32 s{sT0}, s2, 3")
    a(f"s_mul_i32 s{sT0}, s{sT0}, 112")
    a(f"s_lshl_b32 s{sT1}, s{sW1}, 4")
    a(f"s_add_u32 s{sT0}, s{sT0}, s{sT1}       ; row0")
    a(f"v_lshl_add_u32 v16, v{vG}, 2, s{sT0}    ; row0+4g")
    a(f"v_lshrrev_b32 v{vXO}, 2, v{vN}")
    a(f"v_mul_u32_u24 v{vXO}, 896, v{vXO}")
    a(f"v_lshl_add_u32 v{vXO}, v16, 1, v{vXO}")
    a(f"s_lshr_b32 s{sT1}, s2, 2")
    a(f"s_and_b32 s{sT1}, s{sT1}, 31")
    a(f"s_lshl_b32 s{sT1}, s{sT1}, 8")
    a(f"v_lshlrev_b32 v{vWO}, 13, v16")
    a(f"v_lshl_add_u32 v{vWO}, v{vN}, 4, v{vWO}")
    a(f"v_add_u32 v{vWO}, s{sT1}, v{vWO}")
    a(f"s_mov_b32 s56, 8192")
    a(f"s_mov_b32 s57, 16384")
    a(f"s_mov_b32 s58, 24576")
    a(f"v_mov_b32 v{vFL}, {MISC}")
    a(f"v_mov_b32 v{vONE}, 1")
    a("s_waitcnt lgkmcnt(0)")
    a("s_cmp_ge_u32 s2, 128")
    a(f"s_cselect_b32 s{sSRD1}, s{sKG+16}, s{sKG+6}       ; wq")
    a(f"s_cselect_b32 s{sSRD1+1}, s{sKG+17}, s{sKG+7}")
    a(f"s_cselect_b32 s{sSRD0}, s{sKG+10}, s{sKG+0}       ; x")
    a(f"s_cselect_b32 s{sSRD0+1}, s{sKG+11}, s{sKG+1}")
    a(f"s_mov_b32 s{sSRD1+2}, 3670016")
    a(f"s_mov_b32 s{sSRD1+3}, 0x20000")
    a(f"s_mov_b32 s{sSRD0+2}, 7168")
    a(f"s_mov_b32 s{sSRD0+3}, 0x20000")
    so=["0","s56","s57","s58"]
    for j in range(4):
        a(f"buffer_load_dwordx4 v[{vWq+4*j}:{vWq+4*j+3}], v{vWO}, s[{sSRD1}:{sSRD1+3}], {so[j]} offen {wqpol}")
    for u in range(2):
        a(f"buffer_load_dwordx2 v[{vX+2*u}:{vX+2*u+1}], v{vXO}, s[{sSRD0}:{sSRD0+3}], 0 offen offset:{u*3584}")
    a(f"s_load_dword s{sTAG}, s[{sKG+24}:{sKG+25}], {E_OFF}")
    a("s_barrier")
    a(f"s_mov_b64 s[{sDBG}:{sDBG+1}], s[{sKG+22}:{sKG+23}]")
    a(f"s_mov_b64 s[{sWS}:{sWS+1}], s[{sKG+24}:{sKG+25}]")
    a(f"s_mov_b64 s[{sOUT}:{sOUT+1}], s[{sKG+20}:{sKG+21}]")
    a(f"s_mov_b64 s[{sWOA}:{sWOA+1}], s[{sKG+8}:{sKG+9}]")
    a(f"s_mov_b64 s[{sWOB}:{sWOB+1}], s[{sKG+18}:{sKG+19}]")
    a(f"v_and_b32 v16, 1, v{vN}")
    a(f"v_cmp_eq_u32 vcc, 1, v16")
    a(f"v_mov_b32 v17, 0x0c0c0100")
    a(f"v_mov_b32 v18, 0x01000c0c")
    a(f"v_cndmask_b32 v17, v17, v18, vcc")
    a(f"v_mov_b32 v18, 0x0c0c0302")
    a(f"v_mov_b32 v19, 0x03020c0c")
    a(f"v_cndmask_b32 v18, v18, v19, vcc")
    a(f"v_bfe_u32 v16, v{vN}, 1, 1")
    a(f"v_mov_b32 v19, 0x0c0c0c0c")
    for t in range(2):
        a(f"v_cmp_eq_u32 vcc, {t}, v16")
        a("s_nop 1")
        a(f"v_cndmask_b32 v{vS16+t}, v19, v17, vcc")
        a(f"v_cndmask_b32 v{vS16+2+t}, v19, v18, vcc")
    a(f"s_lshl_b32 s{sT0}, s{sW1}, 12")
    a(f"s_add_u32 s{sT0}, s{sT0}, {QPART}")
    a(f"v_lshlrev_b32 v56, 9, v{vG}")
    a(f"v_lshl_add_u32 v56, v{vN}, 5, v56")
    a(f"v_add_u32 v56, s{sT0}, v56")
    a("s_waitcnt vmcnt(0)")
    for j in range(4):
        for u in range(2):
            ao=vAO+4*(j&1)+2*u
            for t in range(2):
                a(f"v_perm_b32 v{ao+t}, v{vX+2*u+(j>>1)}, v{vX+2*u+(j>>1)}, v{vS16+2*(j&1)+t}")
        a("s_nop 0")
        for u in range(2):
            ao=vAO+4*(j&1)+2*u
            for hf in range(2):
                acc=vAC+8*u+4*hf
                cin="0" if j==0 else f"v[{acc}:{acc+3}]"
                a(f"v_mfma_f32_16x16x16_bf16 v[{acc}:{acc+3}], v[{ao}:{ao+1}], v[{vWq+4*j+2*hf}:{vWq+4*j+2*hf+1}], {cin}")
    ts(8)
    a("s_nop 7")
    a("s_nop 0")
    for u in range(2):
        for hf in range(2):
            acc=vAC+8*u+4*hf
            a(f"ds_write_b128 v56, v[{acc}:{acc+3}] offset:{u*2048+hf*16}")
    signal(vFL,CQ1,vONE)
    a(f"s_cmp_gt_u32 s{sWAVE}, 4")
    a("s_cbranch_scc0 L_qred")
    a("s_cmp_ge_u32 s2, 192")
    a("s_cbranch_scc1 L_hout")
    a("s_endpgm")
    a.lab("L_qred")
    vT=24
    a("v_lshrrev_b32 v16, 5, v0")
    a("v_and_b32 v17, 31, v0")
    a(f"s_lshl_b32 s{sT0}, s{sW1}, 1")
    a(f"v_add_u32 v16, s{sT0}, v16           ; batch")
    a(f"v_lshlrev_b32 v18, 9, v16")
    a(f"v_lshl_add_u32 v18, v17, 4, v18")
    a(f"v_add_u32 v18, {QPART}, v18")
    a(f"s_lshl_b32 s{sT0}, s2, 13")
    a(f"s_add_u32 s{sT0}, s{sT0}, {QP_OFF}")
    a(f"v_lshlrev_b32 v19, 10, v16")
    a(f"v_lshl_add_u32 v19, v17, 4, v19")
    a(f"v_add_u32 v19, s{sT0}, v19")
    spin_ge(vFL,CQ1,7,vT)
    for w in range(7):
        a(f"ds_read_b128 v[{40+4*w}:{43+4*w}], v18 offset:{w*4096}")
    a(f"s_add_u32 s{sTAG}, s{sTAG}, 0x9e3779b1")
    a(f"s_lshl_b32 s{sT0}, s{sW1}, 2")
    a(f"s_add_u32 s{sT0}, s{sT0}, {MISC+DONE}")
    a(f"v_mov_b32 v20, s{sT0}")
    a("s_waitcnt lgkmcnt(0)")
    a(f"ds_write_b32 v20, v{vONE}")
    for k in range(4):
        a(f"v_add_f32 v{40+k}, v{40+k}, v{44+k}")
        a(f"v_add_f32 v{48+k}, v{48+k}, v{52+k}")
        a(f"v_add_f32 v{56+k}, v{56+k}, v{60+k}")
    for k in range(4):
        a(f"v_add_f32 v{40+k}, v{40+k}, v{48+k}")
        a(f"v_add_f32 v{56+k}, v{56+k}, v{64+k}")
    for k in range(4):
        a(f"v_add_f32 v{68+2*k}, v{40+k}, v{56+k}")
        a(f"v_mov_b32 v{69+2*k}, s{sTAG}")
    a(f"global_store_dwordx4 v19, v[68:71], s[{sWS}:{sWS+1}] sc1")
    a(f"global_store_dwordx4 v19, v[72:75], s[{sWS}:{sWS+1}] offset:512 sc1")
    ts(9)
    a("s_cmp_ge_u32 s2, 192")
    a("s_cbranch_scc1 L_hout")
    a.c("---------------- consumers ----------------")
    attn_decode()
    vSEL=4
    a(f"v_and_b32 v16, 7, v{vN}")
    a(f"v_lshrrev_b32 v17, 1, v16      ; te")
    a(f"v_and_b32 v16, 1, v16          ; par")
    a(f"v_cmp_eq_u32 vcc, 1, v16")
    a(f"v_mov_b32 v18, 0x0c0c0100")
    a(f"v_mov_b32 v19, 0x01000c0c")
    a(f"v_cndmask_b32 v18, v18, v19, vcc")
    a(f"v_mov_b32 v19, 0x0c0c0302")
    a(f"v_mov_b32 v20, 0x03020c0c")
    a(f"v_cndmask_b32 v19, v19, v20, vcc")
    a(f"v_mov_b32 v20, 0x0c0c0c0c")
    for t in range(4):
        a(f"v_cmp_eq_u32 vcc, {t}, v17")
        a("s_nop 1")
        a(f"v_cndmask_b32 v{vSEL+t}, v20, v18, vcc")
        a(f"v_cndmask_b32 v{vSEL+4+t}, v20, v19, vcc")
    a(f"s_cmp_eq_u32 s{sISB}, 1")
    a("s_cbranch_scc0 L_qg")
    a(f"s_cmp_ge_u32 s{sW1}, 2")
    a("s_cbranch_scc1 L_qg_done")
    a.lab("L_qg")
    a(f"s_sub_u32 s{sT1}, 2, s{sISB}")
    a(f"s_lshl_b32 s{sT0}, s{sH}, s{sT1}")
    a(f"s_add_u32 s{sT0}, s{sT0}, s{sW1}      ; c")
    a(f"s_lshl_b32 s{sT1}, s{sISB}, 5")
    a(f"s_add_u32 s{sT0}, s{sT0}, s{sT1}      ; m*32+c")
    a(f"s_lshl_b32 s{sT0}, s{sT0}, 15         ; *4*8192")
    a(f"s_lshl_b32 s{sT1}, s{sB}, 10")
    a(f"s_add_u32 s{sT0}, s{sT0}, s{sT1}")
    a(f"s_add_u32 s{sT0}, s{sT0}, {QP_OFF}")
    a(f"v_lshlrev_b32 v16, 4, v0")
    a(f"v_add_u32 v16, s{sT0}, v16")
    for kq in range(1,4): a(f"v_add_u32 v{16+kq}, {kq*8192}, v16")
    PA=160; PB=176
    def issue(base):
        for kq in range(4):
            a(f"global_load_dwordx4 v[{base+4*kq}:{base+4*kq+3}], v{16+kq}, s[{sWS}:{sWS+1}] sc1")
    def check(base,lab):
        a(f"v_xor_b32 v20, s{sTAG}, v{base+1}")
        for r in (3,5,7,9,11,13,15):
            a(f"v_xor_b32 v21, s{sTAG}, v{base+r}")
            a(f"v_or_b32 v20, v20, v21")
        a("v_cmp_eq_u32 vcc, 0, v20")
        a("s_nop 1")
        a("s_cmp_eq_u64 vcc, -1")
        a(f"s_cbranch_scc1 {lab}")
    def qsum(base):
        a(f"v_add_f32 v32, v{base}, v{base+4}")
        a(f"v_add_f32 v34, v{base+2}, v{base+6}")
        a(f"v_add_f32 v40, v{base+8}, v{base+12}")
        a(f"v_add_f32 v42, v{base+10}, v{base+14}")
    issue(PA)
    if qsleep: a(f"s_sleep {qsleep}")
    a.lab("L_qg_poll")
    issue(PB)
    a("s_waitcnt vmcnt(4)")
    check(PA,"L_qg_gotA")
    issue(PA)
    a("s_waitcnt vmcnt(4)")
    check(PB,"L_qg_gotB")
    bound()
    a("s_branch L_qg_poll")
    a.lab("L_qg_gotB")
    qsum(PB)
    a("s_branch L_qg_got")
    a.lab("L_qg_gotA")
    qsum(PA)
    a.lab("L_qg_got")
    a("v_add_f32 v32, v32, v40")
    a("v_add_f32 v34, v34, v42")
    a("v_cvt_pk_bf16_f32 v32, v32, v34")
    a("v_and_b32 v20, 31, v0")
    a("v_lshrrev_b32 v21, 5, v0")
    a("v_lshlrev_b32 v20, 3, v20")
    a("v_lshl_add_u32 v20, v21, 2, v20")
    a(f"s_lshl_b32 s{sT0}, s{sW1}, 8")
    a(f"s_add_u32 s{sT0}, s{sT0}, {MISC+QL}")
    a(f"v_add_u32 v20, s{sT0}, v20")
    a("ds_write_b32 v20, v32")
    a.lab("L_qg_done")
    ts(7)
    signal(vFL,CQ2,vONE)
    vKA=64; vKF=72; vS=104
    vMAX=108; vSA=109; vDN=110; vDV=111; vQH=112
    a(f"v_lshrrev_b32 v{vQH}, 3, v{vN}       ; qh")
    for s in range(4):
        a(f"v_and_b32 v26, 12, v{vN}")
        a(f"v_xor_b32 v26, {4*s}, v26")
        a(f"v_and_b32 v27, 3, v{vN}")
        a(f"v_xor_b32 v27, v27, v{vG}")
        a(f"v_add_u32 v26, v26, v27")
        a(f"v_lshlrev_b32 v26, 4, v26")
        a(f"v_lshl_add_u32 v{vKA+s}, v{vN}, 9, v26")
    a(f"s_lshl_b32 s{sT0}, s{sW1}, 12")
    a(f"s_add_u32 s{sT0}, s{sT0}, {SBUF}")
    a(f"v_lshlrev_b32 v{vSA}, 5, v{vQH}")
    a(f"v_lshl_add_u32 v{vSA}, v{vG}, 3, v{vSA}")
    a(f"v_add_u32 v{vSA}, s{sT0}, v{vSA}")
    a(f"v_mov_b32 v{vMAX}, 0xff800000")
    a(f"s_lshl_b32 s{sT0}, s{sW1}, 2")
    a(f"s_add_u32 s{sT0}, s{sT0}, {MISC+DONE}")
    a(f"v_mov_b32 v{vDN}, s{sT0}")
    sTT=48; sFU=49; sSLO=50; sJ1=51; sMASK=52; sC=55
    a(f"s_mov_b32 s{sTT}, s{sW1}")
    a(f"s_mov_b32 s{sFU}, 0")
    a(f"s_lshl_b32 s{sSLO}, s{sW1}, 13")
    a(f"s_mov_b32 s{sJ1}, 2")
    a(f"s_mov_b32 s{sMASK}, 0x01010101")
    a(f"s_mov_b32 s{sMASK+1}, 0x01010101")
    vQF=32
    a(f"s_cmp_eq_u32 s{sISB}, 1")
    a(f"s_cselect_b32 s{sT0}, 0, 512")
    a(f"v_mul_lo_u32 v26, v{vQH}, s{sT0}")
    a(f"v_lshl_add_u32 v26, v{vG}, 4, v26")
    a(f"v_add_u32 v26, {MISC+QL}, v26")
    spin_ge(vFL,CQ2,4,vT)
    for s in range(8):
        a(f"ds_read_b128 v[{vQF+4*s}:{vQF+4*s+3}], v26 offset:{s*64}")
    a("s_waitcnt lgkmcnt(0)")
    ts(3)
    def wait_full(tag):
        Lg=f"L_{tag}_go"; Ls=f"L_{tag}_spin"
        a(f"s_cmp_gt_i32 s{sFU}, s{sTT}")
        a(f"s_cbranch_scc1 {Lg}")
        a.lab(Ls)
        a(f"ds_read_b32 v{vT}, v{vFL} offset:{FULL}")
        a("s_waitcnt lgkmcnt(0)")
        a(f"v_readfirstlane_b32 s{sFU}, v{vT}")
        a(f"s_cmp_gt_i32 s{sFU}, s{sTT}")
        a(f"s_cbranch_scc1 {Lg}")
        bound()
        if wsl:
            a(f"s_cmp_ge_u32 s{sTT}, {wlast}")
            a(f"s_cbranch_scc1 {Ls}")
            a(f"s_sleep {wsl}")
        elif spin_sleep: a(f"s_sleep {spin_sleep}")
        a(f"s_branch {Ls}")
        a.lab(Lg)
    def advance():
        a(f"s_add_u32 s{sTT}, s{sTT}, 4")
        a(f"s_add_u32 s{sSLO}, s{sSLO}, {4*8192}")
        a(f"s_cmp_ge_u32 s{sSLO}, {RINGB}")
        a(f"s_cselect_b32 s{sT0}, {RINGB}, 0")
        a(f"s_sub_u32 s{sSLO}, s{sSLO}, s{sT0}")
        a(f"s_add_u32 s{sJ1}, s{sJ1}, 1")
    a.lab("L_K")
    for s in range(4): a(f"v_add_u32 v{vKA+4+s}, s{sSLO}, v{vKA+s}")
    a(f"v_mov_b32 v{vDV}, s{sJ1}")
    wait_full("K")
    for s in range(8):
        a(f"ds_read_b128 v[{vKF+4*s}:{vKF+4*s+3}], v{vKA+4+(s&3)} offset:{RING+(s>>2)*256}")
    for s in range(8):
        a(f"s_waitcnt lgkmcnt({7-s})")
        if s==7: a(f"ds_write_b32 v{vDN}, v{vDV}")
        cin="0" if s==0 else f"v[{vS}:{vS+3}]"
        a(f"v_mfma_f32_16x16x32_bf16 v[{vS}:{vS+3}], v[{vKF+4*s}:{vKF+4*s+3}], v[{vQF+4*s}:{vQF+4*s+3}], {cin}")
    advance()
    a("s_nop 3")
    a(f"v_max3_f32 v{vMAX}, v{vMAX}, v{vS}, v{vS+1}")
    a(f"v_max3_f32 v{vMAX}, v{vMAX}, v{vS+2}, v{vS+3}")
    a(f"v_cvt_pk_bf16_f32 v{vS}, v{vS}, v{vS+1}")
    a(f"v_cvt_pk_bf16_f32 v{vS+1}, v{vS+2}, v{vS+3}")
    a(f"s_mov_b64 exec, s[{sMASK}:{sMASK+1}]")
    a(f"ds_write_b64 v{vSA}, v[{vS}:{vS+1}]")
    a("s_mov_b64 exec, -1")
    a(f"v_add_u32 v{vSA}, 64, v{vSA}")
    a(f"s_cmp_lt_u32 s{sTT}, 256")
    a("s_cbranch_scc1 L_K")
    ts(4)
    a(f"s_lshl_b32 s{sT0}, s{sW1}, 4")
    a(f"s_add_u32 s{sT0}, s{sT0}, {MISC+MX}")
    a(f"v_lshlrev_b32 v26, 6, v{vQH}")
    a(f"v_lshl_add_u32 v27, v{vG}, 2, v26")
    a(f"v_add_u32 v27, s{sT0}, v27")
    a(f"s_mov_b64 exec, s[{sMASK}:{sMASK+1}]")
    a(f"ds_write_b32 v27, v{vMAX}")
    a("s_mov_b64 exec, -1")
    signal(vFL,CMX,vONE)
    spin_ge(vFL,CMX,4,vT)
    a(f"v_add_u32 v26, {MISC+MX}, v26")
    for k in range(4): a(f"ds_read_b128 v[{72+4*k}:{75+4*k}], v26 offset:{k*16}")
    a(f"v_subrev_u32 v{vSA}, {64*64}, v{vSA}")
    a("s_waitcnt lgkmcnt(0)")
    a("v_max3_f32 v72, v72, v73, v74")
    for k in range(75,87,2): a(f"v_max3_f32 v72, v72, v{k}, v{k+1}")
    a("v_max_f32 v72, v72, v87")
    a("v_cvt_pk_bf16_f32 v72, v72, v72")
    a("v_and_b32 v72, 0xffff0000, v72")
    vNM=113; vL=114; vVA=115; vVC=116; vW=118
    a(f"s_mov_b32 s{sC}, {CEXP:#x}")
    a(f"v_mul_f32 v{vNM}, s{sC}, v72")
    a(f"v_sub_f32 v{vNM}, 0, v{vNM}")
    a(f"v_mov_b32 v{vL}, 0")
    a(f"v_lshlrev_b32 v{vVA}, 11, v{vG}")
    a(f"v_lshl_add_u32 v{vVA}, v{vN}, 4, v{vVA}")
    vO=120
    for k in range(8): a(f"v_mov_b32 v{vO+k}, 0")
    vVF=72; vP=104; vAP=128
    sTR=56; vTRA=117
    if trig:
        a(f"s_cmp_eq_u32 s{sW1}, 0")
        a(f"s_cselect_b32 s{sTR}, {trig}, 0")
        a(f"v_mov_b32 v{vTRA}, 64")
    a.lab("L_V")
    a(f"ds_read_b64 v[{vW}:{vW+1}], v{vSA}")
    a(f"v_add_u32 v{vVC}, s{sSLO}, v{vVA}")
    a(f"v_add_u32 v{vSA}, 64, v{vSA}")
    a(f"v_mov_b32 v{vDV}, s{sJ1}")
    a("s_waitcnt lgkmcnt(0)")
    a(f"v_lshlrev_b32 v{vP}, 16, v{vW}")
    a(f"v_and_b32 v{vP+1}, 0xffff0000, v{vW}")
    a(f"v_lshlrev_b32 v{vP+2}, 16, v{vW+1}")
    a(f"v_and_b32 v{vP+3}, 0xffff0000, v{vW+1}")
    for r in range(4): a(f"v_fma_f32 v{vP+r}, v{vP+r}, s{sC}, v{vNM}")
    for r in range(4): a(f"v_exp_f32 v{vP+r}, v{vP+r}")
    a("s_nop 0")
    a(f"v_cvt_pk_bf16_f32 v{vW}, v{vP}, v{vP+1}")
    a(f"v_cvt_pk_bf16_f32 v{vW+1}, v{vP+2}, v{vP+3}")
    a(f"v_add_f32 v{vP}, v{vP}, v{vP+1}")
    a(f"v_add_f32 v{vP+2}, v{vP+2}, v{vP+3}")
    a(f"v_add_f32 v{vL}, v{vL}, v{vP}")
    a(f"v_add_f32 v{vL}, v{vL}, v{vP+2}")
    for r in range(4):
        for t in range(4):
            a(f"v_perm_b32 v{vAP+4*r+t}, v{vW+(r>>1)}, v{vW+(r>>1)}, v{vSEL+4*(r&1)+t}")
    wait_full("V")
    for r in range(4):
        for h in range(2):
            b=vVF+4*(2*r+h)
            a(f"ds_read_b128 v[{b}:{b+3}], v{vVC} offset:{RING+r*512+h*256}")
    k=0
    for r in range(4):
        for h in range(2):
            b=vVF+4*(2*r+h)
            a(f"s_waitcnt lgkmcnt({7-k})")
            if k==7: a(f"ds_write_b32 v{vDN}, v{vDV}")
            a(f"v_mfma_f32_16x16x32_bf16 v[{vO+4*h}:{vO+4*h+3}], v[{vAP+4*r}:{vAP+4*r+3}], v[{b}:{b+3}], v[{vO+4*h}:{vO+4*h+3}]")
            k+=1
    advance()
    if trig:
        a(f"s_cmp_lg_u32 s{sTR}, s{sTT}")
        a("s_cbranch_scc1 L_notrig")
        a("s_mov_b64 exec, 1")
        a(f"global_atomic_add v{vTRA}, v{vONE}, s[{sDBG}:{sDBG+1}] sc1")
        a("s_mov_b64 exec, -1")
        a.lab("L_notrig")
    a(f"s_cmp_lt_u32 s{sTT}, 512")
    a("s_cbranch_scc1 L_V")
    ts(5)
    a(f"s_lshl_b32 s{sT0}, s{sW1}, 12")
    a(f"s_add_u32 s{sT0}, s{sT0}, {SBUF}")
    a(f"v_lshrrev_b32 v26, 1, v{vG}")
    a(f"v_lshlrev_b32 v26, 10, v26")
    a(f"v_and_b32 v27, 1, v{vG}")
    a(f"v_lshl_add_u32 v26, v27, 4, v26")
    a(f"v_lshl_add_u32 v26, v{vN}, 5, v26")
    a(f"v_add_u32 v26, s{sT0}, v26")
    a(f"s_lshl_b32 s{sT0}, s{sW1}, 4")
    a(f"s_add_u32 s{sT0}, s{sT0}, {MISC+LS}")
    a(f"v_lshlrev_b32 v27, 6, v{vQH}")
    a(f"v_lshl_add_u32 v27, v{vG}, 2, v27")
    a(f"v_add_u32 v27, s{sT0}, v27")
    a("s_nop 1")
    a(f"ds_write_b128 v26, v[{vO}:{vO+3}]")
    a(f"ds_write_b128 v26, v[{vO+4}:{vO+7}] offset:512")
    a(f"s_mov_b64 exec, s[{sMASK}:{sMASK+1}]")
    a(f"ds_write_b32 v27, v{vL}")
    a("s_mov_b64 exec, -1")
    a("s_waitcnt lgkmcnt(0)")
    a("s_mov_b64 exec, 1")
    a(f"ds_add_rtn_u32 v{vT}, v{vFL}, v{vONE} offset:{CFIN}")
    a("s_mov_b64 exec, -1")
    a("v_lshrrev_b32 v25, 5, v0")
    a("v_and_b32 v28, 31, v0")
    a("v_lshlrev_b32 v26, 10, v25")
    a("v_lshl_add_u32 v26, v28, 5, v26")
    a(f"v_add_u32 v26, {SBUF}, v26")
    a("v_lshlrev_b32 v27, 6, v25")
    a(f"v_add_u32 v27, {MISC+LS}, v27")
    a(f"s_lshl_b32 s{sT0}, s{sISB}, 16")
    a(f"s_lshl_b32 s{sT1}, s{sB}, 13")
    a(f"s_add_u32 s{sT0}, s{sT0}, s{sT1}")
    a(f"s_sub_u32 s{sT1}, 10, s{sISB}")
    a(f"s_lshl_b32 s{sT1}, s{sH}, s{sT1}")
    a(f"s_add_u32 s{sT0}, s{sT0}, s{sT1}")
    a(f"s_add_u32 s{sT0}, s{sT0}, {O_OFF}")
    a(f"v_lshlrev_b32 v29, 4, v0")
    a(f"v_add_u32 v29, s{sT0}, v29")
    a("s_waitcnt lgkmcnt(0)")
    a(f"v_readfirstlane_b32 s{sT0}, v{vT}")
    a(f"s_cmp_eq_u32 s{sT0}, 3")
    a("s_cbranch_scc0 L_end")
    for w in range(4):
        a(f"ds_read_b128 v[{32+8*w}:{35+8*w}], v26 offset:{w*4096}")
        a(f"ds_read_b128 v[{36+8*w}:{39+8*w}], v26 offset:{w*4096+16}")
    for k in range(4): a(f"ds_read_b128 v[{64+4*k}:{67+4*k}], v27 offset:{k*16}")
    a(f"s_lshl_b32 s{sT0}, s{sISB}, 7")
    a(f"s_lshl_b32 s{sT1}, s{sH}, 2")
    a(f"s_add_u32 s{sT0}, s{sT0}, s{sT1}")
    a(f"v_mov_b32 v30, s{sT0}")
    a("s_waitcnt lgkmcnt(0)")
    for k in range(8): a(f"v_add_f32 v{64+k}, v{64+k}, v{72+k}")
    for k in range(4): a(f"v_add_f32 v{64+k}, v{64+k}, v{68+k}")
    a("v_add_f32 v64, v64, v65")
    a("v_add_f32 v66, v66, v67")
    a("v_add_f32 v64, v64, v66")
    a("v_rcp_f32 v64, v64")
    for k in range(8):
        a(f"v_add_f32 v{32+k}, v{32+k}, v{40+k}")
        a(f"v_add_f32 v{48+k}, v{48+k}, v{56+k}")
    for k in range(8): a(f"v_add_f32 v{32+k}, v{32+k}, v{48+k}")
    for k in range(8): a(f"v_mul_f32 v{32+k}, v{32+k}, v64")
    for k in range(4): a(f"v_cvt_pk_bf16_f32 v{32+k}, v{32+2*k}, v{33+2*k}")
    a(f"s_cmp_eq_u32 s{sISB}, 1")
    a(f"s_cselect_b32 exec_hi, 0, -1")
    a(f"global_store_dwordx4 v29, v[32:35], s[{sWS}:{sWS+1}] sc1")
    a("s_waitcnt vmcnt(0)")
    a("s_mov_b64 exec, 1")
    a(f"global_atomic_add v30, v{vONE}, s[{sDBG}:{sDBG+1}] sc1")
    ts(6)
    ts_dump([3,4,5,6,7,8,9])
    a("s_endpgm")
    a.lab("L_w0")
    a("s_cmp_ge_u32 s2, 192")
    a("s_cbranch_scc1 L_h0")
    a.c("---------------- loader wave ----------------")
    a("s_setprio 3")
    attn_decode()
    vZ=2; vA=3; vFA=4; vFV=5; vKO=8; vVO=16; vD=20
    zero_flags(vZ,vA)
    a(f"v_mov_b32 v{vFA}, {MISC}")
    a("v_lshrrev_b32 v6, 5, v0      ; hi")
    a("v_and_b32 v7, 31, v0        ; lo")
    for i in range(8):
        a(f"v_add_u32 v{vKO+i}, {2*i}, v6")
        a(f"v_xor_b32 v{vKO+i}, v{vKO+i}, v7")
        a(f"v_lshlrev_b32 v{vKO+i}, 4, v{vKO+i}")
        a(f"v_lshl_add_u32 v{vKO+i}, v6, 9, v{vKO+i}")
        if i>=4: a(f"v_add_u32 v{vKO+i}, 4096, v{vKO+i}")
    a(f"v_lshlrev_b32 v{vVO}, 4, v0")
    a(f"v_add_u32 v{vVO+1}, 4096, v{vVO}")
    a(f"s_lshl_b32 s{sT0}, s{sPAIR}, 21")
    a("s_waitcnt lgkmcnt(0)")
    a(f"s_cmp_ge_u32 s2, 64")
    a(f"s_cselect_b32 s{sP0}, s{sKG+12}, s{sKG+2}         ; K")
    a(f"s_cselect_b32 s{sP0+1}, s{sKG+13}, s{sKG+3}")
    a(f"s_cselect_b32 s{sP0+2}, s{sKG+14}, s{sKG+4}       ; V")
    a(f"s_cselect_b32 s{sP0+3}, s{sKG+15}, s{sKG+5}")
    a("s_barrier")
    a(f"s_add_u32 s{sSRD0}, s{sP0}, s{sT0}")
    a(f"s_addc_u32 s{sSRD0+1}, s{sP0+1}, 0")
    a(f"s_mov_b32 s{sSRD0+2}, 0x200000")
    a(f"s_mov_b32 s{sSRD0+3}, 0x20000")
    a(f"s_add_u32 s{sSRD1}, s{sP0+2}, s{sT0}")
    a(f"s_addc_u32 s{sSRD1+1}, s{sP0+3}, 0")
    a(f"s_mov_b32 s{sSRD1+2}, 0x200000")
    a(f"s_mov_b32 s{sSRD1+3}, 0x20000")
    sT=48; sAL=49; sSL=50; sOFF=51; sPUB=52
    a(f"s_mov_b32 s{sT}, 0")
    a(f"s_mov_b32 s{sAL}, {NS-4}")
    a(f"s_mov_b32 s{sSL}, {RING}")
    if DB and DB!=D:
        a(f"s_cmp_eq_u32 s{sISB}, 1")
        a(f"s_cselect_b32 s{sPUB}, {1-(DB+7)//8}, {1-(D+7)//8}")
    else:
        a(f"s_mov_b32 s{sPUB}, {1-(D+7)//8}")
    ts(0)
    for ph,(srd,vo,tend) in enumerate(((sSRD0,[vKO+i for i in range(8)],256),(sSRD1,[vVO]*4+[vVO+1]*4,512))):
        LT=f"L_ld_tile{ph}"; LG=f"L_ld_go{ph}"; LR=f"L_ld_ref{ph}"
        a(f"s_mov_b32 s{sOFF}, 0")
        a.lab(LT)
        if diag:
            for k,(tt,rg) in enumerate(((pst[0],56),(pst[1],58),(pst[2],60),(pst[3],62))):
                if (tt<256)!=(ph==0): continue
                a(f"s_cmp_lg_u32 s{sT}, {tt}")
                a(f"s_cbranch_scc1 L_pst{k}")
                a(f"s_memrealtime s[{rg}:{rg+1}]")
                a("s_waitcnt lgkmcnt(0)")
                a.lab(f"L_pst{k}")
        a(f"s_cmp_lt_u32 s{sT}, s{sAL}")
        a(f"s_cbranch_scc1 {LG}")
        a.lab(LR)
        a(f"ds_read_b128 v[{vD}:{vD+3}], v{vFA} offset:{DONE}")
        a("s_waitcnt lgkmcnt(0)")
        a(f"v_min_u32 v{vD}, v{vD}, v{vD+1}")
        a(f"v_min3_u32 v{vD}, v{vD}, v{vD+2}, v{vD+3}")
        a("s_nop 0")
        a(f"v_readfirstlane_b32 s{sAL}, v{vD}")
        a(f"s_lshl_b32 s{sAL}, s{sAL}, 2")
        a(f"s_add_u32 s{sAL}, s{sAL}, {NS-4}")
        a(f"s_cmp_lt_u32 s{sT}, s{sAL}")
        a(f"s_cbranch_scc1 {LG}")
        bound()
        a("s_sleep 1")
        a(f"s_branch {LR}")
        a.lab(LG)
        def lwait(tag):
            a(f"s_waitcnt vmcnt({D-4})")
            if DB and DB!=D:
                assert DB<D
                a(f"s_cmp_eq_u32 s{sISB}, 0")
                a(f"s_cbranch_scc1 L_lw{ph}{tag}")
                a(f"s_waitcnt vmcnt({DB-4})")
                a.lab(f"L_lw{ph}{tag}")
        a(f"s_mov_b32 m0, s{sSL}")
        lwait("a")
        for i in range(4):
            a(f"buffer_load_dwordx4 v{vo[i]}, s[{srd}:{srd+3}], s{sOFF} offen offset:{i*1024} {pol} lds")
        a(f"s_add_u32 m0, s{sSL}, 4096")
        a(f"v_mov_b32 v{vFV}, s{sPUB}")
        lwait("b")
        a(f"ds_write_b32 v{vFA}, v{vFV} offset:{FULL}")
        for i in range(4,8):
            a(f"buffer_load_dwordx4 v{vo[i]}, s[{srd}:{srd+3}], s{sOFF} offen offset:{(i-4)*1024} {pol} lds")
        a(f"s_add_u32 s{sOFF}, s{sOFF}, 8192")
        a(f"s_add_u32 s{sSL}, s{sSL}, 8192")
        a(f"s_cmp_eq_u32 s{sSL}, {RING+RINGB}")
        a(f"s_cselect_b32 s{sSL}, {RING}, s{sSL}")
        a(f"s_add_u32 s{sPUB}, s{sPUB}, 1")
        a(f"s_add_u32 s{sT}, s{sT}, 1")
        a(f"s_cmp_lt_u32 s{sT}, {tend}")
        a(f"s_cbranch_scc1 {LT}")
        if ph==0: ts(1)
    for k in range((D+7)//8*8-8,-1,-8):
        a(f"v_mov_b32 v{vFV}, {512-k//8}")
        a(f"s_waitcnt vmcnt({k})")
        a(f"ds_write_b32 v{vFA}, v{vFV} offset:{FULL}")
    ts(2)
    ts_dump([0,1,2])
    if diag:
        for k,rg in enumerate((56,58,60,62)):
            a(f"v_mov_b32 v252, s{rg}")
            a(f"v_mov_b32 v253, s{rg+1}")
            a(f"global_store_dwordx2 v250, v[252:253], s[{sTS1}:{sTS1+1}] offset:{(10+k)*8}")
            a("s_nop 1")
    a("s_endpgm")
    a.lab("L_h0")
    a.c("helper wave 0: flag init, pointers")
    zero_flags(2,3)
    a("s_waitcnt lgkmcnt(0)")
    a(f"s_mov_b64 s[{sDBG}:{sDBG+1}], s[{sKG+22}:{sKG+23}]")
    a(f"s_mov_b64 s[{sWS}:{sWS+1}], s[{sKG+24}:{sKG+25}]")
    a(f"s_mov_b64 s[{sOUT}:{sOUT+1}], s[{sKG+20}:{sKG+21}]")
    a(f"s_mov_b64 s[{sWOA}:{sWOA+1}], s[{sKG+8}:{sKG+9}]")
    a(f"s_mov_b64 s[{sWOB}:{sWOB+1}], s[{sKG+18}:{sKG+19}]")
    a("s_barrier")
    a.lab("L_hout")
    a.c("---------------- helpers: out projection ----------------")
    sHJ=54
    vN=2; vG=3
    a(f"s_sub_u32 s{sHJ}, s2, 192")
    a(f"s_and_b32 s{sX}, s{sHJ}, 7")
    a(f"s_lshr_b32 s{sT1}, s{sHJ}, 3")
    a(f"s_and_b32 s{sSLOT}, s{sT1}, 3     ; sub")
    a(f"s_lshr_b32 s{sT1}, s{sHJ}, 5      ; hi")
    a(f"s_lshl_b32 s{sT1}, s{sT1}, 3")
    a(f"s_add_u32 s{sGRP}, s{sT1}, s{sX}   ; gamma")
    a(f"s_cmp_ge_u32 s{sGRP}, 14")
    a("s_cbranch_scc1 L_h_idle")
    a(f"s_cmp_ge_u32 s{sGRP}, 7")
    a(f"s_cselect_b32 s{sISB}, 1, 0")
    a(f"s_cselect_b32 s{sT1}, 7, 0")
    a(f"s_cselect_b32 s{sP0}, s{sWOB}, s{sWOA}          ; wo")
    a(f"s_cselect_b32 s{sP0+1}, s{sWOB+1}, s{sWOA+1}")
    a(f"s_sub_u32 s{sGRP}, s{sGRP}, s{sT1}")
    a(f"s_lshl_b32 s{sH}, s{sGRP}, 2")
    a(f"s_add_u32 s{sH}, s{sH}, s{sSLOT}")
    a(f"v_and_b32 v{vN}, 15, v0")
    a(f"v_lshrrev_b32 v{vG}, 4, v0")
    a(f"s_mul_i32 s{sT0}, s{sWAVE}, {512*896}")
    a(f"s_lshl_b32 s{sT1}, s{sH}, 5")
    a(f"s_add_u32 s{sT0}, s{sT0}, s{sT1}")
    a(f"v_lshrrev_b32 v4, 1, v0")
    a(f"v_mul_u32_u24 v4, 896, v4")
    a(f"v_and_b32 v5, 1, v0")
    a(f"v_lshl_add_u32 v4, v5, 4, v4")
    a(f"v_add_u32 v4, s{sT0}, v4")
    sWR=55
    a(f"s_lshl_b32 s{sWR}, s{sWAVE}, 14")
    a(f"v_and_b32 v5, 3, v0")
    a(f"v_bfe_u32 v6, v0, 2, 2")
    a(f"v_lshlrev_b32 v5, 3, v5")
    a(f"v_lshl_add_u32 v5, v6, 5, v5")
    a(f"v_lshl_add_u32 v5, v{vG}, 8, v5")
    a(f"v_add_u32 v5, s{sWR}, v5")
    sJ=58
    a(f"s_lshl_b32 s{sT0}, s{sWAVE}, 10")
    a(f"v_lshlrev_b32 v6, 4, v0")
    a(f"v_add_u32 v9, s{sWR}, v6")
    a(f"v_add_u32 v6, s{sT0}, v6")
    for b in range(8): a(f"s_mov_b32 s{sJ+b}, {b*8192}")
    a(f"v_and_b32 v10, 7, v{vN}")
    a(f"v_mul_u32_u24 v10, 1056, v10")
    a(f"v_lshl_add_u32 v10, v{vG}, 4, v10")
    a(f"v_add_u32 v10, s{sWR}, v10")
    a(f"s_lshl_b32 s{sT0}, s{sISB}, 3")
    a(f"s_add_u32 s{sT0}, s{sT0}, 7")
    a(f"v_and_b32 v7, s{sT0}, v0")
    a(f"v_lshlrev_b32 v7, 2, v7")
    a(f"s_lshl_b32 s{sT0}, s{sISB}, 7")
    a(f"v_add_u32 v7, s{sT0}, v7")
    a(f"s_mov_b32 s{sSRD0}, s{sP0}")
    a(f"s_mov_b32 s{sSRD0+1}, s{sP0+1}")
    a(f"s_mov_b32 s{sSRD0+2}, 3670016")
    a(f"s_mov_b32 s{sSRD0+3}, 0x20000")
    a(f"s_lshl_b32 s{sT0}, s{sISB}, 16")
    a(f"s_add_u32 s{sT0}, s{sT0}, {O_OFF}")
    a(f"s_add_u32 s{sSRD1}, s{sWS}, s{sT0}")
    a(f"s_addc_u32 s{sSRD1+1}, s{sWS+1}, 0")
    a(f"s_mov_b32 s{sSRD1+2}, 65536")
    a(f"s_mov_b32 s{sSRD1+3}, 0x20000")
    if wolate:
        a(f"s_cmp_lg_u32 s{sWAVE}, 0")
        a("s_cbranch_scc1 L_h_w1")
        if trig: a("v_mov_b32 v11, 64")
        a.lab("L_h_poll1")
        a(f"global_load_dword v8, v{11 if trig else 7}, s[{sDBG}:{sDBG+1}] sc1")
        a("s_waitcnt vmcnt(0)")
        a("v_cmp_lt_u32 vcc, 0, v8")
        a("s_nop 1")
        a("s_cmp_lg_u64 vcc, 0")
        a("s_cbranch_scc1 L_h_w1")
        bound()
        a(f"s_sleep {hslow}")
        a("s_branch L_h_poll1")
        a.lab("L_h_w1")
        a("s_barrier")
    ts(5)
    vWT=64
    if worot:
        a(f"s_mul_i32 s{sT2}, s{sSLOT}, {worot}")
        for s_ in range(16):
            a(f"s_add_u32 s{sT1}, s{sT2}, {s_}")
            a(f"s_and_b32 s{sT1}, s{sT1}, 15")
            a(f"s_lshl_b32 s{sT0}, s{sT1}, 10")
            a(f"s_add_u32 m0, s{sWR}, s{sT0}")
            a(f"s_mul_i32 s{sT0}, s{sT1}, {32*896}")
            a(f"buffer_load_dwordx4 v4, s[{sSRD0}:{sSRD0+3}], s{sT0} offen {wopol} lds")
        a("s_waitcnt vmcnt(0)")
        for s_ in range(16):
            a(f"ds_read_b64_tr_b16 v[{vWT+4*s_}:{vWT+4*s_+1}], v5 offset:{s_*1024}")
            a(f"ds_read_b64_tr_b16 v[{vWT+4*s_+2}:{vWT+4*s_+3}], v5 offset:{s_*1024+128}")
    else:
        for s_ in range(16):
            a(f"s_add_u32 m0, s{sWR}, {s_*1024}")
            a(f"s_mov_b32 s{sT0}, {s_*32*896}")
            a(f"buffer_load_dwordx4 v4, s[{sSRD0}:{sSRD0+3}], s{sT0} offen {wopol} lds")
        for s_ in range(16):
            a(f"s_waitcnt vmcnt({15-s_})")
            a(f"ds_read_b64_tr_b16 v[{vWT+4*s_}:{vWT+4*s_+1}], v5 offset:{s_*1024}")
            a(f"ds_read_b64_tr_b16 v[{vWT+4*s_+2}:{vWT+4*s_+3}], v5 offset:{s_*1024+128}")
    a("s_waitcnt lgkmcnt(0)")
    ts(0)
    a(f"s_cmp_lg_u32 s{sWAVE}, 0")
    a("s_cbranch_scc1 L_h_wait")
    if not wolate:
        a.lab("L_h_poll1")
        a(f"global_load_dword v8, v7, s[{sDBG}:{sDBG+1}] sc1")
        a("s_waitcnt vmcnt(0)")
        a("v_cmp_lt_u32 vcc, 0, v8")
        a("s_nop 1")
        a("s_cmp_lg_u64 vcc, 0")
        a("s_cbranch_scc1 L_h_poll")
        bound()
        a(f"s_sleep {hslow}")
        a("s_branch L_h_poll1")
    if hpipe:
        regs=[8]+[240+k for k in range(hpipe-1)]
        for k in range(hpipe-1):
            a(f"global_load_dword v{regs[k]}, v7, s[{sDBG}:{sDBG+1}] sc1")
            a(f"s_sleep {hstag}")
        a.lab("L_h_poll")
        for k in range(hpipe):
            a(f"global_load_dword v{regs[(k+hpipe-1)%hpipe]}, v7, s[{sDBG}:{sDBG+1}] sc1")
            a(f"s_waitcnt vmcnt({hpipe-1})")
            a(f"v_cmp_le_u32 vcc, 8, v{regs[k]}")
            a("s_nop 1")
            a("s_cmp_eq_u64 vcc, -1")
            a("s_cbranch_scc1 L_h_got")
        bound()
        a("s_branch L_h_poll")
        a.lab("L_h_got")
    else:
        a.lab("L_h_poll")
        a(f"global_load_dword v8, v7, s[{sDBG}:{sDBG+1}] sc1")
        a("s_waitcnt vmcnt(0)")
        a("v_cmp_le_u32 vcc, 8, v8")
        a("s_nop 1")
        a("s_cmp_eq_u64 vcc, -1")
        a("s_cbranch_scc1 L_h_wait")
        bound()
        if hmid:
            a("s_bcnt1_i32_b64 s56, vcc")
            a(f"s_cmp_ge_u32 s56, {hthr}")
            a("s_cbranch_scc1 L_h_poll")
            a(f"s_sleep {hmid}")
        elif hsleep: a(f"s_sleep {hsleep}")
        a("s_branch L_h_poll")
    a.lab("L_h_wait")
    a("s_barrier")
    ts(1)
    vOF=128
    for b in range(8):
        a(f"buffer_load_dwordx4 v[{vOF+4*b}:{vOF+4*b+3}], v6, s[{sSRD1}:{sSRD1+3}], s{sJ+b} offen sc1")
    for b in range(8):
        a(f"s_waitcnt vmcnt({7-b})")
        a(f"ds_write_b128 v9, v[{vOF+4*b}:{vOF+4*b+3}] offset:{b*1056}")
    vFR=160
    a("s_waitcnt lgkmcnt(0)")
    for s_ in range(16):
        a(f"ds_read_b128 v[{vFR+4*s_}:{vFR+4*s_+3}], v10 offset:{s_*64}")
    vAC=12
    PART=131072
    a(f"s_lshl_b32 s{sT0}, s{sWAVE}, 9")
    a(f"s_add_u32 s{sT0}, s{sT0}, {PART}")
    a(f"v_lshlrev_b32 v11, 8, v{vG}")
    a(f"v_lshl_add_u32 v11, v{vN}, 2, v11")
    a(f"v_add_u32 v11, s{sT0}, v11")
    for s_ in range(16):
        a(f"s_waitcnt lgkmcnt({15-s_})")
        acc=vAC+4*(s_&1)
        cin="0" if s_<2 else f"v[{acc}:{acc+3}]"
        a(f"v_mfma_f32_16x16x32_bf16 v[{acc}:{acc+3}], v[{vFR+4*s_}:{vFR+4*s_+3}], v[{vWT+4*s_}:{vWT+4*s_+3}], {cin}")
    ts(2)
    a("s_nop 7")
    for r in range(4): a(f"v_add_f32 v{vAC+r}, v{vAC+r}, v{vAC+4+r}")
    a("s_mov_b32 exec_hi, 0")
    for r in range(4): a(f"ds_write_b32 v11, v{vAC+r} offset:{r*64}")
    a("s_mov_b64 exec, -1")
    a("v_lshrrev_b32 v20, 3, v0")
    a("v_and_b32 v21, 7, v0")
    a("v_lshlrev_b32 v22, 6, v20")
    a("v_lshl_add_u32 v22, v21, 3, v22")
    a(f"v_add_u32 v22, {PART}, v22")
    a(f"s_mul_i32 s{sT0}, s{sISB}, 896")
    a(f"s_lshl_b32 s{sT1}, s{sH}, 5")
    a(f"s_add_u32 s{sT0}, s{sT0}, s{sT1}")
    a(f"v_mul_u32_u24 v23, 1792, v20")
    a(f"v_lshl_add_u32 v23, v21, 2, v23")
    a(f"v_add_u32 v23, s{sT0}, v23")
    a(f"s_mov_b32 s{sSRD0}, s{sOUT}")
    a(f"s_mov_b32 s{sSRD0+1}, s{sOUT+1}")
    a(f"s_mov_b32 s{sSRD0+2}, 14336")
    a(f"s_mov_b32 s{sSRD0+3}, 0x20000")
    a("s_waitcnt lgkmcnt(0)")
    a("s_barrier")
    a(f"s_cmp_lg_u32 s{sWAVE}, 0")
    a("s_cbranch_scc1 L_end")
    ts(3)
    for w in range(8): a(f"ds_read_b64 v[{24+2*w}:{25+2*w}], v22 offset:{w*512}")
    a("s_waitcnt lgkmcnt(0)")
    for w in (1,3,5,7):
        a(f"v_add_f32 v{24+2*(w-1)}, v{24+2*(w-1)}, v{24+2*w}")
        a(f"v_add_f32 v{25+2*(w-1)}, v{25+2*(w-1)}, v{25+2*w}")
    for w in (2,6):
        a(f"v_add_f32 v{24+2*(w-2)}, v{24+2*(w-2)}, v{24+2*w}")
        a(f"v_add_f32 v{25+2*(w-2)}, v{25+2*(w-2)}, v{25+2*w}")
    a("v_add_f32 v24, v24, v32")
    a("v_add_f32 v25, v25, v33")
    a("v_cvt_pk_bf16_f32 v24, v24, v25")
    a(f"buffer_store_dword v24, v23, s[{sSRD0}:{sSRD0+3}], 0 offen")
    ts(4)
    ts_dump([0,1,2,3,4,5])
    a("s_endpgm")
    a.lab("L_h_idle")
    a(f"s_cmp_lg_u32 s2, 230")
    a("s_cbranch_scc1 L_end")
    a(f"s_cmp_lg_u32 s{sWAVE}, 0")
    a("s_cbranch_scc1 L_end")
    a(f"s_load_dword s{sTAG}, s[{sWS}:{sWS+1}], {E_OFF}")
    if probe==-2: a("s_memrealtime s[60:61]")
    a("v_cmp_gt_u32 vcc, 8, v0")
    a("v_lshlrev_b32 v4, 2, v0")
    a("v_add_u32 v5, 96, v4          ; 128 + (lane-8)*4")
    a("v_cndmask_b32 v4, v5, v4, vcc")
    a("v_cmp_gt_u32 vcc, 24, v0")
    a("v_mov_b32 v5, 0")
    a("s_nop 0")
    a("v_cndmask_b32 v4, v5, v4, vcc")
    a("s_waitcnt lgkmcnt(0)")
    a(f"s_add_u32 s{sTAG}, s{sTAG}, 0x9e3779b1")
    a.lab("L_e_poll")
    a(f"global_load_dword v8, v4, s[{sDBG}:{sDBG+1}] sc1")
    a("s_waitcnt vmcnt(0)")
    a("v_cmp_le_u32 vcc, 8, v8")
    a("s_nop 1")
    a("s_cmp_eq_u64 vcc, -1")
    a("s_cbranch_scc1 L_e_done")
    bound()
    a("v_cmp_lt_u32 vcc, 0, v8")
    a("s_nop 1")
    a("s_cmp_lg_u64 vcc, 0")
    a("s_cbranch_scc1 L_e_fast")
    a("s_sleep 32")
    a.lab("L_e_fast")
    a("s_sleep 4")
    a("s_branch L_e_poll")
    a.lab("L_e_done")
    a(f"v_mov_b32 v4, {E_OFF}")
    a(f"v_mov_b32 v5, s{sTAG}")
    a("s_mov_b64 exec, 1")
    a(f"global_store_dword v4, v5, s[{sWS}:{sWS+1}]")
    a.lab("L_end")
    a("s_endpgm")
    body=a.text()
    hdr=open("cdna_kernels/"+NAME+".s.ref").read().split("\n")
    head=[l for l in hdr if l.startswith(";") and "@launch" not in l and "Override launch" not in l and "grid=ceil" not in l]
    out="\n".join(head)+"\n"
    out+=f"; @launch grid=(256,1,1) block=(512,1,1) lds={LDS}\n"
    out+=DOC
    out+=f""".amdgcn_target "amdgcn-amd-amdhsa--gfx950"
.text
.globl {KN}
.p2align 8
.type {KN},@function
"""
    out+=body
    out+=f""".section .rodata,"a"
.p2align 6
.amdhsa_kernel {KN}
  .amdhsa_next_free_vgpr 256
  .amdhsa_next_free_sgpr 96
  .amdhsa_accum_offset 256
  .amdhsa_group_segment_fixed_size 0
  .amdhsa_kernarg_size 104
  .amdhsa_user_sgpr_count 2
  .amdhsa_user_sgpr_kernarg_segment_ptr 1
  .amdhsa_system_sgpr_workgroup_id_x 1
.end_amdhsa_kernel
"""
    return out, LDS

DOC=""";
"""
META=""".amdgpu_metadata
---
amdhsa.version: [1, 2]
amdhsa.kernels:
  - .name: {KN}
    .symbol: {KN}.kd
    .kernarg_segment_size: 104
    .kernarg_segment_align: 8
    .group_segment_fixed_size: 0
    .private_segment_fixed_size: 0
    .wavefront_size: 64
    .sgpr_count: 102
    .vgpr_count: 256
    .max_flat_workgroup_size: 512
    .args:
      - {{.name: kernargs, .size: 104, .offset: 0, .value_kind: by_value}}
...
.end_amdgpu_metadata
"""
if __name__=="__main__":
    import argparse
    ap=argparse.ArgumentParser()
    ap.add_argument("-o",default="cdna_kernels/"+NAME+".s")
    ap.add_argument("--diag",action="store_true")
    ap.add_argument("--meta",action="store_true")
    ap.add_argument("--D",type=int,default=40)
    ap.add_argument("--NS",type=int,default=17)
    ap.add_argument("--pol",default="nt")
    ap.add_argument("--wqpol",default="nt")
    ap.add_argument("--wopol",default="nt")
    ap.add_argument("--hsleep",type=int,default=2)
    ap.add_argument("--hslow",type=int,default=16)
    ap.add_argument("--qsleep",type=int,default=16)
    ap.add_argument("--spin",type=int,default=0)
    ap.add_argument("--wolate",type=int,default=1)
    ap.add_argument("--DB",type=int,default=0)
    ap.add_argument("--worot",type=int,default=0)
    ap.add_argument("--hpipe",type=int,default=0)
    ap.add_argument("--wsl",type=int,default=24)
    ap.add_argument("--wlast",type=int,default=500)
    ap.add_argument("--hmid",type=int,default=32)
    ap.add_argument("--hthr",type=int,default=48)
    ap.add_argument("--hstag",type=int,default=5)
    ap.add_argument("--trig",type=int,default=480)
    args=ap.parse_args()
    s,lds=gen(D=args.D,NS=args.NS,diag=args.diag,pol=args.pol,wqpol=args.wqpol,wopol=args.wopol,hsleep=args.hsleep,hslow=args.hslow,
              qsleep=args.qsleep,spin_sleep=args.spin,wolate=bool(args.wolate),trig=args.trig,DB=args.DB,worot=args.worot,hpipe=args.hpipe,hstag=args.hstag,hmid=args.hmid,hthr=args.hthr,wsl=args.wsl,wlast=args.wlast)
    if args.meta: s+=META.format(KN=KN)
    open(args.o,"w").write(s)
    print("wrote",args.o,"lds",lds)
```

```python
import sys, struct
NAME="concat_heads__gqa_block_cached__mha_block_cached__decode"
KN=NAME+"_kernel"

class Asm:
    def __init__(s): s.L=[]; s.uid=0
    def __call__(s,x): s.L.append("  "+x)
    def lab(s,x): s.L.append(x+":")
    def c(s,x): s.L.append("  ; "+x)
    def new(s,p): s.uid+=1; return f"L_{p}_{s.uid}"
    def text(s): return "\n".join(s.L)+"\n"

def gen(D=40, NS=17, diag=False, pol="nt", spin_sleep=0, wqpol="nt", wopol="nt", hsleep=2, hslow=32, qsleep=16,
        wolate=True, probe=-1, trig=0, DB=0, worot=0, pst=(24,64,128,192), hpipe=0, hstag=5, hmid=0, hthr=40, wsl=0, wlast=500, bx=False):
    a=Asm()
    RING=0; RINGB=NS*8192
    SBUF=RINGB
    MISC=SBUF+16384
    QPART=(NS-4)*8192
    FULL=0; DONE=16; CQ1=32; CQ2=36; CMX=40; CFIN=44
    QL=256; MX=1280; LS=1408
    LDS=MISC+2048
    assert LDS<=163840
    CEXP=struct.unpack("<I",struct.pack("<f",1.4426950408889634/16.0))[0]
    O_OFF=0
    E_OFF=0x30004
    QP_OFF=0x100000
    TS_OFF=0x20000000
    sWAVE=3; sX=4; sSLOT=5; sB=6; sGRP=7; sKA=8
    sPAIR=10; sH=11; sISB=12; sT0=13; sT1=14; sT2=15
    sP0=16
    sDBG=20
    sWS=22
    sOUT=24
    sTAG=26
    sSRD0=28; sSRD1=32
    sTS1=42
    sW1=54
    sSP=27
    sKG=64
    sWOA=36; sWOB=38
    sTSB=76
    def ts(slot):
        if not diag: return
        a(f"s_memrealtime s[{sTSB+2*slot}:{sTSB+2*slot+1}]")
        a("s_waitcnt lgkmcnt(0)")
    def ts_dump(slots):
        if not diag: return
        a(f"s_load_dwordx2 s[{sTS1}:{sTS1+1}], s[0:1], 96")
        a("s_waitcnt lgkmcnt(0)")
        a(f"s_add_u32 s{sTS1}, s{sTS1}, {TS_OFF}")
        a(f"s_addc_u32 s{sTS1+1}, s{sTS1+1}, 0")
        a(f"s_lshl_b32 s44, s2, 7")
        a(f"v_mov_b32 v250, s44")
        a(f"s_mov_b64 exec, 1")
        for slot in slots:
            a(f"v_mov_b32 v252, s{sTSB+2*slot}")
            a(f"v_mov_b32 v253, s{sTSB+2*slot+1}")
            a(f"global_store_dwordx2 v250, v[252:253], s[{sTS1}:{sTS1+1}] offset:{slot*8}")
            a("s_nop 1")
    def bound():
        a(f"s_add_u32 s{sSP}, s{sSP}, 1")
        a(f"s_cmp_gt_u32 s{sSP}, 0x400000")
        a("s_cbranch_scc1 L_end")
    def spin_ge(vaddr, off, target, vt, st=sT0):
        L=a.new("spin"); E=a.new("spun")
        a.lab(L)
        a(f"ds_read_b32 v{vt}, v{vaddr} offset:{off}")
        a("s_waitcnt lgkmcnt(0)")
        a(f"v_readfirstlane_b32 s{st}, v{vt}")
        a(f"s_cmp_ge_u32 s{st}, {target}")
        a(f"s_cbranch_scc1 {E}")
        bound()
        if spin_sleep: a(f"s_sleep {spin_sleep}")
        a(f"s_branch {L}")
        a.lab(E)
    def signal(vaddr, off, vone):
        a("s_waitcnt lgkmcnt(0)")
        a("s_mov_b64 exec, 1")
        a(f"ds_add_u32 v{vaddr}, v{vone} offset:{off}")
        a("s_mov_b64 exec, -1")
    def attn_decode():
        if bx:
            a(f"s_and_b32 s{sB}, s2, 7")
            a(f"s_lshr_b32 s{sSLOT}, s2, 3")
            a(f"s_cmp_ge_u32 s{sSLOT}, 8")
            a(f"s_cselect_b32 s{sISB}, 1, 0")
            a(f"s_cselect_b32 s{sT1}, 8, 0")
            a(f"s_sub_u32 s{sH}, s{sSLOT}, s{sT1}")
            a(f"s_add_u32 s{sT1}, s{sISB}, 3")
            a(f"s_lshl_b32 s{sPAIR}, s{sB}, s{sT1}")
            a(f"s_add_u32 s{sPAIR}, s{sPAIR}, s{sH}")
            return
        a(f"s_and_b32 s{sX}, s2, 7")
        a(f"s_lshr_b32 s{sSLOT}, s2, 3")
        a(f"s_and_b32 s{sB}, s{sSLOT}, 7")
        a(f"s_lshr_b32 s{sGRP}, s{sSLOT}, 3")
        a(f"s_cmp_lg_u32 s{sGRP}, 0")
        a(f"s_cselect_b32 s{sISB}, 1, 0")
        a(f"s_lshr_b32 s{sT1}, s{sGRP}, 1")
        a(f"s_lshl_b32 s{sT1}, s{sT1}, 3")
        a(f"s_add_u32 s{sH}, s{sX}, s{sT1}")
        a(f"s_add_u32 s{sT1}, s{sISB}, 3")
        a(f"s_lshl_b32 s{sPAIR}, s{sB}, s{sT1}")
        a(f"s_add_u32 s{sPAIR}, s{sPAIR}, s{sH}")
    def zero_flags(vz,va):
        a(f"v_mov_b32 v{vz}, 0")
        a(f"v_lshlrev_b32 v{va}, 2, v0")
        a(f"v_add_u32 v{va}, {MISC}, v{va}")
        a(f"ds_write_b32 v{va}, v{vz}")

    a.lab(KN)
    a(f"s_load_dwordx16 s[{sKG}:{sKG+15}], s[0:1], 0")
    a(f"s_load_dwordx8 s[{sKG+16}:{sKG+23}], s[0:1], 64")
    a(f"s_load_dwordx2 s[{sKG+24}:{sKG+25}], s[0:1], 96")
    a("s_cmp_ge_u32 s2, 256")
    a("s_cbranch_scc1 L_end")
    a("v_lshrrev_b32 v1, 6, v0")
    a("v_and_b32 v0, 63, v0")
    a(f"s_mov_b32 s{sSP}, 0")
    a(f"v_readfirstlane_b32 s{sWAVE}, v1")
    a(f"s_cmp_eq_u32 s{sWAVE}, 0")
    a("s_cbranch_scc1 L_w0")
    a.c("---------------- distributed q projection ----------------")
    a(f"s_sub_u32 s{sW1}, s{sWAVE}, 1")
    vN=2; vG=3; vS16=4; vXO=8; vWO=9; vX=10; vFL=14; vONE=15; vAO=16; vAC=24; vWq=40
    a(f"v_and_b32 v{vN}, 15, v0")
    a(f"v_lshrrev_b32 v{vG}, 4, v0")
    a(f"s_and_b32 s{sT0}, s2, 3")
    a(f"s_mul_i32 s{sT0}, s{sT0}, 112")
    a(f"s_lshl_b32 s{sT1}, s{sW1}, 4")
    a(f"s_add_u32 s{sT0}, s{sT0}, s{sT1}       ; row0")
    a(f"v_lshl_add_u32 v16, v{vG}, 2, s{sT0}    ; row0+4g")
    a(f"v_lshrrev_b32 v{vXO}, 2, v{vN}")
    a(f"v_mul_u32_u24 v{vXO}, 896, v{vXO}")
    a(f"v_lshl_add_u32 v{vXO}, v16, 1, v{vXO}")
    a(f"s_lshr_b32 s{sT1}, s2, 2")
    a(f"s_and_b32 s{sT1}, s{sT1}, 31")
    a(f"s_lshl_b32 s{sT1}, s{sT1}, 8")
    a(f"v_lshlrev_b32 v{vWO}, 13, v16")
    a(f"v_lshl_add_u32 v{vWO}, v{vN}, 4, v{vWO}")
    a(f"v_add_u32 v{vWO}, s{sT1}, v{vWO}")
    a(f"s_mov_b32 s56, 8192")
    a(f"s_mov_b32 s57, 16384")
    a(f"s_mov_b32 s58, 24576")
    a(f"v_mov_b32 v{vFL}, {MISC}")
    a(f"v_mov_b32 v{vONE}, 1")
    a("s_waitcnt lgkmcnt(0)")
    a("s_cmp_ge_u32 s2, 128")
    a(f"s_cselect_b32 s{sSRD1}, s{sKG+16}, s{sKG+6}       ; wq")
    a(f"s_cselect_b32 s{sSRD1+1}, s{sKG+17}, s{sKG+7}")
    a(f"s_cselect_b32 s{sSRD0}, s{sKG+10}, s{sKG+0}       ; x")
    a(f"s_cselect_b32 s{sSRD0+1}, s{sKG+11}, s{sKG+1}")
    a(f"s_mov_b32 s{sSRD1+2}, 3670016")
    a(f"s_mov_b32 s{sSRD1+3}, 0x20000")
    a(f"s_mov_b32 s{sSRD0+2}, 7168")
    a(f"s_mov_b32 s{sSRD0+3}, 0x20000")
    so=["0","s56","s57","s58"]
    for j in range(4):
        a(f"buffer_load_dwordx4 v[{vWq+4*j}:{vWq+4*j+3}], v{vWO}, s[{sSRD1}:{sSRD1+3}], {so[j]} offen {wqpol}")
    for u in range(2):
        a(f"buffer_load_dwordx2 v[{vX+2*u}:{vX+2*u+1}], v{vXO}, s[{sSRD0}:{sSRD0+3}], 0 offen offset:{u*3584}")
    a(f"s_load_dword s{sTAG}, s[{sKG+24}:{sKG+25}], {E_OFF}")
    a("s_barrier")
    a(f"s_mov_b64 s[{sDBG}:{sDBG+1}], s[{sKG+22}:{sKG+23}]")
    a(f"s_mov_b64 s[{sWS}:{sWS+1}], s[{sKG+24}:{sKG+25}]")
    a(f"s_mov_b64 s[{sOUT}:{sOUT+1}], s[{sKG+20}:{sKG+21}]")
    a(f"s_mov_b64 s[{sWOA}:{sWOA+1}], s[{sKG+8}:{sKG+9}]")
    a(f"s_mov_b64 s[{sWOB}:{sWOB+1}], s[{sKG+18}:{sKG+19}]")
    a(f"v_and_b32 v16, 1, v{vN}")
    a(f"v_cmp_eq_u32 vcc, 1, v16")
    a(f"v_mov_b32 v17, 0x0c0c0100")
    a(f"v_mov_b32 v18, 0x01000c0c")
    a(f"v_cndmask_b32 v17, v17, v18, vcc")
    a(f"v_mov_b32 v18, 0x0c0c0302")
    a(f"v_mov_b32 v19, 0x03020c0c")
    a(f"v_cndmask_b32 v18, v18, v19, vcc")
    a(f"v_bfe_u32 v16, v{vN}, 1, 1")
    a(f"v_mov_b32 v19, 0x0c0c0c0c")
    for t in range(2):
        a(f"v_cmp_eq_u32 vcc, {t}, v16")
        a("s_nop 1")
        a(f"v_cndmask_b32 v{vS16+t}, v19, v17, vcc")
        a(f"v_cndmask_b32 v{vS16+2+t}, v19, v18, vcc")
    a(f"s_lshl_b32 s{sT0}, s{sW1}, 12")
    a(f"s_add_u32 s{sT0}, s{sT0}, {QPART}")
    a(f"v_lshlrev_b32 v56, 9, v{vG}")
    a(f"v_lshl_add_u32 v56, v{vN}, 5, v56")
    a(f"v_add_u32 v56, s{sT0}, v56")
    a("s_waitcnt vmcnt(0)")
    for j in range(4):
        for u in range(2):
            ao=vAO+4*(j&1)+2*u
            for t in range(2):
                a(f"v_perm_b32 v{ao+t}, v{vX+2*u+(j>>1)}, v{vX+2*u+(j>>1)}, v{vS16+2*(j&1)+t}")
        a("s_nop 0")
        for u in range(2):
            ao=vAO+4*(j&1)+2*u
            for hf in range(2):
                acc=vAC+8*u+4*hf
                cin="0" if j==0 else f"v[{acc}:{acc+3}]"
                a(f"v_mfma_f32_16x16x16_bf16 v[{acc}:{acc+3}], v[{ao}:{ao+1}], v[{vWq+4*j+2*hf}:{vWq+4*j+2*hf+1}], {cin}")
    ts(8)
    a("s_nop 7")
    a("s_nop 0")
    for u in range(2):
        for hf in range(2):
            acc=vAC+8*u+4*hf
            a(f"ds_write_b128 v56, v[{acc}:{acc+3}] offset:{u*2048+hf*16}")
    signal(vFL,CQ1,vONE)
    a(f"s_cmp_gt_u32 s{sWAVE}, 4")
    a("s_cbranch_scc0 L_qred")
    a("s_cmp_ge_u32 s2, 192")
    a("s_cbranch_scc1 L_hout")
    a("s_endpgm")
    a.lab("L_qred")
    vT=24
    a("v_lshrrev_b32 v16, 5, v0")
    a("v_and_b32 v17, 31, v0")
    a(f"s_lshl_b32 s{sT0}, s{sW1}, 1")
    a(f"v_add_u32 v16, s{sT0}, v16           ; batch")
    a(f"v_lshlrev_b32 v18, 9, v16")
    a(f"v_lshl_add_u32 v18, v17, 4, v18")
    a(f"v_add_u32 v18, {QPART}, v18")
    a(f"s_lshl_b32 s{sT0}, s2, 13")
    a(f"s_add_u32 s{sT0}, s{sT0}, {QP_OFF}")
    a(f"v_lshlrev_b32 v19, 10, v16")
    a(f"v_lshl_add_u32 v19, v17, 4, v19")
    a(f"v_add_u32 v19, s{sT0}, v19")
    spin_ge(vFL,CQ1,7,vT)
    for w in range(7):
        a(f"ds_read_b128 v[{40+4*w}:{43+4*w}], v18 offset:{w*4096}")
    a(f"s_add_u32 s{sTAG}, s{sTAG}, 0x9e3779b1")
    a(f"s_lshl_b32 s{sT0}, s{sW1}, 2")
    a(f"s_add_u32 s{sT0}, s{sT0}, {MISC+DONE}")
    a(f"v_mov_b32 v20, s{sT0}")
    a("s_waitcnt lgkmcnt(0)")
    a(f"ds_write_b32 v20, v{vONE}")
    for k in range(4):
        a(f"v_add_f32 v{40+k}, v{40+k}, v{44+k}")
        a(f"v_add_f32 v{48+k}, v{48+k}, v{52+k}")
        a(f"v_add_f32 v{56+k}, v{56+k}, v{60+k}")
    for k in range(4):
        a(f"v_add_f32 v{40+k}, v{40+k}, v{48+k}")
        a(f"v_add_f32 v{56+k}, v{56+k}, v{64+k}")
    for k in range(4):
        a(f"v_add_f32 v{68+2*k}, v{40+k}, v{56+k}")
        a(f"v_mov_b32 v{69+2*k}, s{sTAG}")
    a(f"global_store_dwordx4 v19, v[68:71], s[{sWS}:{sWS+1}] sc1")
    a(f"global_store_dwordx4 v19, v[72:75], s[{sWS}:{sWS+1}] offset:512 sc1")
    ts(9)
    a("s_cmp_ge_u32 s2, 192")
    a("s_cbranch_scc1 L_hout")
    a.c("---------------- consumers ----------------")
    attn_decode()
    vSEL=4
    a(f"v_and_b32 v16, 7, v{vN}")
    a(f"v_lshrrev_b32 v17, 1, v16      ; te")
    a(f"v_and_b32 v16, 1, v16          ; par")
    a(f"v_cmp_eq_u32 vcc, 1, v16")
    a(f"v_mov_b32 v18, 0x0c0c0100")
    a(f"v_mov_b32 v19, 0x01000c0c")
    a(f"v_cndmask_b32 v18, v18, v19, vcc")
    a(f"v_mov_b32 v19, 0x0c0c0302")
    a(f"v_mov_b32 v20, 0x03020c0c")
    a(f"v_cndmask_b32 v19, v19, v20, vcc")
    a(f"v_mov_b32 v20, 0x0c0c0c0c")
    for t in range(4):
        a(f"v_cmp_eq_u32 vcc, {t}, v17")
        a("s_nop 1")
        a(f"v_cndmask_b32 v{vSEL+t}, v20, v18, vcc")
        a(f"v_cndmask_b32 v{vSEL+4+t}, v20, v19, vcc")
    a(f"s_cmp_eq_u32 s{sISB}, 1")
    a("s_cbranch_scc0 L_qg")
    a(f"s_cmp_ge_u32 s{sW1}, 2")
    a("s_cbranch_scc1 L_qg_done")
    a.lab("L_qg")
    a(f"s_sub_u32 s{sT1}, 2, s{sISB}")
    a(f"s_lshl_b32 s{sT0}, s{sH}, s{sT1}")
    a(f"s_add_u32 s{sT0}, s{sT0}, s{sW1}      ; c")
    a(f"s_lshl_b32 s{sT1}, s{sISB}, 5")
    a(f"s_add_u32 s{sT0}, s{sT0}, s{sT1}      ; m*32+c")
    a(f"s_lshl_b32 s{sT0}, s{sT0}, 15         ; *4*8192")
    a(f"s_lshl_b32 s{sT1}, s{sB}, 10")
    a(f"s_add_u32 s{sT0}, s{sT0}, s{sT1}")
    a(f"s_add_u32 s{sT0}, s{sT0}, {QP_OFF}")
    a(f"v_lshlrev_b32 v16, 4, v0")
    a(f"v_add_u32 v16, s{sT0}, v16")
    for kq in range(1,4): a(f"v_add_u32 v{16+kq}, {kq*8192}, v16")
    PA=160; PB=176
    def issue(base):
        for kq in range(4):
            a(f"global_load_dwordx4 v[{base+4*kq}:{base+4*kq+3}], v{16+kq}, s[{sWS}:{sWS+1}] sc1")
    def check(base,lab):
        a(f"v_xor_b32 v20, s{sTAG}, v{base+1}")
        for r in (3,5,7,9,11,13,15):
            a(f"v_xor_b32 v21, s{sTAG}, v{base+r}")
            a(f"v_or_b32 v20, v20, v21")
        a("v_cmp_eq_u32 vcc, 0, v20")
        a("s_nop 1")
        a("s_cmp_eq_u64 vcc, -1")
        a(f"s_cbranch_scc1 {lab}")
    def qsum(base):
        a(f"v_add_f32 v32, v{base}, v{base+4}")
        a(f"v_add_f32 v34, v{base+2}, v{base+6}")
        a(f"v_add_f32 v40, v{base+8}, v{base+12}")
        a(f"v_add_f32 v42, v{base+10}, v{base+14}")
    issue(PA)
    if qsleep: a(f"s_sleep {qsleep}")
    a.lab("L_qg_poll")
    issue(PB)
    a("s_waitcnt vmcnt(4)")
    check(PA,"L_qg_gotA")
    issue(PA)
    a("s_waitcnt vmcnt(4)")
    check(PB,"L_qg_gotB")
    bound()
    a("s_branch L_qg_poll")
    a.lab("L_qg_gotB")
    qsum(PB)
    a("s_branch L_qg_got")
    a.lab("L_qg_gotA")
    qsum(PA)
    a.lab("L_qg_got")
    a("v_add_f32 v32, v32, v40")
    a("v_add_f32 v34, v34, v42")
    a("v_cvt_pk_bf16_f32 v32, v32, v34")
    a("v_and_b32 v20, 31, v0")
    a("v_lshrrev_b32 v21, 5, v0")
    a("v_lshlrev_b32 v20, 3, v20")
    a("v_lshl_add_u32 v20, v21, 2, v20")
    a(f"s_lshl_b32 s{sT0}, s{sW1}, 8")
    a(f"s_add_u32 s{sT0}, s{sT0}, {MISC+QL}")
    a(f"v_add_u32 v20, s{sT0}, v20")
    a("ds_write_b32 v20, v32")
    a.lab("L_qg_done")
    ts(7)
    signal(vFL,CQ2,vONE)
    vKA=64; vKF=72; vS=104
    vMAX=108; vSA=109; vDN=110; vDV=111; vQH=112
    a(f"v_lshrrev_b32 v{vQH}, 3, v{vN}       ; qh")
    for s in range(4):
        a(f"v_and_b32 v26, 12, v{vN}")
        a(f"v_xor_b32 v26, {4*s}, v26")
        a(f"v_and_b32 v27, 3, v{vN}")
        a(f"v_xor_b32 v27, v27, v{vG}")
        a(f"v_add_u32 v26, v26, v27")
        a(f"v_lshlrev_b32 v26, 4, v26")
        a(f"v_lshl_add_u32 v{vKA+s}, v{vN}, 9, v26")
    a(f"s_lshl_b32 s{sT0}, s{sW1}, 12")
    a(f"s_add_u32 s{sT0}, s{sT0}, {SBUF}")
    a(f"v_lshlrev_b32 v{vSA}, 5, v{vQH}")
    a(f"v_lshl_add_u32 v{vSA}, v{vG}, 3, v{vSA}")
    a(f"v_add_u32 v{vSA}, s{sT0}, v{vSA}")
    a(f"v_mov_b32 v{vMAX}, 0xff800000")
    a(f"s_lshl_b32 s{sT0}, s{sW1}, 2")
    a(f"s_add_u32 s{sT0}, s{sT0}, {MISC+DONE}")
    a(f"v_mov_b32 v{vDN}, s{sT0}")
    sTT=48; sFU=49; sSLO=50; sJ1=51; sMASK=52; sC=55
    a(f"s_mov_b32 s{sTT}, s{sW1}")
    a(f"s_mov_b32 s{sFU}, 0")
    a(f"s_lshl_b32 s{sSLO}, s{sW1}, 13")
    a(f"s_mov_b32 s{sJ1}, 2")
    a(f"s_mov_b32 s{sMASK}, 0x01010101")
    a(f"s_mov_b32 s{sMASK+1}, 0x01010101")
    vQF=32
    a(f"s_cmp_eq_u32 s{sISB}, 1")
    a(f"s_cselect_b32 s{sT0}, 0, 512")
    a(f"v_mul_lo_u32 v26, v{vQH}, s{sT0}")
    a(f"v_lshl_add_u32 v26, v{vG}, 4, v26")
    a(f"v_add_u32 v26, {MISC+QL}, v26")
    spin_ge(vFL,CQ2,4,vT)
    for s in range(8):
        a(f"ds_read_b128 v[{vQF+4*s}:{vQF+4*s+3}], v26 offset:{s*64}")
    a("s_waitcnt lgkmcnt(0)")
    ts(3)
    def wait_full(tag):
        Lg=f"L_{tag}_go"; Ls=f"L_{tag}_spin"
        a(f"s_cmp_gt_i32 s{sFU}, s{sTT}")
        a(f"s_cbranch_scc1 {Lg}")
        a.lab(Ls)
        a(f"ds_read_b32 v{vT}, v{vFL} offset:{FULL}")
        a("s_waitcnt lgkmcnt(0)")
        a(f"v_readfirstlane_b32 s{sFU}, v{vT}")
        a(f"s_cmp_gt_i32 s{sFU}, s{sTT}")
        a(f"s_cbranch_scc1 {Lg}")
        bound()
        if wsl:
            a(f"s_cmp_ge_u32 s{sTT}, {wlast}")
            a(f"s_cbranch_scc1 {Ls}")
            a(f"s_sleep {wsl}")
        elif spin_sleep: a(f"s_sleep {spin_sleep}")
        a(f"s_branch {Ls}")
        a.lab(Lg)
    def advance():
        a(f"s_add_u32 s{sTT}, s{sTT}, 4")
        a(f"s_add_u32 s{sSLO}, s{sSLO}, {4*8192}")
        a(f"s_cmp_ge_u32 s{sSLO}, {RINGB}")
        a(f"s_cselect_b32 s{sT0}, {RINGB}, 0")
        a(f"s_sub_u32 s{sSLO}, s{sSLO}, s{sT0}")
        a(f"s_add_u32 s{sJ1}, s{sJ1}, 1")
    a.lab("L_K")
    for s in range(4): a(f"v_add_u32 v{vKA+4+s}, s{sSLO}, v{vKA+s}")
    a(f"v_mov_b32 v{vDV}, s{sJ1}")
    wait_full("K")
    for s in range(8):
        a(f"ds_read_b128 v[{vKF+4*s}:{vKF+4*s+3}], v{vKA+4+(s&3)} offset:{RING+(s>>2)*256}")
    for s in range(8):
        a(f"s_waitcnt lgkmcnt({7-s})")
        if s==7: a(f"ds_write_b32 v{vDN}, v{vDV}")
        cin="0" if s==0 else f"v[{vS}:{vS+3}]"
        a(f"v_mfma_f32_16x16x32_bf16 v[{vS}:{vS+3}], v[{vKF+4*s}:{vKF+4*s+3}], v[{vQF+4*s}:{vQF+4*s+3}], {cin}")
    advance()
    a("s_nop 3")
    a(f"v_max3_f32 v{vMAX}, v{vMAX}, v{vS}, v{vS+1}")
    a(f"v_max3_f32 v{vMAX}, v{vMAX}, v{vS+2}, v{vS+3}")
    a(f"v_cvt_pk_bf16_f32 v{vS}, v{vS}, v{vS+1}")
    a(f"v_cvt_pk_bf16_f32 v{vS+1}, v{vS+2}, v{vS+3}")
    a(f"s_mov_b64 exec, s[{sMASK}:{sMASK+1}]")
    a(f"ds_write_b64 v{vSA}, v[{vS}:{vS+1}]")
    a("s_mov_b64 exec, -1")
    a(f"v_add_u32 v{vSA}, 64, v{vSA}")
    a(f"s_cmp_lt_u32 s{sTT}, 256")
    a("s_cbranch_scc1 L_K")
    ts(4)
    a(f"s_lshl_b32 s{sT0}, s{sW1}, 4")
    a(f"s_add_u32 s{sT0}, s{sT0}, {MISC+MX}")
    a(f"v_lshlrev_b32 v26, 6, v{vQH}")
    a(f"v_lshl_add_u32 v27, v{vG}, 2, v26")
    a(f"v_add_u32 v27, s{sT0}, v27")
    a(f"s_mov_b64 exec, s[{sMASK}:{sMASK+1}]")
    a(f"ds_write_b32 v27, v{vMAX}")
    a("s_mov_b64 exec, -1")
    signal(vFL,CMX,vONE)
    spin_ge(vFL,CMX,4,vT)
    a(f"v_add_u32 v26, {MISC+MX}, v26")
    for k in range(4): a(f"ds_read_b128 v[{72+4*k}:{75+4*k}], v26 offset:{k*16}")
    a(f"v_subrev_u32 v{vSA}, {64*64}, v{vSA}")
    a("s_waitcnt lgkmcnt(0)")
    a("v_max3_f32 v72, v72, v73, v74")
    for k in range(75,87,2): a(f"v_max3_f32 v72, v72, v{k}, v{k+1}")
    a("v_max_f32 v72, v72, v87")
    a("v_cvt_pk_bf16_f32 v72, v72, v72")
    a("v_and_b32 v72, 0xffff0000, v72")
    vNM=113; vL=114; vVA=115; vVC=116; vW=118
    a(f"s_mov_b32 s{sC}, {CEXP:#x}")
    a(f"v_mul_f32 v{vNM}, s{sC}, v72")
    a(f"v_sub_f32 v{vNM}, 0, v{vNM}")
    a(f"v_mov_b32 v{vL}, 0")
    a(f"v_lshlrev_b32 v{vVA}, 11, v{vG}")
    a(f"v_lshl_add_u32 v{vVA}, v{vN}, 4, v{vVA}")
    vO=120
    for k in range(8): a(f"v_mov_b32 v{vO+k}, 0")
    vVF=72; vP=104; vAP=128
    sTR=56; vTRA=117
    if trig:
        a(f"s_cmp_eq_u32 s{sW1}, 0")
        a(f"s_cselect_b32 s{sTR}, {trig}, 0")
        a(f"v_mov_b32 v{vTRA}, 64")
    a.lab("L_V")
    a(f"ds_read_b64 v[{vW}:{vW+1}], v{vSA}")
    a(f"v_add_u32 v{vVC}, s{sSLO}, v{vVA}")
    a(f"v_add_u32 v{vSA}, 64, v{vSA}")
    a(f"v_mov_b32 v{vDV}, s{sJ1}")
    a("s_waitcnt lgkmcnt(0)")
    a(f"v_lshlrev_b32 v{vP}, 16, v{vW}")
    a(f"v_and_b32 v{vP+1}, 0xffff0000, v{vW}")
    a(f"v_lshlrev_b32 v{vP+2}, 16, v{vW+1}")
    a(f"v_and_b32 v{vP+3}, 0xffff0000, v{vW+1}")
    for r in range(4): a(f"v_fma_f32 v{vP+r}, v{vP+r}, s{sC}, v{vNM}")
    for r in range(4): a(f"v_exp_f32 v{vP+r}, v{vP+r}")
    a("s_nop 0")
    a(f"v_cvt_pk_bf16_f32 v{vW}, v{vP}, v{vP+1}")
    a(f"v_cvt_pk_bf16_f32 v{vW+1}, v{vP+2}, v{vP+3}")
    a(f"v_add_f32 v{vP}, v{vP}, v{vP+1}")
    a(f"v_add_f32 v{vP+2}, v{vP+2}, v{vP+3}")
    a(f"v_add_f32 v{vL}, v{vL}, v{vP}")
    a(f"v_add_f32 v{vL}, v{vL}, v{vP+2}")
    for r in range(4):
        for t in range(4):
            a(f"v_perm_b32 v{vAP+4*r+t}, v{vW+(r>>1)}, v{vW+(r>>1)}, v{vSEL+4*(r&1)+t}")
    wait_full("V")
    for r in range(4):
        for h in range(2):
            b=vVF+4*(2*r+h)
            a(f"ds_read_b128 v[{b}:{b+3}], v{vVC} offset:{RING+r*512+h*256}")
    k=0
    for r in range(4):
        for h in range(2):
            b=vVF+4*(2*r+h)
            a(f"s_waitcnt lgkmcnt({7-k})")
            if k==7: a(f"ds_write_b32 v{vDN}, v{vDV}")
            a(f"v_mfma_f32_16x16x32_bf16 v[{vO+4*h}:{vO+4*h+3}], v[{vAP+4*r}:{vAP+4*r+3}], v[{b}:{b+3}], v[{vO+4*h}:{vO+4*h+3}]")
            k+=1
    advance()
    if trig:
        a(f"s_cmp_lg_u32 s{sTR}, s{sTT}")
        a("s_cbranch_scc1 L_notrig")
        a("s_mov_b64 exec, 1")
        a(f"global_atomic_add v{vTRA}, v{vONE}, s[{sDBG}:{sDBG+1}] sc1")
        a("s_mov_b64 exec, -1")
        a.lab("L_notrig")
    a(f"s_cmp_lt_u32 s{sTT}, 512")
    a("s_cbranch_scc1 L_V")
    ts(5)
    a(f"s_lshl_b32 s{sT0}, s{sW1}, 12")
    a(f"s_add_u32 s{sT0}, s{sT0}, {SBUF}")
    a(f"v_lshrrev_b32 v26, 1, v{vG}")
    a(f"v_lshlrev_b32 v26, 10, v26")
    a(f"v_and_b32 v27, 1, v{vG}")
    a(f"v_lshl_add_u32 v26, v27, 4, v26")
    a(f"v_lshl_add_u32 v26, v{vN}, 5, v26")
    a(f"v_add_u32 v26, s{sT0}, v26")
    a(f"s_lshl_b32 s{sT0}, s{sW1}, 4")
    a(f"s_add_u32 s{sT0}, s{sT0}, {MISC+LS}")
    a(f"v_lshlrev_b32 v27, 6, v{vQH}")
    a(f"v_lshl_add_u32 v27, v{vG}, 2, v27")
    a(f"v_add_u32 v27, s{sT0}, v27")
    a("s_nop 1")
    a(f"ds_write_b128 v26, v[{vO}:{vO+3}]")
    a(f"ds_write_b128 v26, v[{vO+4}:{vO+7}] offset:512")
    a(f"s_mov_b64 exec, s[{sMASK}:{sMASK+1}]")
    a(f"ds_write_b32 v27, v{vL}")
    a("s_mov_b64 exec, -1")
    a("s_waitcnt lgkmcnt(0)")
    a("s_mov_b64 exec, 1")
    a(f"ds_add_rtn_u32 v{vT}, v{vFL}, v{vONE} offset:{CFIN}")
    a("s_mov_b64 exec, -1")
    a("v_lshrrev_b32 v25, 5, v0")
    a("v_and_b32 v28, 31, v0")
    a("v_lshlrev_b32 v26, 10, v25")
    a("v_lshl_add_u32 v26, v28, 5, v26")
    a(f"v_add_u32 v26, {SBUF}, v26")
    a("v_lshlrev_b32 v27, 6, v25")
    a(f"v_add_u32 v27, {MISC+LS}, v27")
    a(f"s_lshl_b32 s{sT0}, s{sISB}, 16")
    a(f"s_lshl_b32 s{sT1}, s{sB}, 13")
    a(f"s_add_u32 s{sT0}, s{sT0}, s{sT1}")
    a(f"s_sub_u32 s{sT1}, 10, s{sISB}")
    a(f"s_lshl_b32 s{sT1}, s{sH}, s{sT1}")
    a(f"s_add_u32 s{sT0}, s{sT0}, s{sT1}")
    a(f"s_add_u32 s{sT0}, s{sT0}, {O_OFF}")
    a(f"v_lshlrev_b32 v29, 4, v0")
    a(f"v_add_u32 v29, s{sT0}, v29")
    a("s_waitcnt lgkmcnt(0)")
    a(f"v_readfirstlane_b32 s{sT0}, v{vT}")
    a(f"s_cmp_eq_u32 s{sT0}, 3")
    a("s_cbranch_scc0 L_end")
    for w in range(4):
        a(f"ds_read_b128 v[{32+8*w}:{35+8*w}], v26 offset:{w*4096}")
        a(f"ds_read_b128 v[{36+8*w}:{39+8*w}], v26 offset:{w*4096+16}")
    for k in range(4): a(f"ds_read_b128 v[{64+4*k}:{67+4*k}], v27 offset:{k*16}")
    a(f"s_lshl_b32 s{sT0}, s{sISB}, 7")
    a(f"s_lshl_b32 s{sT1}, s{sH}, 2")
    a(f"s_add_u32 s{sT0}, s{sT0}, s{sT1}")
    a(f"v_mov_b32 v30, s{sT0}")
    a("s_waitcnt lgkmcnt(0)")
    for k in range(8): a(f"v_add_f32 v{64+k}, v{64+k}, v{72+k}")
    for k in range(4): a(f"v_add_f32 v{64+k}, v{64+k}, v{68+k}")
    a("v_add_f32 v64, v64, v65")
    a("v_add_f32 v66, v66, v67")
    a("v_add_f32 v64, v64, v66")
    a("v_rcp_f32 v64, v64")
    for k in range(8):
        a(f"v_add_f32 v{32+k}, v{32+k}, v{40+k}")
        a(f"v_add_f32 v{48+k}, v{48+k}, v{56+k}")
    for k in range(8): a(f"v_add_f32 v{32+k}, v{32+k}, v{48+k}")
    for k in range(8): a(f"v_mul_f32 v{32+k}, v{32+k}, v64")
    for k in range(4): a(f"v_cvt_pk_bf16_f32 v{32+k}, v{32+2*k}, v{33+2*k}")
    a(f"s_cmp_eq_u32 s{sISB}, 1")
    a(f"s_cselect_b32 exec_hi, 0, -1")
    a(f"global_store_dwordx4 v29, v[32:35], s[{sWS}:{sWS+1}] sc1")
    a("s_waitcnt vmcnt(0)")
    a("s_mov_b64 exec, 1")
    a(f"global_atomic_add v30, v{vONE}, s[{sDBG}:{sDBG+1}] sc1")
    ts(6)
    ts_dump([3,4,5,6,7,8,9])
    a("s_endpgm")
    a.lab("L_w0")
    a("s_cmp_ge_u32 s2, 192")
    a("s_cbranch_scc1 L_h0")
    a.c("---------------- loader wave ----------------")
    a("s_setprio 3")
    attn_decode()
    vZ=2; vA=3; vFA=4; vFV=5; vKO=8; vVO=16; vD=20
    zero_flags(vZ,vA)
    a(f"v_mov_b32 v{vFA}, {MISC}")
    a("v_lshrrev_b32 v6, 5, v0      ; hi")
    a("v_and_b32 v7, 31, v0        ; lo")
    for i in range(8):
        a(f"v_add_u32 v{vKO+i}, {2*i}, v6")
        a(f"v_xor_b32 v{vKO+i}, v{vKO+i}, v7")
        a(f"v_lshlrev_b32 v{vKO+i}, 4, v{vKO+i}")
        a(f"v_lshl_add_u32 v{vKO+i}, v6, 9, v{vKO+i}")
        if i>=4: a(f"v_add_u32 v{vKO+i}, 4096, v{vKO+i}")
    a(f"v_lshlrev_b32 v{vVO}, 4, v0")
    a(f"v_add_u32 v{vVO+1}, 4096, v{vVO}")
    a(f"s_lshl_b32 s{sT0}, s{sPAIR}, 21")
    a("s_waitcnt lgkmcnt(0)")
    a(f"s_cmp_ge_u32 s2, 64")
    a(f"s_cselect_b32 s{sP0}, s{sKG+12}, s{sKG+2}         ; K")
    a(f"s_cselect_b32 s{sP0+1}, s{sKG+13}, s{sKG+3}")
    a(f"s_cselect_b32 s{sP0+2}, s{sKG+14}, s{sKG+4}       ; V")
    a(f"s_cselect_b32 s{sP0+3}, s{sKG+15}, s{sKG+5}")
    a("s_barrier")
    a(f"s_add_u32 s{sSRD0}, s{sP0}, s{sT0}")
    a(f"s_addc_u32 s{sSRD0+1}, s{sP0+1}, 0")
    a(f"s_mov_b32 s{sSRD0+2}, 0x200000")
    a(f"s_mov_b32 s{sSRD0+3}, 0x20000")
    a(f"s_add_u32 s{sSRD1}, s{sP0+2}, s{sT0}")
    a(f"s_addc_u32 s{sSRD1+1}, s{sP0+3}, 0")
    a(f"s_mov_b32 s{sSRD1+2}, 0x200000")
    a(f"s_mov_b32 s{sSRD1+3}, 0x20000")
    sT=48; sAL=49; sSL=50; sOFF=51; sPUB=52
    a(f"s_mov_b32 s{sT}, 0")
    a(f"s_mov_b32 s{sAL}, {NS-4}")
    a(f"s_mov_b32 s{sSL}, {RING}")
    if DB and DB!=D:
        a(f"s_cmp_eq_u32 s{sISB}, 1")
        a(f"s_cselect_b32 s{sPUB}, {1-(DB+7)//8}, {1-(D+7)//8}")
    else:
        a(f"s_mov_b32 s{sPUB}, {1-(D+7)//8}")
    ts(0)
    for ph,(srd,vo,tend) in enumerate(((sSRD0,[vKO+i for i in range(8)],256),(sSRD1,[vVO]*4+[vVO+1]*4,512))):
        LT=f"L_ld_tile{ph}"; LG=f"L_ld_go{ph}"; LR=f"L_ld_ref{ph}"
        a(f"s_mov_b32 s{sOFF}, 0")
        a.lab(LT)
        if diag:
            for k,(tt,rg) in enumerate(((pst[0],56),(pst[1],58),(pst[2],60),(pst[3],62))):
                if (tt<256)!=(ph==0): continue
                a(f"s_cmp_lg_u32 s{sT}, {tt}")
                a(f"s_cbranch_scc1 L_pst{k}")
                a(f"s_memrealtime s[{rg}:{rg+1}]")
                a("s_waitcnt lgkmcnt(0)")
                a.lab(f"L_pst{k}")
        a(f"s_cmp_lt_u32 s{sT}, s{sAL}")
        a(f"s_cbranch_scc1 {LG}")
        a.lab(LR)
        a(f"ds_read_b128 v[{vD}:{vD+3}], v{vFA} offset:{DONE}")
        a("s_waitcnt lgkmcnt(0)")
        a(f"v_min_u32 v{vD}, v{vD}, v{vD+1}")
        a(f"v_min3_u32 v{vD}, v{vD}, v{vD+2}, v{vD+3}")
        a("s_nop 0")
        a(f"v_readfirstlane_b32 s{sAL}, v{vD}")
        a(f"s_lshl_b32 s{sAL}, s{sAL}, 2")
        a(f"s_add_u32 s{sAL}, s{sAL}, {NS-4}")
        a(f"s_cmp_lt_u32 s{sT}, s{sAL}")
        a(f"s_cbranch_scc1 {LG}")
        bound()
        a("s_sleep 1")
        a(f"s_branch {LR}")
        a.lab(LG)
        def lwait(tag):
            a(f"s_waitcnt vmcnt({D-4})")
            if DB and DB!=D:
                assert DB<D
                a(f"s_cmp_eq_u32 s{sISB}, 0")
                a(f"s_cbranch_scc1 L_lw{ph}{tag}")
                a(f"s_waitcnt vmcnt({DB-4})")
                a.lab(f"L_lw{ph}{tag}")
        a(f"s_mov_b32 m0, s{sSL}")
        lwait("a")
        for i in range(4):
            a(f"buffer_load_dwordx4 v{vo[i]}, s[{srd}:{srd+3}], s{sOFF} offen offset:{i*1024} {pol} lds")
        a(f"s_add_u32 m0, s{sSL}, 4096")
        a(f"v_mov_b32 v{vFV}, s{sPUB}")
        lwait("b")
        a(f"ds_write_b32 v{vFA}, v{vFV} offset:{FULL}")
        for i in range(4,8):
            a(f"buffer_load_dwordx4 v{vo[i]}, s[{srd}:{srd+3}], s{sOFF} offen offset:{(i-4)*1024} {pol} lds")
        a(f"s_add_u32 s{sOFF}, s{sOFF}, 8192")
        a(f"s_add_u32 s{sSL}, s{sSL}, 8192")
        a(f"s_cmp_eq_u32 s{sSL}, {RING+RINGB}")
        a(f"s_cselect_b32 s{sSL}, {RING}, s{sSL}")
        a(f"s_add_u32 s{sPUB}, s{sPUB}, 1")
        a(f"s_add_u32 s{sT}, s{sT}, 1")
        a(f"s_cmp_lt_u32 s{sT}, {tend}")
        a(f"s_cbranch_scc1 {LT}")
        if ph==0: ts(1)
    for k in range((D+7)//8*8-8,-1,-8):
        a(f"v_mov_b32 v{vFV}, {512-k//8}")
        a(f"s_waitcnt vmcnt({k})")
        a(f"ds_write_b32 v{vFA}, v{vFV} offset:{FULL}")
    ts(2)
    ts_dump([0,1,2])
    if diag:
        for k,rg in enumerate((56,58,60,62)):
            a(f"v_mov_b32 v252, s{rg}")
            a(f"v_mov_b32 v253, s{rg+1}")
            a(f"global_store_dwordx2 v250, v[252:253], s[{sTS1}:{sTS1+1}] offset:{(10+k)*8}")
            a("s_nop 1")
    a("s_endpgm")
    a.lab("L_h0")
    a.c("helper wave 0: flag init, pointers")
    zero_flags(2,3)
    a("s_waitcnt lgkmcnt(0)")
    a(f"s_mov_b64 s[{sDBG}:{sDBG+1}], s[{sKG+22}:{sKG+23}]")
    a(f"s_mov_b64 s[{sWS}:{sWS+1}], s[{sKG+24}:{sKG+25}]")
    a(f"s_mov_b64 s[{sOUT}:{sOUT+1}], s[{sKG+20}:{sKG+21}]")
    a(f"s_mov_b64 s[{sWOA}:{sWOA+1}], s[{sKG+8}:{sKG+9}]")
    a(f"s_mov_b64 s[{sWOB}:{sWOB+1}], s[{sKG+18}:{sKG+19}]")
    a("s_barrier")
    a.lab("L_hout")
    a.c("---------------- helpers: out projection ----------------")
    sHJ=54
    vN=2; vG=3
    a(f"s_sub_u32 s{sHJ}, s2, 192")
    a(f"s_and_b32 s{sX}, s{sHJ}, 7")
    a(f"s_lshr_b32 s{sT1}, s{sHJ}, 3")
    a(f"s_and_b32 s{sSLOT}, s{sT1}, 3     ; sub")
    a(f"s_lshr_b32 s{sT1}, s{sHJ}, 5      ; hi")
    a(f"s_lshl_b32 s{sT1}, s{sT1}, 3")
    a(f"s_add_u32 s{sGRP}, s{sT1}, s{sX}   ; gamma")
    a(f"s_cmp_ge_u32 s{sGRP}, 14")
    a("s_cbranch_scc1 L_h_idle")
    a(f"s_cmp_ge_u32 s{sGRP}, 7")
    a(f"s_cselect_b32 s{sISB}, 1, 0")
    a(f"s_cselect_b32 s{sT1}, 7, 0")
    a(f"s_cselect_b32 s{sP0}, s{sWOB}, s{sWOA}          ; wo")
    a(f"s_cselect_b32 s{sP0+1}, s{sWOB+1}, s{sWOA+1}")
    a(f"s_sub_u32 s{sGRP}, s{sGRP}, s{sT1}")
    a(f"s_lshl_b32 s{sH}, s{sGRP}, 2")
    a(f"s_add_u32 s{sH}, s{sH}, s{sSLOT}")
    a(f"v_and_b32 v{vN}, 15, v0")
    a(f"v_lshrrev_b32 v{vG}, 4, v0")
    a(f"s_mul_i32 s{sT0}, s{sWAVE}, {512*896}")
    a(f"s_lshl_b32 s{sT1}, s{sH}, 5")
    a(f"s_add_u32 s{sT0}, s{sT0}, s{sT1}")
    a(f"v_lshrrev_b32 v4, 1, v0")
    a(f"v_mul_u32_u24 v4, 896, v4")
    a(f"v_and_b32 v5, 1, v0")
    a(f"v_lshl_add_u32 v4, v5, 4, v4")
    a(f"v_add_u32 v4, s{sT0}, v4")
    sWR=55
    a(f"s_lshl_b32 s{sWR}, s{sWAVE}, 14")
    a(f"v_and_b32 v5, 3, v0")
    a(f"v_bfe_u32 v6, v0, 2, 2")
    a(f"v_lshlrev_b32 v5, 3, v5")
    a(f"v_lshl_add_u32 v5, v6, 5, v5")
    a(f"v_lshl_add_u32 v5, v{vG}, 8, v5")
    a(f"v_add_u32 v5, s{sWR}, v5")
    sJ=58
    a(f"s_lshl_b32 s{sT0}, s{sWAVE}, 10")
    a(f"v_lshlrev_b32 v6, 4, v0")
    a(f"v_add_u32 v9, s{sWR}, v6")
    a(f"v_add_u32 v6, s{sT0}, v6")
    for b in range(8): a(f"s_mov_b32 s{sJ+b}, {b*8192}")
    a(f"v_and_b32 v10, 7, v{vN}")
    a(f"v_mul_u32_u24 v10, 1056, v10")
    a(f"v_lshl_add_u32 v10, v{vG}, 4, v10")
    a(f"v_add_u32 v10, s{sWR}, v10")
    a(f"s_lshl_b32 s{sT0}, s{sISB}, 3")
    a(f"s_add_u32 s{sT0}, s{sT0}, 7")
    a(f"v_and_b32 v7, s{sT0}, v0")
    a(f"v_lshlrev_b32 v7, 2, v7")
    a(f"s_lshl_b32 s{sT0}, s{sISB}, 7")
    a(f"v_add_u32 v7, s{sT0}, v7")
    a(f"s_mov_b32 s{sSRD0}, s{sP0}")
    a(f"s_mov_b32 s{sSRD0+1}, s{sP0+1}")
    a(f"s_mov_b32 s{sSRD0+2}, 3670016")
    a(f"s_mov_b32 s{sSRD0+3}, 0x20000")
    a(f"s_lshl_b32 s{sT0}, s{sISB}, 16")
    a(f"s_add_u32 s{sT0}, s{sT0}, {O_OFF}")
    a(f"s_add_u32 s{sSRD1}, s{sWS}, s{sT0}")
    a(f"s_addc_u32 s{sSRD1+1}, s{sWS+1}, 0")
    a(f"s_mov_b32 s{sSRD1+2}, 65536")
    a(f"s_mov_b32 s{sSRD1+3}, 0x20000")
    if wolate:
        a(f"s_cmp_lg_u32 s{sWAVE}, 0")
        a("s_cbranch_scc1 L_h_w1")
        if trig: a("v_mov_b32 v11, 64")
        a.lab("L_h_poll1")
        a(f"global_load_dword v8, v{11 if trig else 7}, s[{sDBG}:{sDBG+1}] sc1")
        a("s_waitcnt vmcnt(0)")
        a("v_cmp_lt_u32 vcc, 0, v8")
        a("s_nop 1")
        a("s_cmp_lg_u64 vcc, 0")
        a("s_cbranch_scc1 L_h_w1")
        bound()
        a(f"s_sleep {hslow}")
        a("s_branch L_h_poll1")
        a.lab("L_h_w1")
        a("s_barrier")
    ts(5)
    vWT=64
    if worot:
        a(f"s_mul_i32 s{sT2}, s{sSLOT}, {worot}")
        for s_ in range(16):
            a(f"s_add_u32 s{sT1}, s{sT2}, {s_}")
            a(f"s_and_b32 s{sT1}, s{sT1}, 15")
            a(f"s_lshl_b32 s{sT0}, s{sT1}, 10")
            a(f"s_add_u32 m0, s{sWR}, s{sT0}")
            a(f"s_mul_i32 s{sT0}, s{sT1}, {32*896}")
            a(f"buffer_load_dwordx4 v4, s[{sSRD0}:{sSRD0+3}], s{sT0} offen {wopol} lds")
        a("s_waitcnt vmcnt(0)")
        for s_ in range(16):
            a(f"ds_read_b64_tr_b16 v[{vWT+4*s_}:{vWT+4*s_+1}], v5 offset:{s_*1024}")
            a(f"ds_read_b64_tr_b16 v[{vWT+4*s_+2}:{vWT+4*s_+3}], v5 offset:{s_*1024+128}")
    else:
        for s_ in range(16):
            a(f"s_add_u32 m0, s{sWR}, {s_*1024}")
            a(f"s_mov_b32 s{sT0}, {s_*32*896}")
            a(f"buffer_load_dwordx4 v4, s[{sSRD0}:{sSRD0+3}], s{sT0} offen {wopol} lds")
        for s_ in range(16):
            a(f"s_waitcnt vmcnt({15-s_})")
            a(f"ds_read_b64_tr_b16 v[{vWT+4*s_}:{vWT+4*s_+1}], v5 offset:{s_*1024}")
            a(f"ds_read_b64_tr_b16 v[{vWT+4*s_+2}:{vWT+4*s_+3}], v5 offset:{s_*1024+128}")
    a("s_waitcnt lgkmcnt(0)")
    ts(0)
    a(f"s_cmp_lg_u32 s{sWAVE}, 0")
    a("s_cbranch_scc1 L_h_wait")
    if not wolate:
        a.lab("L_h_poll1")
        a(f"global_load_dword v8, v7, s[{sDBG}:{sDBG+1}] sc1")
        a("s_waitcnt vmcnt(0)")
        a("v_cmp_lt_u32 vcc, 0, v8")
        a("s_nop 1")
        a("s_cmp_lg_u64 vcc, 0")
        a("s_cbranch_scc1 L_h_poll")
        bound()
        a(f"s_sleep {hslow}")
        a("s_branch L_h_poll1")
    if hpipe:
        regs=[8]+[240+k for k in range(hpipe-1)]
        for k in range(hpipe-1):
            a(f"global_load_dword v{regs[k]}, v7, s[{sDBG}:{sDBG+1}] sc1")
            a(f"s_sleep {hstag}")
        a.lab("L_h_poll")
        for k in range(hpipe):
            a(f"global_load_dword v{regs[(k+hpipe-1)%hpipe]}, v7, s[{sDBG}:{sDBG+1}] sc1")
            a(f"s_waitcnt vmcnt({hpipe-1})")
            a(f"v_cmp_le_u32 vcc, 8, v{regs[k]}")
            a("s_nop 1")
            a("s_cmp_eq_u64 vcc, -1")
            a("s_cbranch_scc1 L_h_got")
        bound()
        a("s_branch L_h_poll")
        a.lab("L_h_got")
    else:
        a.lab("L_h_poll")
        a(f"global_load_dword v8, v7, s[{sDBG}:{sDBG+1}] sc1")
        a("s_waitcnt vmcnt(0)")
        a("v_cmp_le_u32 vcc, 8, v8")
        a("s_nop 1")
        a("s_cmp_eq_u64 vcc, -1")
        a("s_cbranch_scc1 L_h_wait")
        bound()
        if hmid:
            a("s_bcnt1_i32_b64 s56, vcc")
            a(f"s_cmp_ge_u32 s56, {hthr}")
            a("s_cbranch_scc1 L_h_poll")
            a(f"s_sleep {hmid}")
        elif hsleep: a(f"s_sleep {hsleep}")
        a("s_branch L_h_poll")
    a.lab("L_h_wait")
    a("s_barrier")
    ts(1)
    vOF=128
    for b in range(8):
        a(f"buffer_load_dwordx4 v[{vOF+4*b}:{vOF+4*b+3}], v6, s[{sSRD1}:{sSRD1+3}], s{sJ+b} offen sc1")
    for b in range(8):
        a(f"s_waitcnt vmcnt({7-b})")
        a(f"ds_write_b128 v9, v[{vOF+4*b}:{vOF+4*b+3}] offset:{b*1056}")
    vFR=160
    a("s_waitcnt lgkmcnt(0)")
    for s_ in range(16):
        a(f"ds_read_b128 v[{vFR+4*s_}:{vFR+4*s_+3}], v10 offset:{s_*64}")
    vAC=12
    PART=131072
    a(f"s_lshl_b32 s{sT0}, s{sWAVE}, 9")
    a(f"s_add_u32 s{sT0}, s{sT0}, {PART}")
    a(f"v_lshlrev_b32 v11, 8, v{vG}")
    a(f"v_lshl_add_u32 v11, v{vN}, 2, v11")
    a(f"v_add_u32 v11, s{sT0}, v11")
    for s_ in range(16):
        a(f"s_waitcnt lgkmcnt({15-s_})")
        acc=vAC+4*(s_&1)
        cin="0" if s_<2 else f"v[{acc}:{acc+3}]"
        a(f"v_mfma_f32_16x16x32_bf16 v[{acc}:{acc+3}], v[{vFR+4*s_}:{vFR+4*s_+3}], v[{vWT+4*s_}:{vWT+4*s_+3}], {cin}")
    ts(2)
    a("s_nop 7")
    for r in range(4): a(f"v_add_f32 v{vAC+r}, v{vAC+r}, v{vAC+4+r}")
    a("s_mov_b32 exec_hi, 0")
    for r in range(4): a(f"ds_write_b32 v11, v{vAC+r} offset:{r*64}")
    a("s_mov_b64 exec, -1")
    a("v_lshrrev_b32 v20, 3, v0")
    a("v_and_b32 v21, 7, v0")
    a("v_lshlrev_b32 v22, 6, v20")
    a("v_lshl_add_u32 v22, v21, 3, v22")
    a(f"v_add_u32 v22, {PART}, v22")
    a(f"s_mul_i32 s{sT0}, s{sISB}, 896")
    a(f"s_lshl_b32 s{sT1}, s{sH}, 5")
    a(f"s_add_u32 s{sT0}, s{sT0}, s{sT1}")
    a(f"v_mul_u32_u24 v23, 1792, v20")
    a(f"v_lshl_add_u32 v23, v21, 2, v23")
    a(f"v_add_u32 v23, s{sT0}, v23")
    a(f"s_mov_b32 s{sSRD0}, s{sOUT}")
    a(f"s_mov_b32 s{sSRD0+1}, s{sOUT+1}")
    a(f"s_mov_b32 s{sSRD0+2}, 14336")
    a(f"s_mov_b32 s{sSRD0+3}, 0x20000")
    a("s_waitcnt lgkmcnt(0)")
    a("s_barrier")
    a(f"s_cmp_lg_u32 s{sWAVE}, 0")
    a("s_cbranch_scc1 L_end")
    ts(3)
    for w in range(8): a(f"ds_read_b64 v[{24+2*w}:{25+2*w}], v22 offset:{w*512}")
    a("s_waitcnt lgkmcnt(0)")
    for w in (1,3,5,7):
        a(f"v_add_f32 v{24+2*(w-1)}, v{24+2*(w-1)}, v{24+2*w}")
        a(f"v_add_f32 v{25+2*(w-1)}, v{25+2*(w-1)}, v{25+2*w}")
    for w in (2,6):
        a(f"v_add_f32 v{24+2*(w-2)}, v{24+2*(w-2)}, v{24+2*w}")
        a(f"v_add_f32 v{25+2*(w-2)}, v{25+2*(w-2)}, v{25+2*w}")
    a("v_add_f32 v24, v24, v32")
    a("v_add_f32 v25, v25, v33")
    a("v_cvt_pk_bf16_f32 v24, v24, v25")
    a(f"buffer_store_dword v24, v23, s[{sSRD0}:{sSRD0+3}], 0 offen")
    ts(4)
    ts_dump([0,1,2,3,4,5])
    a("s_endpgm")
    a.lab("L_h_idle")
    a(f"s_cmp_lg_u32 s2, 230")
    a("s_cbranch_scc1 L_end")
    a(f"s_cmp_lg_u32 s{sWAVE}, 0")
    a("s_cbranch_scc1 L_end")
    a(f"s_load_dword s{sTAG}, s[{sWS}:{sWS+1}], {E_OFF}")
    if probe==-2: a("s_memrealtime s[60:61]")
    a("v_cmp_gt_u32 vcc, 8, v0")
    a("v_lshlrev_b32 v4, 2, v0")
    a("v_add_u32 v5, 96, v4          ; 128 + (lane-8)*4")
    a("v_cndmask_b32 v4, v5, v4, vcc")
    a("v_cmp_gt_u32 vcc, 24, v0")
    a("v_mov_b32 v5, 0")
    a("s_nop 0")
    a("v_cndmask_b32 v4, v5, v4, vcc")
    a("s_waitcnt lgkmcnt(0)")
    a(f"s_add_u32 s{sTAG}, s{sTAG}, 0x9e3779b1")
    a.lab("L_e_poll")
    a(f"global_load_dword v8, v4, s[{sDBG}:{sDBG+1}] sc1")
    a("s_waitcnt vmcnt(0)")
    a("v_cmp_le_u32 vcc, 8, v8")
    a("s_nop 1")
    a("s_cmp_eq_u64 vcc, -1")
    a("s_cbranch_scc1 L_e_done")
    bound()
    a("v_cmp_lt_u32 vcc, 0, v8")
    a("s_nop 1")
    a("s_cmp_lg_u64 vcc, 0")
    a("s_cbranch_scc1 L_e_fast")
    a("s_sleep 32")
    a.lab("L_e_fast")
    a("s_sleep 4")
    a("s_branch L_e_poll")
    a.lab("L_e_done")
    a(f"v_mov_b32 v4, {E_OFF}")
    a(f"v_mov_b32 v5, s{sTAG}")
    a("s_mov_b64 exec, 1")
    a(f"global_store_dword v4, v5, s[{sWS}:{sWS+1}]")
    a.lab("L_end")
    a("s_endpgm")
    body=a.text()
    hdr=open("cdna_kernels/"+NAME+".s.ref").read().split("\n")
    head=[l for l in hdr if l.startswith(";") and "@launch" not in l and "Override launch" not in l and "grid=ceil" not in l]
    out="\n".join(head)+"\n"
    out+=f"; @launch grid=(256,1,1) block=(512,1,1) lds={LDS}\n"
    out+=DOC
    out+=f""".amdgcn_target "amdgcn-amd-amdhsa--gfx950"
.text
.globl {KN}
.p2align 8
.type {KN},@function
"""
    out+=body
    out+=f""".section .rodata,"a"
.p2align 6
.amdhsa_kernel {KN}
  .amdhsa_next_free_vgpr 256
  .amdhsa_next_free_sgpr 96
  .amdhsa_accum_offset 256
  .amdhsa_group_segment_fixed_size 0
  .amdhsa_kernarg_size 104
  .amdhsa_user_sgpr_count 2
  .amdhsa_user_sgpr_kernarg_segment_ptr 1
  .amdhsa_system_sgpr_workgroup_id_x 1
.end_amdhsa_kernel
"""
    return out, LDS

DOC=""";
"""
META=""".amdgpu_metadata
---
amdhsa.version: [1, 2]
amdhsa.kernels:
  - .name: {KN}
    .symbol: {KN}.kd
    .kernarg_segment_size: 104
    .kernarg_segment_align: 8
    .group_segment_fixed_size: 0
    .private_segment_fixed_size: 0
    .wavefront_size: 64
    .sgpr_count: 102
    .vgpr_count: 256
    .max_flat_workgroup_size: 512
    .args:
      - {{.name: kernargs, .size: 104, .offset: 0, .value_kind: by_value}}
...
.end_amdgpu_metadata
"""
if __name__=="__main__":
    import argparse
    ap=argparse.ArgumentParser()
    ap.add_argument("-o",default="cdna_kernels/"+NAME+".s")
    ap.add_argument("--diag",action="store_true")
    ap.add_argument("--meta",action="store_true")
    ap.add_argument("--D",type=int,default=40)
    ap.add_argument("--NS",type=int,default=17)
    ap.add_argument("--pol",default="nt")
    ap.add_argument("--wqpol",default="nt")
    ap.add_argument("--wopol",default="nt")
    ap.add_argument("--hsleep",type=int,default=2)
    ap.add_argument("--hslow",type=int,default=16)
    ap.add_argument("--qsleep",type=int,default=16)
    ap.add_argument("--spin",type=int,default=0)
    ap.add_argument("--wolate",type=int,default=1)
    ap.add_argument("--DB",type=int,default=0)
    ap.add_argument("--worot",type=int,default=0)
    ap.add_argument("--hpipe",type=int,default=0)
    ap.add_argument("--bx",type=int,default=0)
    ap.add_argument("--wsl",type=int,default=24)
    ap.add_argument("--wlast",type=int,default=500)
    ap.add_argument("--hmid",type=int,default=32)
    ap.add_argument("--hthr",type=int,default=48)
    ap.add_argument("--hstag",type=int,default=5)
    ap.add_argument("--trig",type=int,default=480)
    args=ap.parse_args()
    s,lds=gen(D=args.D,NS=args.NS,diag=args.diag,pol=args.pol,wqpol=args.wqpol,wopol=args.wopol,hsleep=args.hsleep,hslow=args.hslow,
              qsleep=args.qsleep,spin_sleep=args.spin,wolate=bool(args.wolate),trig=args.trig,DB=args.DB,worot=args.worot,hpipe=args.hpipe,hstag=args.hstag,hmid=args.hmid,hthr=args.hthr,wsl=args.wsl,wlast=args.wlast,bx=bool(args.bx))
    if args.meta: s+=META.format(KN=KN)
    open(args.o,"w").write(s)
    print("wrote",args.o,"lds",lds)
```

```python
import sys, struct
NAME="concat_heads__gqa_block_cached__mha_block_cached__decode"
KN=NAME+"_kernel"

class Asm:
    def __init__(s): s.L=[]; s.uid=0
    def __call__(s,x): s.L.append("  "+x)
    def lab(s,x): s.L.append(x+":")
    def c(s,x): s.L.append("  ; "+x)
    def new(s,p): s.uid+=1; return f"L_{p}_{s.uid}"
    def text(s): return "\n".join(s.L)+"\n"

def gen(D=40, NS=17, diag=False, pol="nt", spin_sleep=0, wqpol="nt", wopol="nt", hsleep=2, hslow=32, qsleep=16,
        wolate=True, probe=-1, trig=0, DB=0, worot=0, pst=(24,64,128,192), hpipe=0, hstag=5, hmid=0, hthr=40, wsl=0, wlast=500, bx=False, outpol='', noq=0, early=False, hfast=0):
    a=Asm()
    RING=0; RINGB=NS*8192
    SBUF=RINGB
    MISC=SBUF+16384
    QPART=(NS-4)*8192
    FULL=0; DONE=16; CQ1=32; CQ2=36; CMX=40; CFIN=44; RDY=48
    QL=256; MX=1280; LS=1408
    LDS=MISC+2048
    assert LDS<=163840
    CEXP=struct.unpack("<I",struct.pack("<f",1.4426950408889634/16.0))[0]
    O_OFF=0
    E_OFF=0x30004
    QP_OFF=0x100000
    TS_OFF=0x20000000
    sWAVE=3; sX=4; sSLOT=5; sB=6; sGRP=7; sKA=8
    sPAIR=10; sH=11; sISB=12; sT0=13; sT1=14; sT2=15
    sP0=16
    sDBG=20
    sWS=22
    sOUT=24
    sTAG=26
    sSRD0=28; sSRD1=32
    sTS1=42
    sW1=54
    sSP=27
    sKG=64
    sWOA=36; sWOB=38
    sTSB=76
    def ts(slot):
        if not diag: return
        a(f"s_memrealtime s[{sTSB+2*slot}:{sTSB+2*slot+1}]")
        a("s_waitcnt lgkmcnt(0)")
    def ts_dump(slots):
        if not diag: return
        a(f"s_load_dwordx2 s[{sTS1}:{sTS1+1}], s[0:1], 96")
        a("s_waitcnt lgkmcnt(0)")
        a(f"s_add_u32 s{sTS1}, s{sTS1}, {TS_OFF}")
        a(f"s_addc_u32 s{sTS1+1}, s{sTS1+1}, 0")
        a(f"s_lshl_b32 s44, s2, 7")
        a(f"v_mov_b32 v250, s44")
        a(f"s_mov_b64 exec, 1")
        for slot in slots:
            a(f"v_mov_b32 v252, s{sTSB+2*slot}")
            a(f"v_mov_b32 v253, s{sTSB+2*slot+1}")
            a(f"global_store_dwordx2 v250, v[252:253], s[{sTS1}:{sTS1+1}] offset:{slot*8}")
            a("s_nop 1")
    def bound():
        a(f"s_add_u32 s{sSP}, s{sSP}, 1")
        a(f"s_cmp_gt_u32 s{sSP}, 0x400000")
        a("s_cbranch_scc1 L_end")
    def spin_ge(vaddr, off, target, vt, st=sT0):
        L=a.new("spin"); E=a.new("spun")
        a.lab(L)
        a(f"ds_read_b32 v{vt}, v{vaddr} offset:{off}")
        a("s_waitcnt lgkmcnt(0)")
        a(f"v_readfirstlane_b32 s{st}, v{vt}")
        a(f"s_cmp_ge_u32 s{st}, {target}")
        a(f"s_cbranch_scc1 {E}")
        bound()
        if spin_sleep: a(f"s_sleep {spin_sleep}")
        a(f"s_branch {L}")
        a.lab(E)
    def signal(vaddr, off, vone):
        a("s_waitcnt lgkmcnt(0)")
        a("s_mov_b64 exec, 1")
        a(f"ds_add_u32 v{vaddr}, v{vone} offset:{off}")
        a("s_mov_b64 exec, -1")
    def attn_decode():
        if bx:
            a(f"s_and_b32 s{sB}, s2, 7")
            a(f"s_lshr_b32 s{sSLOT}, s2, 3")
            a(f"s_cmp_ge_u32 s{sSLOT}, 8")
            a(f"s_cselect_b32 s{sISB}, 1, 0")
            a(f"s_cselect_b32 s{sT1}, 8, 0")
            a(f"s_sub_u32 s{sH}, s{sSLOT}, s{sT1}")
            a(f"s_add_u32 s{sT1}, s{sISB}, 3")
            a(f"s_lshl_b32 s{sPAIR}, s{sB}, s{sT1}")
            a(f"s_add_u32 s{sPAIR}, s{sPAIR}, s{sH}")
            return
        a(f"s_and_b32 s{sX}, s2, 7")
        a(f"s_lshr_b32 s{sSLOT}, s2, 3")
        a(f"s_and_b32 s{sB}, s{sSLOT}, 7")
        a(f"s_lshr_b32 s{sGRP}, s{sSLOT}, 3")
        a(f"s_cmp_lg_u32 s{sGRP}, 0")
        a(f"s_cselect_b32 s{sISB}, 1, 0")
        a(f"s_lshr_b32 s{sT1}, s{sGRP}, 1")
        a(f"s_lshl_b32 s{sT1}, s{sT1}, 3")
        a(f"s_add_u32 s{sH}, s{sX}, s{sT1}")
        a(f"s_add_u32 s{sT1}, s{sISB}, 3")
        a(f"s_lshl_b32 s{sPAIR}, s{sB}, s{sT1}")
        a(f"s_add_u32 s{sPAIR}, s{sPAIR}, s{sH}")
    def zero_flags(vz,va):
        a(f"v_mov_b32 v{vz}, 0")
        a(f"v_lshlrev_b32 v{va}, 2, v0")
        a(f"v_add_u32 v{va}, {MISC}, v{va}")
        a(f"ds_write_b32 v{va}, v{vz}")

    a.lab(KN)
    a(f"s_load_dwordx16 s[{sKG}:{sKG+15}], s[0:1], 0")
    a(f"s_load_dwordx8 s[{sKG+16}:{sKG+23}], s[0:1], 64")
    a(f"s_load_dwordx2 s[{sKG+24}:{sKG+25}], s[0:1], 96")
    a("s_cmp_ge_u32 s2, 256")
    a("s_cbranch_scc1 L_end")
    a("v_lshrrev_b32 v1, 6, v0")
    a("v_and_b32 v0, 63, v0")
    a(f"s_mov_b32 s{sSP}, 0")
    a(f"v_readfirstlane_b32 s{sWAVE}, v1")
    a(f"s_cmp_eq_u32 s{sWAVE}, 0")
    a("s_cbranch_scc1 L_w0")
    a.c("---------------- distributed q projection ----------------")
    a(f"s_sub_u32 s{sW1}, s{sWAVE}, 1")
    vN=2; vG=3; vS16=4; vXO=8; vWO=9; vX=10; vFL=14; vONE=15; vAO=16; vAC=24; vWq=40
    a(f"v_and_b32 v{vN}, 15, v0")
    a(f"v_lshrrev_b32 v{vG}, 4, v0")
    a(f"s_and_b32 s{sT0}, s2, 3")
    a(f"s_mul_i32 s{sT0}, s{sT0}, 112")
    a(f"s_lshl_b32 s{sT1}, s{sW1}, 4")
    a(f"s_add_u32 s{sT0}, s{sT0}, s{sT1}       ; row0")
    a(f"v_lshl_add_u32 v16, v{vG}, 2, s{sT0}    ; row0+4g")
    a(f"v_lshrrev_b32 v{vXO}, 2, v{vN}")
    a(f"v_mul_u32_u24 v{vXO}, 896, v{vXO}")
    a(f"v_lshl_add_u32 v{vXO}, v16, 1, v{vXO}")
    a(f"s_lshr_b32 s{sT1}, s2, 2")
    a(f"s_and_b32 s{sT1}, s{sT1}, 31")
    a(f"s_lshl_b32 s{sT1}, s{sT1}, 8")
    a(f"v_lshlrev_b32 v{vWO}, 13, v16")
    a(f"v_lshl_add_u32 v{vWO}, v{vN}, 4, v{vWO}")
    a(f"v_add_u32 v{vWO}, s{sT1}, v{vWO}")
    a(f"s_mov_b32 s56, 8192")
    a(f"s_mov_b32 s57, 16384")
    a(f"s_mov_b32 s58, 24576")
    a(f"v_mov_b32 v{vFL}, {MISC}")
    a(f"v_mov_b32 v{vONE}, 1")
    a("s_waitcnt lgkmcnt(0)")
    a("s_cmp_ge_u32 s2, 128")
    a(f"s_cselect_b32 s{sSRD1}, s{sKG+16}, s{sKG+6}       ; wq")
    a(f"s_cselect_b32 s{sSRD1+1}, s{sKG+17}, s{sKG+7}")
    a(f"s_cselect_b32 s{sSRD0}, s{sKG+10}, s{sKG+0}       ; x")
    a(f"s_cselect_b32 s{sSRD0+1}, s{sKG+11}, s{sKG+1}")
    a(f"s_mov_b32 s{sSRD1+2}, 3670016")
    a(f"s_mov_b32 s{sSRD1+3}, 0x20000")
    a(f"s_mov_b32 s{sSRD0+2}, 7168")
    a(f"s_mov_b32 s{sSRD0+3}, 0x20000")
    so=["0","s56","s57","s58"]
    for j in range(4):
        a(f"buffer_load_dwordx4 v[{vWq+4*j}:{vWq+4*j+3}], v{vWO}, s[{sSRD1}:{sSRD1+3}], {so[j]} offen {wqpol}")
    for u in range(2):
        a(f"buffer_load_dwordx2 v[{vX+2*u}:{vX+2*u+1}], v{vXO}, s[{sSRD0}:{sSRD0+3}], 0 offen offset:{u*3584}")
    a(f"s_load_dword s{sTAG}, s[{sKG+24}:{sKG+25}], {E_OFF}")
    a("s_barrier")
    a(f"s_mov_b64 s[{sDBG}:{sDBG+1}], s[{sKG+22}:{sKG+23}]")
    a(f"s_mov_b64 s[{sWS}:{sWS+1}], s[{sKG+24}:{sKG+25}]")
    a(f"s_mov_b64 s[{sOUT}:{sOUT+1}], s[{sKG+20}:{sKG+21}]")
    a(f"s_mov_b64 s[{sWOA}:{sWOA+1}], s[{sKG+8}:{sKG+9}]")
    a(f"s_mov_b64 s[{sWOB}:{sWOB+1}], s[{sKG+18}:{sKG+19}]")
    a(f"v_and_b32 v16, 1, v{vN}")
    a(f"v_cmp_eq_u32 vcc, 1, v16")
    a(f"v_mov_b32 v17, 0x0c0c0100")
    a(f"v_mov_b32 v18, 0x01000c0c")
    a(f"v_cndmask_b32 v17, v17, v18, vcc")
    a(f"v_mov_b32 v18, 0x0c0c0302")
    a(f"v_mov_b32 v19, 0x03020c0c")
    a(f"v_cndmask_b32 v18, v18, v19, vcc")
    a(f"v_bfe_u32 v16, v{vN}, 1, 1")
    a(f"v_mov_b32 v19, 0x0c0c0c0c")
    for t in range(2):
        a(f"v_cmp_eq_u32 vcc, {t}, v16")
        a("s_nop 1")
        a(f"v_cndmask_b32 v{vS16+t}, v19, v17, vcc")
        a(f"v_cndmask_b32 v{vS16+2+t}, v19, v18, vcc")
    a(f"s_lshl_b32 s{sT0}, s{sW1}, 12")
    a(f"s_add_u32 s{sT0}, s{sT0}, {QPART}")
    a(f"v_lshlrev_b32 v56, 9, v{vG}")
    a(f"v_lshl_add_u32 v56, v{vN}, 5, v56")
    a(f"v_add_u32 v56, s{sT0}, v56")
    a("s_waitcnt vmcnt(0)")
    for j in range(4):
        for u in range(2):
            ao=vAO+4*(j&1)+2*u
            for t in range(2):
                a(f"v_perm_b32 v{ao+t}, v{vX+2*u+(j>>1)}, v{vX+2*u+(j>>1)}, v{vS16+2*(j&1)+t}")
        a("s_nop 0")
        for u in range(2):
            ao=vAO+4*(j&1)+2*u
            for hf in range(2):
                acc=vAC+8*u+4*hf
                cin="0" if j==0 else f"v[{acc}:{acc+3}]"
                a(f"v_mfma_f32_16x16x16_bf16 v[{acc}:{acc+3}], v[{ao}:{ao+1}], v[{vWq+4*j+2*hf}:{vWq+4*j+2*hf+1}], {cin}")
    ts(8)
    a("s_nop 7")
    a("s_nop 0")
    for u in range(2):
        for hf in range(2):
            acc=vAC+8*u+4*hf
            a(f"ds_write_b128 v56, v[{acc}:{acc+3}] offset:{u*2048+hf*16}")
    signal(vFL,CQ1,vONE)
    a(f"s_cmp_gt_u32 s{sWAVE}, 4")
    a("s_cbranch_scc0 L_qred")
    a("s_cmp_ge_u32 s2, 192")
    a("s_cbranch_scc1 L_hout")
    a("s_endpgm")
    a.lab("L_qred")
    vT=24
    a("v_lshrrev_b32 v16, 5, v0")
    a("v_and_b32 v17, 31, v0")
    a(f"s_lshl_b32 s{sT0}, s{sW1}, 1")
    a(f"v_add_u32 v16, s{sT0}, v16           ; batch")
    a(f"v_lshlrev_b32 v18, 9, v16")
    a(f"v_lshl_add_u32 v18, v17, 4, v18")
    a(f"v_add_u32 v18, {QPART}, v18")
    a(f"s_lshl_b32 s{sT0}, s2, 13")
    a(f"s_add_u32 s{sT0}, s{sT0}, {QP_OFF}")
    a(f"v_lshlrev_b32 v19, 10, v16")
    a(f"v_lshl_add_u32 v19, v17, 4, v19")
    a(f"v_add_u32 v19, s{sT0}, v19")
    spin_ge(vFL,CQ1,7,vT)
    for w in range(7):
        a(f"ds_read_b128 v[{40+4*w}:{43+4*w}], v18 offset:{w*4096}")
    a(f"s_add_u32 s{sTAG}, s{sTAG}, 0x9e3779b1")
    a(f"s_lshl_b32 s{sT0}, s{sW1}, 2")
    a(f"s_add_u32 s{sT0}, s{sT0}, {MISC+DONE}")
    a(f"v_mov_b32 v20, s{sT0}")
    a("s_waitcnt lgkmcnt(0)")
    a(f"ds_write_b32 v20, v{vONE}")
    for k in range(4):
        a(f"v_add_f32 v{40+k}, v{40+k}, v{44+k}")
        a(f"v_add_f32 v{48+k}, v{48+k}, v{52+k}")
        a(f"v_add_f32 v{56+k}, v{56+k}, v{60+k}")
    for k in range(4):
        a(f"v_add_f32 v{40+k}, v{40+k}, v{48+k}")
        a(f"v_add_f32 v{56+k}, v{56+k}, v{64+k}")
    for k in range(4):
        a(f"v_add_f32 v{68+2*k}, v{40+k}, v{56+k}")
        a(f"v_mov_b32 v{69+2*k}, s{sTAG}")
    if noq!=1:
        a(f"global_store_dwordx4 v19, v[68:71], s[{sWS}:{sWS+1}] sc1")
        a(f"global_store_dwordx4 v19, v[72:75], s[{sWS}:{sWS+1}] offset:512 sc1")
    ts(9)
    a("s_cmp_ge_u32 s2, 192")
    a("s_cbranch_scc1 L_hout")
    a.c("---------------- consumers ----------------")
    attn_decode()
    vSEL=4
    a(f"v_and_b32 v16, 7, v{vN}")
    a(f"v_lshrrev_b32 v17, 1, v16      ; te")
    a(f"v_and_b32 v16, 1, v16          ; par")
    a(f"v_cmp_eq_u32 vcc, 1, v16")
    a(f"v_mov_b32 v18, 0x0c0c0100")
    a(f"v_mov_b32 v19, 0x01000c0c")
    a(f"v_cndmask_b32 v18, v18, v19, vcc")
    a(f"v_mov_b32 v19, 0x0c0c0302")
    a(f"v_mov_b32 v20, 0x03020c0c")
    a(f"v_cndmask_b32 v19, v19, v20, vcc")
    a(f"v_mov_b32 v20, 0x0c0c0c0c")
    for t in range(4):
        a(f"v_cmp_eq_u32 vcc, {t}, v17")
        a("s_nop 1")
        a(f"v_cndmask_b32 v{vSEL+t}, v20, v18, vcc")
        a(f"v_cndmask_b32 v{vSEL+4+t}, v20, v19, vcc")
    a(f"s_cmp_eq_u32 s{sISB}, 1")
    a("s_cbranch_scc0 L_qg")
    a(f"s_cmp_ge_u32 s{sW1}, 2")
    a("s_cbranch_scc1 L_qg_done")
    a.lab("L_qg")
    a(f"s_sub_u32 s{sT1}, 2, s{sISB}")
    a(f"s_lshl_b32 s{sT0}, s{sH}, s{sT1}")
    a(f"s_add_u32 s{sT0}, s{sT0}, s{sW1}      ; c")
    a(f"s_lshl_b32 s{sT1}, s{sISB}, 5")
    a(f"s_add_u32 s{sT0}, s{sT0}, s{sT1}      ; m*32+c")
    a(f"s_lshl_b32 s{sT0}, s{sT0}, 15         ; *4*8192")
    a(f"s_lshl_b32 s{sT1}, s{sB}, 10")
    a(f"s_add_u32 s{sT0}, s{sT0}, s{sT1}")
    a(f"s_add_u32 s{sT0}, s{sT0}, {QP_OFF}")
    a(f"v_lshlrev_b32 v16, 4, v0")
    a(f"v_add_u32 v16, s{sT0}, v16")
    for kq in range(1,4): a(f"v_add_u32 v{16+kq}, {kq*8192}, v16")
    PA=160; PB=176
    def issue(base):
        for kq in range(4):
            a(f"global_load_dwordx4 v[{base+4*kq}:{base+4*kq+3}], v{16+kq}, s[{sWS}:{sWS+1}] sc1")
    def check(base,lab):
        a(f"v_xor_b32 v20, s{sTAG}, v{base+1}")
        for r in (3,5,7,9,11,13,15):
            a(f"v_xor_b32 v21, s{sTAG}, v{base+r}")
            a(f"v_or_b32 v20, v20, v21")
        a("v_cmp_eq_u32 vcc, 0, v20")
        a("s_nop 1")
        a("s_cmp_eq_u64 vcc, -1")
        if noq: a(f"s_branch {lab}")
        a(f"s_cbranch_scc1 {lab}")
    def qsum(base):
        a(f"v_add_f32 v32, v{base}, v{base+4}")
        a(f"v_add_f32 v34, v{base+2}, v{base+6}")
        a(f"v_add_f32 v40, v{base+8}, v{base+12}")
        a(f"v_add_f32 v42, v{base+10}, v{base+14}")
    issue(PA)
    if qsleep: a(f"s_sleep {qsleep}")
    a.lab("L_qg_poll")
    issue(PB)
    a("s_waitcnt vmcnt(4)")
    check(PA,"L_qg_gotA")
    issue(PA)
    a("s_waitcnt vmcnt(4)")
    check(PB,"L_qg_gotB")
    bound()
    a("s_branch L_qg_poll")
    a.lab("L_qg_gotB")
    qsum(PB)
    a("s_branch L_qg_got")
    a.lab("L_qg_gotA")
    qsum(PA)
    a.lab("L_qg_got")
    a("v_add_f32 v32, v32, v40")
    a("v_add_f32 v34, v34, v42")
    a("v_cvt_pk_bf16_f32 v32, v32, v34")
    a("v_and_b32 v20, 31, v0")
    a("v_lshrrev_b32 v21, 5, v0")
    a("v_lshlrev_b32 v20, 3, v20")
    a("v_lshl_add_u32 v20, v21, 2, v20")
    a(f"s_lshl_b32 s{sT0}, s{sW1}, 8")
    a(f"s_add_u32 s{sT0}, s{sT0}, {MISC+QL}")
    a(f"v_add_u32 v20, s{sT0}, v20")
    a("ds_write_b32 v20, v32")
    a.lab("L_qg_done")
    ts(7)
    signal(vFL,CQ2,vONE)
    vKA=64; vKF=72; vS=104
    vMAX=108; vSA=109; vDN=110; vDV=111; vQH=112
    a(f"v_lshrrev_b32 v{vQH}, 3, v{vN}       ; qh")
    for s in range(4):
        a(f"v_and_b32 v26, 12, v{vN}")
        a(f"v_xor_b32 v26, {4*s}, v26")
        a(f"v_and_b32 v27, 3, v{vN}")
        a(f"v_xor_b32 v27, v27, v{vG}")
        a(f"v_add_u32 v26, v26, v27")
        a(f"v_lshlrev_b32 v26, 4, v26")
        a(f"v_lshl_add_u32 v{vKA+s}, v{vN}, 9, v26")
    a(f"s_lshl_b32 s{sT0}, s{sW1}, 12")
    a(f"s_add_u32 s{sT0}, s{sT0}, {SBUF}")
    a(f"v_lshlrev_b32 v{vSA}, 5, v{vQH}")
    a(f"v_lshl_add_u32 v{vSA}, v{vG}, 3, v{vSA}")
    a(f"v_add_u32 v{vSA}, s{sT0}, v{vSA}")
    a(f"v_mov_b32 v{vMAX}, 0xff800000")
    a(f"s_lshl_b32 s{sT0}, s{sW1}, 2")
    a(f"s_add_u32 s{sT0}, s{sT0}, {MISC+DONE}")
    a(f"v_mov_b32 v{vDN}, s{sT0}")
    sTT=48; sFU=49; sSLO=50; sJ1=51; sMASK=52; sC=55
    a(f"s_mov_b32 s{sTT}, s{sW1}")
    a(f"s_mov_b32 s{sFU}, 0")
    a(f"s_lshl_b32 s{sSLO}, s{sW1}, 13")
    a(f"s_mov_b32 s{sJ1}, 2")
    a(f"s_mov_b32 s{sMASK}, 0x01010101")
    a(f"s_mov_b32 s{sMASK+1}, 0x01010101")
    vQF=32
    a(f"s_cmp_eq_u32 s{sISB}, 1")
    a(f"s_cselect_b32 s{sT0}, 0, 512")
    a(f"v_mul_lo_u32 v26, v{vQH}, s{sT0}")
    a(f"v_lshl_add_u32 v26, v{vG}, 4, v26")
    a(f"v_add_u32 v26, {MISC+QL}, v26")
    spin_ge(vFL,CQ2,4,vT)
    for s in range(8):
        a(f"ds_read_b128 v[{vQF+4*s}:{vQF+4*s+3}], v26 offset:{s*64}")
    a("s_waitcnt lgkmcnt(0)")
    ts(3)
    def wait_full(tag):
        Lg=f"L_{tag}_go"; Ls=f"L_{tag}_spin"
        a(f"s_cmp_gt_i32 s{sFU}, s{sTT}")
        a(f"s_cbranch_scc1 {Lg}")
        a.lab(Ls)
        a(f"ds_read_b32 v{vT}, v{vFL} offset:{FULL}")
        a("s_waitcnt lgkmcnt(0)")
        a(f"v_readfirstlane_b32 s{sFU}, v{vT}")
        a(f"s_cmp_gt_i32 s{sFU}, s{sTT}")
        a(f"s_cbranch_scc1 {Lg}")
        bound()
        if wsl:
            a(f"s_cmp_ge_u32 s{sTT}, {wlast}")
            a(f"s_cbranch_scc1 {Ls}")
            a(f"s_sleep {wsl}")
        elif spin_sleep: a(f"s_sleep {spin_sleep}")
        a(f"s_branch {Ls}")
        a.lab(Lg)
    def advance():
        a(f"s_add_u32 s{sTT}, s{sTT}, 4")
        a(f"s_add_u32 s{sSLO}, s{sSLO}, {4*8192}")
        a(f"s_cmp_ge_u32 s{sSLO}, {RINGB}")
        a(f"s_cselect_b32 s{sT0}, {RINGB}, 0")
        a(f"s_sub_u32 s{sSLO}, s{sSLO}, s{sT0}")
        a(f"s_add_u32 s{sJ1}, s{sJ1}, 1")
    a.lab("L_K")
    for s in range(4): a(f"v_add_u32 v{vKA+4+s}, s{sSLO}, v{vKA+s}")
    a(f"v_mov_b32 v{vDV}, s{sJ1}")
    wait_full("K")
    for s in range(8):
        a(f"ds_read_b128 v[{vKF+4*s}:{vKF+4*s+3}], v{vKA+4+(s&3)} offset:{RING+(s>>2)*256}")
    for s in range(8):
        a(f"s_waitcnt lgkmcnt({7-s})")
        if s==7: a(f"ds_write_b32 v{vDN}, v{vDV}")
        cin="0" if s==0 else f"v[{vS}:{vS+3}]"
        a(f"v_mfma_f32_16x16x32_bf16 v[{vS}:{vS+3}], v[{vKF+4*s}:{vKF+4*s+3}], v[{vQF+4*s}:{vQF+4*s+3}], {cin}")
    advance()
    a("s_nop 3")
    a(f"v_max3_f32 v{vMAX}, v{vMAX}, v{vS}, v{vS+1}")
    a(f"v_max3_f32 v{vMAX}, v{vMAX}, v{vS+2}, v{vS+3}")
    a(f"v_cvt_pk_bf16_f32 v{vS}, v{vS}, v{vS+1}")
    a(f"v_cvt_pk_bf16_f32 v{vS+1}, v{vS+2}, v{vS+3}")
    a(f"s_mov_b64 exec, s[{sMASK}:{sMASK+1}]")
    a(f"ds_write_b64 v{vSA}, v[{vS}:{vS+1}]")
    a("s_mov_b64 exec, -1")
    a(f"v_add_u32 v{vSA}, 64, v{vSA}")
    a(f"s_cmp_lt_u32 s{sTT}, 256")
    a("s_cbranch_scc1 L_K")
    ts(4)
    a(f"s_lshl_b32 s{sT0}, s{sW1}, 4")
    a(f"s_add_u32 s{sT0}, s{sT0}, {MISC+MX}")
    a(f"v_lshlrev_b32 v26, 6, v{vQH}")
    a(f"v_lshl_add_u32 v27, v{vG}, 2, v26")
    a(f"v_add_u32 v27, s{sT0}, v27")
    a(f"s_mov_b64 exec, s[{sMASK}:{sMASK+1}]")
    a(f"ds_write_b32 v27, v{vMAX}")
    a("s_mov_b64 exec, -1")
    signal(vFL,CMX,vONE)
    spin_ge(vFL,CMX,4,vT)
    a(f"v_add_u32 v26, {MISC+MX}, v26")
    for k in range(4): a(f"ds_read_b128 v[{72+4*k}:{75+4*k}], v26 offset:{k*16}")
    a(f"v_subrev_u32 v{vSA}, {64*64}, v{vSA}")
    a("s_waitcnt lgkmcnt(0)")
    a("v_max3_f32 v72, v72, v73, v74")
    for k in range(75,87,2): a(f"v_max3_f32 v72, v72, v{k}, v{k+1}")
    a("v_max_f32 v72, v72, v87")
    a("v_cvt_pk_bf16_f32 v72, v72, v72")
    a("v_and_b32 v72, 0xffff0000, v72")
    vNM=113; vL=114; vVA=115; vVC=116; vW=118
    a(f"s_mov_b32 s{sC}, {CEXP:#x}")
    a(f"v_mul_f32 v{vNM}, s{sC}, v72")
    a(f"v_sub_f32 v{vNM}, 0, v{vNM}")
    a(f"v_mov_b32 v{vL}, 0")
    a(f"v_lshlrev_b32 v{vVA}, 11, v{vG}")
    a(f"v_lshl_add_u32 v{vVA}, v{vN}, 4, v{vVA}")
    vO=120
    for k in range(8): a(f"v_mov_b32 v{vO+k}, 0")
    vVF=72; vP=104; vAP=128
    sTR=56; vTRA=117
    if trig:
        a(f"s_cmp_eq_u32 s{sW1}, 0")
        a(f"s_cselect_b32 s{sTR}, {trig}, 0")
        a(f"v_mov_b32 v{vTRA}, 64")
    a.lab("L_V")
    a(f"ds_read_b64 v[{vW}:{vW+1}], v{vSA}")
    a(f"v_add_u32 v{vVC}, s{sSLO}, v{vVA}")
    a(f"v_add_u32 v{vSA}, 64, v{vSA}")
    a(f"v_mov_b32 v{vDV}, s{sJ1}")
    a("s_waitcnt lgkmcnt(0)")
    a(f"v_lshlrev_b32 v{vP}, 16, v{vW}")
    a(f"v_and_b32 v{vP+1}, 0xffff0000, v{vW}")
    a(f"v_lshlrev_b32 v{vP+2}, 16, v{vW+1}")
    a(f"v_and_b32 v{vP+3}, 0xffff0000, v{vW+1}")
    for r in range(4): a(f"v_fma_f32 v{vP+r}, v{vP+r}, s{sC}, v{vNM}")
    for r in range(4): a(f"v_exp_f32 v{vP+r}, v{vP+r}")
    a("s_nop 0")
    a(f"v_cvt_pk_bf16_f32 v{vW}, v{vP}, v{vP+1}")
    a(f"v_cvt_pk_bf16_f32 v{vW+1}, v{vP+2}, v{vP+3}")
    a(f"v_add_f32 v{vP}, v{vP}, v{vP+1}")
    a(f"v_add_f32 v{vP+2}, v{vP+2}, v{vP+3}")
    a(f"v_add_f32 v{vL}, v{vL}, v{vP}")
    a(f"v_add_f32 v{vL}, v{vL}, v{vP+2}")
    for r in range(4):
        for t in range(4):
            a(f"v_perm_b32 v{vAP+4*r+t}, v{vW+(r>>1)}, v{vW+(r>>1)}, v{vSEL+4*(r&1)+t}")
    wait_full("V")
    for r in range(4):
        for h in range(2):
            b=vVF+4*(2*r+h)
            a(f"ds_read_b128 v[{b}:{b+3}], v{vVC} offset:{RING+r*512+h*256}")
    k=0
    for r in range(4):
        for h in range(2):
            b=vVF+4*(2*r+h)
            a(f"s_waitcnt lgkmcnt({7-k})")
            if k==7: a(f"ds_write_b32 v{vDN}, v{vDV}")
            a(f"v_mfma_f32_16x16x32_bf16 v[{vO+4*h}:{vO+4*h+3}], v[{vAP+4*r}:{vAP+4*r+3}], v[{b}:{b+3}], v[{vO+4*h}:{vO+4*h+3}]")
            k+=1
    advance()
    if trig:
        a(f"s_cmp_lg_u32 s{sTR}, s{sTT}")
        a("s_cbranch_scc1 L_notrig")
        a("s_mov_b64 exec, 1")
        a(f"global_atomic_add v{vTRA}, v{vONE}, s[{sDBG}:{sDBG+1}] sc1")
        a("s_mov_b64 exec, -1")
        a.lab("L_notrig")
    a(f"s_cmp_lt_u32 s{sTT}, 512")
    a("s_cbranch_scc1 L_V")
    ts(5)
    a(f"s_lshl_b32 s{sT0}, s{sW1}, 12")
    a(f"s_add_u32 s{sT0}, s{sT0}, {SBUF}")
    a(f"v_lshrrev_b32 v26, 1, v{vG}")
    a(f"v_lshlrev_b32 v26, 10, v26")
    a(f"v_and_b32 v27, 1, v{vG}")
    a(f"v_lshl_add_u32 v26, v27, 4, v26")
    a(f"v_lshl_add_u32 v26, v{vN}, 5, v26")
    a(f"v_add_u32 v26, s{sT0}, v26")
    a(f"s_lshl_b32 s{sT0}, s{sW1}, 4")
    a(f"s_add_u32 s{sT0}, s{sT0}, {MISC+LS}")
    a(f"v_lshlrev_b32 v27, 6, v{vQH}")
    a(f"v_lshl_add_u32 v27, v{vG}, 2, v27")
    a(f"v_add_u32 v27, s{sT0}, v27")
    a("s_nop 1")
    a(f"ds_write_b128 v26, v[{vO}:{vO+3}]")
    a(f"ds_write_b128 v26, v[{vO+4}:{vO+7}] offset:512")
    a(f"s_mov_b64 exec, s[{sMASK}:{sMASK+1}]")
    a(f"ds_write_b32 v27, v{vL}")
    a("s_mov_b64 exec, -1")
    a("s_waitcnt lgkmcnt(0)")
    a("s_mov_b64 exec, 1")
    a(f"ds_add_rtn_u32 v{vT}, v{vFL}, v{vONE} offset:{CFIN}")
    a("s_mov_b64 exec, -1")
    a("v_lshrrev_b32 v25, 5, v0")
    a("v_and_b32 v28, 31, v0")
    a("v_lshlrev_b32 v26, 10, v25")
    a("v_lshl_add_u32 v26, v28, 5, v26")
    a(f"v_add_u32 v26, {SBUF}, v26")
    a("v_lshlrev_b32 v27, 6, v25")
    a(f"v_add_u32 v27, {MISC+LS}, v27")
    a(f"s_lshl_b32 s{sT0}, s{sISB}, 16")
    a(f"s_lshl_b32 s{sT1}, s{sB}, 13")
    a(f"s_add_u32 s{sT0}, s{sT0}, s{sT1}")
    a(f"s_sub_u32 s{sT1}, 10, s{sISB}")
    a(f"s_lshl_b32 s{sT1}, s{sH}, s{sT1}")
    a(f"s_add_u32 s{sT0}, s{sT0}, s{sT1}")
    a(f"s_add_u32 s{sT0}, s{sT0}, {O_OFF}")
    a(f"v_lshlrev_b32 v29, 4, v0")
    a(f"v_add_u32 v29, s{sT0}, v29")
    a("s_waitcnt lgkmcnt(0)")
    a(f"v_readfirstlane_b32 s{sT0}, v{vT}")
    a(f"s_cmp_eq_u32 s{sT0}, 3")
    a("s_cbranch_scc0 L_end")
    for w in range(4):
        a(f"ds_read_b128 v[{32+8*w}:{35+8*w}], v26 offset:{w*4096}")
        a(f"ds_read_b128 v[{36+8*w}:{39+8*w}], v26 offset:{w*4096+16}")
    for k in range(4): a(f"ds_read_b128 v[{64+4*k}:{67+4*k}], v27 offset:{k*16}")
    a(f"s_lshl_b32 s{sT0}, s{sISB}, 7")
    a(f"s_lshl_b32 s{sT1}, s{sH}, 2")
    a(f"s_add_u32 s{sT0}, s{sT0}, s{sT1}")
    a(f"v_mov_b32 v30, s{sT0}")
    a("s_waitcnt lgkmcnt(0)")
    for k in range(8): a(f"v_add_f32 v{64+k}, v{64+k}, v{72+k}")
    for k in range(4): a(f"v_add_f32 v{64+k}, v{64+k}, v{68+k}")
    a("v_add_f32 v64, v64, v65")
    a("v_add_f32 v66, v66, v67")
    a("v_add_f32 v64, v64, v66")
    a("v_rcp_f32 v64, v64")
    for k in range(8):
        a(f"v_add_f32 v{32+k}, v{32+k}, v{40+k}")
        a(f"v_add_f32 v{48+k}, v{48+k}, v{56+k}")
    for k in range(8): a(f"v_add_f32 v{32+k}, v{32+k}, v{48+k}")
    for k in range(8): a(f"v_mul_f32 v{32+k}, v{32+k}, v64")
    for k in range(4): a(f"v_cvt_pk_bf16_f32 v{32+k}, v{32+2*k}, v{33+2*k}")
    a(f"s_cmp_eq_u32 s{sISB}, 1")
    a(f"s_cselect_b32 exec_hi, 0, -1")
    a(f"global_store_dwordx4 v29, v[32:35], s[{sWS}:{sWS+1}] sc1")
    a("s_waitcnt vmcnt(0)")
    a("s_mov_b64 exec, 1")
    a(f"global_atomic_add v30, v{vONE}, s[{sDBG}:{sDBG+1}] sc1")
    ts(6)
    ts_dump([3,4,5,6,7,8,9])
    a("s_endpgm")
    a.lab("L_w0")
    a("s_cmp_ge_u32 s2, 192")
    a("s_cbranch_scc1 L_h0")
    a.c("---------------- loader wave ----------------")
    a("s_setprio 3")
    attn_decode()
    vZ=2; vA=3; vFA=4; vFV=5; vKO=8; vVO=16; vD=20
    zero_flags(vZ,vA)
    a(f"v_mov_b32 v{vFA}, {MISC}")
    a("v_lshrrev_b32 v6, 5, v0      ; hi")
    a("v_and_b32 v7, 31, v0        ; lo")
    for i in range(8):
        a(f"v_add_u32 v{vKO+i}, {2*i}, v6")
        a(f"v_xor_b32 v{vKO+i}, v{vKO+i}, v7")
        a(f"v_lshlrev_b32 v{vKO+i}, 4, v{vKO+i}")
        a(f"v_lshl_add_u32 v{vKO+i}, v6, 9, v{vKO+i}")
        if i>=4: a(f"v_add_u32 v{vKO+i}, 4096, v{vKO+i}")
    a(f"v_lshlrev_b32 v{vVO}, 4, v0")
    a(f"v_add_u32 v{vVO+1}, 4096, v{vVO}")
    a(f"s_lshl_b32 s{sT0}, s{sPAIR}, 21")
    a("s_waitcnt lgkmcnt(0)")
    a(f"s_cmp_ge_u32 s2, 64")
    a(f"s_cselect_b32 s{sP0}, s{sKG+12}, s{sKG+2}         ; K")
    a(f"s_cselect_b32 s{sP0+1}, s{sKG+13}, s{sKG+3}")
    a(f"s_cselect_b32 s{sP0+2}, s{sKG+14}, s{sKG+4}       ; V")
    a(f"s_cselect_b32 s{sP0+3}, s{sKG+15}, s{sKG+5}")
    a("s_barrier")
    a(f"s_add_u32 s{sSRD0}, s{sP0}, s{sT0}")
    a(f"s_addc_u32 s{sSRD0+1}, s{sP0+1}, 0")
    a(f"s_mov_b32 s{sSRD0+2}, 0x200000")
    a(f"s_mov_b32 s{sSRD0+3}, 0x20000")
    a(f"s_add_u32 s{sSRD1}, s{sP0+2}, s{sT0}")
    a(f"s_addc_u32 s{sSRD1+1}, s{sP0+3}, 0")
    a(f"s_mov_b32 s{sSRD1+2}, 0x200000")
    a(f"s_mov_b32 s{sSRD1+3}, 0x20000")
    sT=48; sAL=49; sSL=50; sOFF=51; sPUB=52
    a(f"s_mov_b32 s{sT}, 0")
    a(f"s_mov_b32 s{sAL}, {NS-4}")
    a(f"s_mov_b32 s{sSL}, {RING}")
    if DB and DB!=D:
        a(f"s_cmp_eq_u32 s{sISB}, 1")
        a(f"s_cselect_b32 s{sPUB}, {1-(DB+7)//8}, {1-(D+7)//8}")
    else:
        a(f"s_mov_b32 s{sPUB}, {1-(D+7)//8}")
    ts(0)
    for ph,(srd,vo,tend) in enumerate(((sSRD0,[vKO+i for i in range(8)],256),(sSRD1,[vVO]*4+[vVO+1]*4,512))):
        LT=f"L_ld_tile{ph}"; LG=f"L_ld_go{ph}"; LR=f"L_ld_ref{ph}"
        a(f"s_mov_b32 s{sOFF}, 0")
        a.lab(LT)
        if diag:
            for k,(tt,rg) in enumerate(((pst[0],56),(pst[1],58),(pst[2],60),(pst[3],62))):
                if (tt<256)!=(ph==0): continue
                a(f"s_cmp_lg_u32 s{sT}, {tt}")
                a(f"s_cbranch_scc1 L_pst{k}")
                a(f"s_memrealtime s[{rg}:{rg+1}]")
                a("s_waitcnt lgkmcnt(0)")
                a.lab(f"L_pst{k}")
        a(f"s_cmp_lt_u32 s{sT}, s{sAL}")
        a(f"s_cbranch_scc1 {LG}")
        a.lab(LR)
        a(f"ds_read_b128 v[{vD}:{vD+3}], v{vFA} offset:{DONE}")
        a("s_waitcnt lgkmcnt(0)")
        a(f"v_min_u32 v{vD}, v{vD}, v{vD+1}")
        a(f"v_min3_u32 v{vD}, v{vD}, v{vD+2}, v{vD+3}")
        a("s_nop 0")
        a(f"v_readfirstlane_b32 s{sAL}, v{vD}")
        a(f"s_lshl_b32 s{sAL}, s{sAL}, 2")
        a(f"s_add_u32 s{sAL}, s{sAL}, {NS-4}")
        a(f"s_cmp_lt_u32 s{sT}, s{sAL}")
        a(f"s_cbranch_scc1 {LG}")
        bound()
        a("s_sleep 1")
        a(f"s_branch {LR}")
        a.lab(LG)
        def lwait(tag):
            a(f"s_waitcnt vmcnt({D-4})")
            if DB and DB!=D:
                assert DB<D
                a(f"s_cmp_eq_u32 s{sISB}, 0")
                a(f"s_cbranch_scc1 L_lw{ph}{tag}")
                a(f"s_waitcnt vmcnt({DB-4})")
                a.lab(f"L_lw{ph}{tag}")
        a(f"s_mov_b32 m0, s{sSL}")
        lwait("a")
        for i in range(4):
            a(f"buffer_load_dwordx4 v{vo[i]}, s[{srd}:{srd+3}], s{sOFF} offen offset:{i*1024} {pol} lds")
        a(f"s_add_u32 m0, s{sSL}, 4096")
        a(f"v_mov_b32 v{vFV}, s{sPUB}")
        lwait("b")
        a(f"ds_write_b32 v{vFA}, v{vFV} offset:{FULL}")
        for i in range(4,8):
            a(f"buffer_load_dwordx4 v{vo[i]}, s[{srd}:{srd+3}], s{sOFF} offen offset:{(i-4)*1024} {pol} lds")
        a(f"s_add_u32 s{sOFF}, s{sOFF}, 8192")
        a(f"s_add_u32 s{sSL}, s{sSL}, 8192")
        a(f"s_cmp_eq_u32 s{sSL}, {RING+RINGB}")
        a(f"s_cselect_b32 s{sSL}, {RING}, s{sSL}")
        a(f"s_add_u32 s{sPUB}, s{sPUB}, 1")
        a(f"s_add_u32 s{sT}, s{sT}, 1")
        a(f"s_cmp_lt_u32 s{sT}, {tend}")
        a(f"s_cbranch_scc1 {LT}")
        if ph==0: ts(1)
    for k in range((D+7)//8*8-8,-1,-8):
        a(f"v_mov_b32 v{vFV}, {512-k//8}")
        a(f"s_waitcnt vmcnt({k})")
        a(f"ds_write_b32 v{vFA}, v{vFV} offset:{FULL}")
    ts(2)
    ts_dump([0,1,2])
    if diag:
        for k,rg in enumerate((56,58,60,62)):
            a(f"v_mov_b32 v252, s{rg}")
            a(f"v_mov_b32 v253, s{rg+1}")
            a(f"global_store_dwordx2 v250, v[252:253], s[{sTS1}:{sTS1+1}] offset:{(10+k)*8}")
            a("s_nop 1")
    a("s_endpgm")
    a.lab("L_h0")
    a.c("helper wave 0: flag init, pointers")
    zero_flags(2,3)
    a("s_waitcnt lgkmcnt(0)")
    a(f"s_mov_b64 s[{sDBG}:{sDBG+1}], s[{sKG+22}:{sKG+23}]")
    a(f"s_mov_b64 s[{sWS}:{sWS+1}], s[{sKG+24}:{sKG+25}]")
    a(f"s_mov_b64 s[{sOUT}:{sOUT+1}], s[{sKG+20}:{sKG+21}]")
    a(f"s_mov_b64 s[{sWOA}:{sWOA+1}], s[{sKG+8}:{sKG+9}]")
    a(f"s_mov_b64 s[{sWOB}:{sWOB+1}], s[{sKG+18}:{sKG+19}]")
    a("s_barrier")
    a.lab("L_hout")
    a.c("---------------- helpers: out projection ----------------")
    sHJ=54
    vN=2; vG=3
    a(f"s_sub_u32 s{sHJ}, s2, 192")
    a(f"s_and_b32 s{sX}, s{sHJ}, 7")
    a(f"s_lshr_b32 s{sT1}, s{sHJ}, 3")
    a(f"s_and_b32 s{sSLOT}, s{sT1}, 3     ; sub")
    a(f"s_lshr_b32 s{sT1}, s{sHJ}, 5      ; hi")
    a(f"s_lshl_b32 s{sT1}, s{sT1}, 3")
    a(f"s_add_u32 s{sGRP}, s{sT1}, s{sX}   ; gamma")
    a(f"s_cmp_ge_u32 s{sGRP}, 14")
    a("s_cbranch_scc1 L_h_idle")
    a(f"s_cmp_ge_u32 s{sGRP}, 7")
    a(f"s_cselect_b32 s{sISB}, 1, 0")
    a(f"s_cselect_b32 s{sT1}, 7, 0")
    a(f"s_cselect_b32 s{sP0}, s{sWOB}, s{sWOA}          ; wo")
    a(f"s_cselect_b32 s{sP0+1}, s{sWOB+1}, s{sWOA+1}")
    a(f"s_sub_u32 s{sGRP}, s{sGRP}, s{sT1}")
    a(f"s_lshl_b32 s{sH}, s{sGRP}, 2")
    a(f"s_add_u32 s{sH}, s{sH}, s{sSLOT}")
    a(f"v_and_b32 v{vN}, 15, v0")
    a(f"v_lshrrev_b32 v{vG}, 4, v0")
    a(f"s_mul_i32 s{sT0}, s{sWAVE}, {512*896}")
    a(f"s_lshl_b32 s{sT1}, s{sH}, 5")
    a(f"s_add_u32 s{sT0}, s{sT0}, s{sT1}")
    a(f"v_lshrrev_b32 v4, 1, v0")
    a(f"v_mul_u32_u24 v4, 896, v4")
    a(f"v_and_b32 v5, 1, v0")
    a(f"v_lshl_add_u32 v4, v5, 4, v4")
    a(f"v_add_u32 v4, s{sT0}, v4")
    sWR=55
    a(f"s_lshl_b32 s{sWR}, s{sWAVE}, 14")
    a(f"v_and_b32 v5, 3, v0")
    a(f"v_bfe_u32 v6, v0, 2, 2")
    a(f"v_lshlrev_b32 v5, 3, v5")
    a(f"v_lshl_add_u32 v5, v6, 5, v5")
    a(f"v_lshl_add_u32 v5, v{vG}, 8, v5")
    a(f"v_add_u32 v5, s{sWR}, v5")
    sJ=58
    a(f"s_lshl_b32 s{sT0}, s{sWAVE}, 10")
    a(f"v_lshlrev_b32 v6, 4, v0")
    a(f"v_add_u32 v9, s{sWR}, v6")
    a(f"v_add_u32 v6, s{sT0}, v6")
    for b in range(8): a(f"s_mov_b32 s{sJ+b}, {b*8192}")
    a(f"v_and_b32 v10, 7, v{vN}")
    a(f"v_mul_u32_u24 v10, 1056, v10")
    a(f"v_lshl_add_u32 v10, v{vG}, 4, v10")
    a(f"v_add_u32 v10, s{sWR}, v10")
    a(f"s_lshl_b32 s{sT0}, s{sISB}, 3")
    a(f"s_add_u32 s{sT0}, s{sT0}, 7")
    a(f"v_and_b32 v7, s{sT0}, v0")
    a(f"v_lshlrev_b32 v7, 2, v7")
    a(f"s_lshl_b32 s{sT0}, s{sISB}, 7")
    a(f"v_add_u32 v7, s{sT0}, v7")
    a(f"s_mov_b32 s{sSRD0}, s{sP0}")
    a(f"s_mov_b32 s{sSRD0+1}, s{sP0+1}")
    a(f"s_mov_b32 s{sSRD0+2}, 3670016")
    a(f"s_mov_b32 s{sSRD0+3}, 0x20000")
    a(f"s_lshl_b32 s{sT0}, s{sISB}, 16")
    a(f"s_add_u32 s{sT0}, s{sT0}, {O_OFF}")
    a(f"s_add_u32 s{sSRD1}, s{sWS}, s{sT0}")
    a(f"s_addc_u32 s{sSRD1+1}, s{sWS+1}, 0")
    a(f"s_mov_b32 s{sSRD1+2}, 65536")
    a(f"s_mov_b32 s{sSRD1+3}, 0x20000")
    if wolate:
        a(f"s_cmp_lg_u32 s{sWAVE}, 0")
        a("s_cbranch_scc1 L_h_w1")
        if trig: a("v_mov_b32 v11, 64")
        a.lab("L_h_poll1")
        a(f"global_load_dword v8, v{11 if trig else 7}, s[{sDBG}:{sDBG+1}] sc1")
        a("s_waitcnt vmcnt(0)")
        a("v_cmp_lt_u32 vcc, 0, v8")
        a("s_nop 1")
        a("s_cmp_lg_u64 vcc, 0")
        a("s_cbranch_scc1 L_h_w1")
        bound()
        a(f"s_sleep {hslow}")
        a("s_branch L_h_poll1")
        a.lab("L_h_w1")
        a("s_barrier")
    ts(5)
    vWT=64
    if worot:
        a(f"s_mul_i32 s{sT2}, s{sSLOT}, {worot}")
        for s_ in range(16):
            a(f"s_add_u32 s{sT1}, s{sT2}, {s_}")
            a(f"s_and_b32 s{sT1}, s{sT1}, 15")
            a(f"s_lshl_b32 s{sT0}, s{sT1}, 10")
            a(f"s_add_u32 m0, s{sWR}, s{sT0}")
            a(f"s_mul_i32 s{sT0}, s{sT1}, {32*896}")
            a(f"buffer_load_dwordx4 v4, s[{sSRD0}:{sSRD0+3}], s{sT0} offen {wopol} lds")
        a("s_waitcnt vmcnt(0)")
        for s_ in range(16):
            a(f"ds_read_b64_tr_b16 v[{vWT+4*s_}:{vWT+4*s_+1}], v5 offset:{s_*1024}")
            a(f"ds_read_b64_tr_b16 v[{vWT+4*s_+2}:{vWT+4*s_+3}], v5 offset:{s_*1024+128}")
    else:
        for s_ in range(16):
            a(f"s_add_u32 m0, s{sWR}, {s_*1024}")
            a(f"s_mov_b32 s{sT0}, {s_*32*896}")
            a(f"buffer_load_dwordx4 v4, s[{sSRD0}:{sSRD0+3}], s{sT0} offen {wopol} lds")
        for s_ in range(16):
            a(f"s_waitcnt vmcnt({15-s_})")
            a(f"ds_read_b64_tr_b16 v[{vWT+4*s_}:{vWT+4*s_+1}], v5 offset:{s_*1024}")
            a(f"ds_read_b64_tr_b16 v[{vWT+4*s_+2}:{vWT+4*s_+3}], v5 offset:{s_*1024+128}")
    a("s_waitcnt lgkmcnt(0)")
    ts(0)
    if early:
        a(f"v_mov_b32 v14, {MISC}")
    a(f"s_cmp_lg_u32 s{sWAVE}, 0")
    a("s_cbranch_scc1 L_h_wait")
    if not wolate:
        a.lab("L_h_poll1")
        a(f"global_load_dword v8, v7, s[{sDBG}:{sDBG+1}] sc1")
        a("s_waitcnt vmcnt(0)")
        a("v_cmp_lt_u32 vcc, 0, v8")
        a("s_nop 1")
        a("s_cmp_lg_u64 vcc, 0")
        a("s_cbranch_scc1 L_h_poll")
        bound()
        a(f"s_sleep {hslow}")
        a("s_branch L_h_poll1")
    if hpipe:
        regs=[8]+[240+k for k in range(hpipe-1)]
        for k in range(hpipe-1):
            a(f"global_load_dword v{regs[k]}, v7, s[{sDBG}:{sDBG+1}] sc1")
            a(f"s_sleep {hstag}")
        a.lab("L_h_poll")
        for k in range(hpipe):
            a(f"global_load_dword v{regs[(k+hpipe-1)%hpipe]}, v7, s[{sDBG}:{sDBG+1}] sc1")
            a(f"s_waitcnt vmcnt({hpipe-1})")
            a(f"v_cmp_le_u32 vcc, 8, v{regs[k]}")
            a("s_nop 1")
            a("s_cmp_eq_u64 vcc, -1")
            a("s_cbranch_scc1 L_h_got")
        bound()
        a("s_branch L_h_poll")
        a.lab("L_h_got")
    else:
        a.lab("L_h_poll")
        a(f"global_load_dword v8, v7, s[{sDBG}:{sDBG+1}] sc1")
        a("s_waitcnt vmcnt(0)")
        a("v_cmp_le_u32 vcc, 8, v8")
        a("s_nop 1")
        if early:
            a("v_mov_b32 v15, vcc_lo")
            a(f"ds_write_b32 v14, v15 offset:{RDY}")
        a("s_cmp_eq_u64 vcc, -1")
        a(f"s_cbranch_scc1 {'L_h_go' if early else 'L_h_wait'}")
        bound()
        if hmid:
            a("s_bcnt1_i32_b64 s56, vcc")
            a(f"s_cmp_ge_u32 s56, {hthr}")
            a(f"s_cbranch_scc1 {'L_h_fast' if hfast else 'L_h_poll'}")
            a(f"s_sleep {hmid}")
        elif hsleep: a(f"s_sleep {hsleep}")
        a("s_branch L_h_poll")
        if hfast:
            assert early
            a.lab("L_h_fast")
            a(f"global_load_dword v8, v7, s[{sDBG}:{sDBG+1}] sc1")
            a(f"s_sleep {hfast}")
            a.lab("L_h_fast2")
            for cur,nxt in ((8,240),(240,8)):
                a(f"global_load_dword v{nxt}, v7, s[{sDBG}:{sDBG+1}] sc1")
                a("s_waitcnt vmcnt(1)")
                a(f"v_cmp_le_u32 vcc, 8, v{cur}")
                a("s_nop 1")
                a("v_mov_b32 v15, vcc_lo")
                a(f"ds_write_b32 v14, v15 offset:{RDY}")
                a("s_cmp_eq_u64 vcc, -1")
                a("s_cbranch_scc1 L_h_go")
            bound()
            a("s_branch L_h_fast2")
    a.lab("L_h_wait")
    if early:
        a(f"s_lshl_b32 s56, s{sWAVE}, s{sISB}")
        a(f"s_lshl_b32 s57, s{sISB}, 1")
        a(f"s_add_u32 s57, s57, 1")
        a(f"s_lshl_b32 s57, s57, s56")
        a.lab("L_h_rdy")
        a(f"ds_read_b32 v15, v14 offset:{RDY}")
        a("s_waitcnt lgkmcnt(0)")
        a("v_readfirstlane_b32 s56, v15")
        a("s_and_b32 s56, s56, s57")
        a("s_cmp_eq_u32 s56, s57")
        a("s_cbranch_scc1 L_h_go")
        bound()
        a("s_sleep 2")
        a("s_branch L_h_rdy")
        a.lab("L_h_go")
    else:
        a("s_barrier")
    ts(1)
    vOF=128
    for b in range(8):
        a(f"buffer_load_dwordx4 v[{vOF+4*b}:{vOF+4*b+3}], v6, s[{sSRD1}:{sSRD1+3}], s{sJ+b} offen sc1")
    for b in range(8):
        a(f"s_waitcnt vmcnt({7-b})")
        a(f"ds_write_b128 v9, v[{vOF+4*b}:{vOF+4*b+3}] offset:{b*1056}")
    vFR=160
    a("s_waitcnt lgkmcnt(0)")
    for s_ in range(16):
        a(f"ds_read_b128 v[{vFR+4*s_}:{vFR+4*s_+3}], v10 offset:{s_*64}")
    vAC=12
    PART=131072
    a(f"s_lshl_b32 s{sT0}, s{sWAVE}, 9")
    a(f"s_add_u32 s{sT0}, s{sT0}, {PART}")
    a(f"v_lshlrev_b32 v11, 8, v{vG}")
    a(f"v_lshl_add_u32 v11, v{vN}, 2, v11")
    a(f"v_add_u32 v11, s{sT0}, v11")
    for s_ in range(16):
        a(f"s_waitcnt lgkmcnt({15-s_})")
        acc=vAC+4*(s_&1)
        cin="0" if s_<2 else f"v[{acc}:{acc+3}]"
        a(f"v_mfma_f32_16x16x32_bf16 v[{acc}:{acc+3}], v[{vFR+4*s_}:{vFR+4*s_+3}], v[{vWT+4*s_}:{vWT+4*s_+3}], {cin}")
    ts(2)
    a("s_nop 7")
    for r in range(4): a(f"v_add_f32 v{vAC+r}, v{vAC+r}, v{vAC+4+r}")
    a("s_mov_b32 exec_hi, 0")
    for r in range(4): a(f"ds_write_b32 v11, v{vAC+r} offset:{r*64}")
    a("s_mov_b64 exec, -1")
    a("v_lshrrev_b32 v20, 3, v0")
    a("v_and_b32 v21, 7, v0")
    a("v_lshlrev_b32 v22, 6, v20")
    a("v_lshl_add_u32 v22, v21, 3, v22")
    a(f"v_add_u32 v22, {PART}, v22")
    a(f"s_mul_i32 s{sT0}, s{sISB}, 896")
    a(f"s_lshl_b32 s{sT1}, s{sH}, 5")
    a(f"s_add_u32 s{sT0}, s{sT0}, s{sT1}")
    a(f"v_mul_u32_u24 v23, 1792, v20")
    a(f"v_lshl_add_u32 v23, v21, 2, v23")
    a(f"v_add_u32 v23, s{sT0}, v23")
    a(f"s_mov_b32 s{sSRD0}, s{sOUT}")
    a(f"s_mov_b32 s{sSRD0+1}, s{sOUT+1}")
    a(f"s_mov_b32 s{sSRD0+2}, 14336")
    a(f"s_mov_b32 s{sSRD0+3}, 0x20000")
    a("s_waitcnt lgkmcnt(0)")
    a("s_barrier")
    a(f"s_cmp_lg_u32 s{sWAVE}, 0")
    a("s_cbranch_scc1 L_end")
    ts(3)
    for w in range(8): a(f"ds_read_b64 v[{24+2*w}:{25+2*w}], v22 offset:{w*512}")
    a("s_waitcnt lgkmcnt(0)")
    for w in (1,3,5,7):
        a(f"v_add_f32 v{24+2*(w-1)}, v{24+2*(w-1)}, v{24+2*w}")
        a(f"v_add_f32 v{25+2*(w-1)}, v{25+2*(w-1)}, v{25+2*w}")
    for w in (2,6):
        a(f"v_add_f32 v{24+2*(w-2)}, v{24+2*(w-2)}, v{24+2*w}")
        a(f"v_add_f32 v{25+2*(w-2)}, v{25+2*(w-2)}, v{25+2*w}")
    a("v_add_f32 v24, v24, v32")
    a("v_add_f32 v25, v25, v33")
    a("v_cvt_pk_bf16_f32 v24, v24, v25")
    a(f"buffer_store_dword v24, v23, s[{sSRD0}:{sSRD0+3}], 0 offen {outpol}")
    ts(4)
    ts_dump([0,1,2,3,4,5])
    a("s_endpgm")
    a.lab("L_h_idle")
    a(f"s_cmp_lg_u32 s2, 230")
    a("s_cbranch_scc1 L_end")
    a(f"s_cmp_lg_u32 s{sWAVE}, 0")
    a("s_cbranch_scc1 L_end")
    a(f"s_load_dword s{sTAG}, s[{sWS}:{sWS+1}], {E_OFF}")
    if probe==-2: a("s_memrealtime s[60:61]")
    a("v_cmp_gt_u32 vcc, 8, v0")
    a("v_lshlrev_b32 v4, 2, v0")
    a("v_add_u32 v5, 96, v4          ; 128 + (lane-8)*4")
    a("v_cndmask_b32 v4, v5, v4, vcc")
    a("v_cmp_gt_u32 vcc, 24, v0")
    a("v_mov_b32 v5, 0")
    a("s_nop 0")
    a("v_cndmask_b32 v4, v5, v4, vcc")
    a("s_waitcnt lgkmcnt(0)")
    a(f"s_add_u32 s{sTAG}, s{sTAG}, 0x9e3779b1")
    a.lab("L_e_poll")
    a(f"global_load_dword v8, v4, s[{sDBG}:{sDBG+1}] sc1")
    a("s_waitcnt vmcnt(0)")
    a("v_cmp_le_u32 vcc, 8, v8")
    a("s_nop 1")
    a("s_cmp_eq_u64 vcc, -1")
    a("s_cbranch_scc1 L_e_done")
    bound()
    a("v_cmp_lt_u32 vcc, 0, v8")
    a("s_nop 1")
    a("s_cmp_lg_u64 vcc, 0")
    a("s_cbranch_scc1 L_e_fast")
    a("s_sleep 32")
    a.lab("L_e_fast")
    a("s_sleep 4")
    a("s_branch L_e_poll")
    a.lab("L_e_done")
    a(f"v_mov_b32 v4, {E_OFF}")
    a(f"v_mov_b32 v5, s{sTAG}")
    a("s_mov_b64 exec, 1")
    a(f"global_store_dword v4, v5, s[{sWS}:{sWS+1}] {outpol}")
    a.lab("L_end")
    a("s_endpgm")
    body=a.text()
    hdr=open("cdna_kernels/"+NAME+".s.ref").read().split("\n")
    head=[l for l in hdr if l.startswith(";") and "@launch" not in l and "Override launch" not in l and "grid=ceil" not in l]
    out="\n".join(head)+"\n"
    out+=f"; @launch grid=(256,1,1) block=(512,1,1) lds={LDS}\n"
    out+=DOC
    out+=f""".amdgcn_target "amdgcn-amd-amdhsa--gfx950"
.text
.globl {KN}
.p2align 8
.type {KN},@function
"""
    out+=body
    out+=f""".section .rodata,"a"
.p2align 6
.amdhsa_kernel {KN}
  .amdhsa_next_free_vgpr 256
  .amdhsa_next_free_sgpr 96
  .amdhsa_accum_offset 256
  .amdhsa_group_segment_fixed_size 0
  .amdhsa_kernarg_size 104
  .amdhsa_user_sgpr_count 2
  .amdhsa_user_sgpr_kernarg_segment_ptr 1
  .amdhsa_system_sgpr_workgroup_id_x 1
.end_amdhsa_kernel
"""
    return out, LDS

DOC=""";
"""
META=""".amdgpu_metadata
---
amdhsa.version: [1, 2]
amdhsa.kernels:
  - .name: {KN}
    .symbol: {KN}.kd
    .kernarg_segment_size: 104
    .kernarg_segment_align: 8
    .group_segment_fixed_size: 0
    .private_segment_fixed_size: 0
    .wavefront_size: 64
    .sgpr_count: 102
    .vgpr_count: 256
    .max_flat_workgroup_size: 512
    .args:
      - {{.name: kernargs, .size: 104, .offset: 0, .value_kind: by_value}}
...
.end_amdgpu_metadata
"""
if __name__=="__main__":
    import argparse
    ap=argparse.ArgumentParser()
    ap.add_argument("-o",default="cdna_kernels/"+NAME+".s")
    ap.add_argument("--diag",action="store_true")
    ap.add_argument("--meta",action="store_true")
    ap.add_argument("--D",type=int,default=40)
    ap.add_argument("--NS",type=int,default=17)
    ap.add_argument("--pol",default="nt")
    ap.add_argument("--wqpol",default="nt")
    ap.add_argument("--wopol",default="nt")
    ap.add_argument("--hsleep",type=int,default=2)
    ap.add_argument("--hslow",type=int,default=16)
    ap.add_argument("--qsleep",type=int,default=16)
    ap.add_argument("--spin",type=int,default=0)
    ap.add_argument("--wolate",type=int,default=1)
    ap.add_argument("--DB",type=int,default=0)
    ap.add_argument("--worot",type=int,default=0)
    ap.add_argument("--hpipe",type=int,default=0)
    ap.add_argument("--bx",type=int,default=0)
    ap.add_argument("--early",type=int,default=1)
    ap.add_argument("--hfast",type=int,default=10)
    ap.add_argument("--noq",type=int,default=0)
    ap.add_argument("--outpol",default="")
    ap.add_argument("--wsl",type=int,default=24)
    ap.add_argument("--wlast",type=int,default=500)
    ap.add_argument("--hmid",type=int,default=16)
    ap.add_argument("--hthr",type=int,default=48)
    ap.add_argument("--hstag",type=int,default=5)
    ap.add_argument("--trig",type=int,default=480)
    args=ap.parse_args()
    s,lds=gen(D=args.D,NS=args.NS,diag=args.diag,pol=args.pol,wqpol=args.wqpol,wopol=args.wopol,hsleep=args.hsleep,hslow=args.hslow,
              qsleep=args.qsleep,spin_sleep=args.spin,wolate=bool(args.wolate),trig=args.trig,DB=args.DB,worot=args.worot,hpipe=args.hpipe,hstag=args.hstag,hmid=args.hmid,hthr=args.hthr,wsl=args.wsl,wlast=args.wlast,bx=bool(args.bx),outpol=args.outpol,noq=args.noq,early=bool(args.early),hfast=args.hfast)
    if args.meta: s+=META.format(KN=KN)
    open(args.o,"w").write(s)
    print("wrote",args.o,"lds",lds)
```
